```python
import torch

def _softmax(x, axis=-1):
    return torch.softmax(x, dim=axis)
def _gelu(x):
    return torch.nn.functional.gelu(x, approximate="tanh")
def _silu(x):
    return torch.nn.functional.silu(x)
def _sigmoid(x):
    return torch.sigmoid(x)
def _layernorm(x, axis=-1, eps=1e-5):
    m = x.mean(dim=axis, keepdim=True)
    v = x.var(dim=axis, keepdim=True, unbiased=False)
    return (x - m) / torch.sqrt(v + eps)
def _scatter_add(tgt, idx, src, axis=0):
    return tgt.clone().index_add_(axis, idx, src)
def _segment_sum(src, seg, n):
    out = torch.zeros((n,) + src.shape[1:], dtype=src.dtype)
    return out.index_add_(0, seg, src)
def _pad(x, pw):
    flat = tuple(v for pair in reversed(pw) for v in pair)
    return torch.nn.functional.pad(x, flat)

kernel_name = 'parallel_sum__ssm_conv_h3__glu_gated_geglu__prompt'

def setup_inputs():

    _w = (lambda a: (lambda t: t.to(torch.bfloat16) if t.is_floating_point() else t)(torch.as_tensor(a)))
    def _A_setup():
        B, S, D = 1, 2048, 576
        ks = 4
        return {
            "q": _w((lambda *s: torch.randn(*s, dtype=torch.bfloat16) * 0.05)(B, S, D)),
            "k": _w((lambda *s: torch.randn(*s, dtype=torch.bfloat16) * 0.2)(B, S, D)),
            "v": _w((lambda *s: torch.randn(*s, dtype=torch.bfloat16) * 0.2)(B, S, D)),
            "shift_k": _w((lambda *s: torch.randn(*s, dtype=torch.bfloat16) * 0.2)(D, ks) * 0.5),
            "ssm_k": _w((lambda *s: torch.randn(*s, dtype=torch.bfloat16) * 0.4)(D, S) * (1.0 / S ** 0.5)),
            "ssm_D": _w((lambda *s: torch.randn(*s, dtype=torch.bfloat16) * 0.2)(D)),
        }
    _A_in = _A_setup()

    def _B_setup():
        B, S, Dm, Df = 1, 2048, 576, 4608
        return {
            "x": _w((lambda *s: torch.randn(*s, dtype=torch.bfloat16) * 0.05)(B, S, Dm)),
            "w_gate": _w((lambda *s: torch.randn(*s, dtype=torch.bfloat16) * 0.4)(Dm, Df) * (Dm ** -0.5)),
            "w_up": _w((lambda *s: torch.randn(*s, dtype=torch.bfloat16) * 0.4)(Dm, Df) * (Dm ** -0.5)),
            "w_down": _w((lambda *s: torch.randn(*s, dtype=torch.bfloat16) * 0.4)(Df, Dm) * (Df ** -0.5)),
        }
    _B_in = _B_setup()

    return {
        "A_q": _A_in["q"],
        "A_k": _A_in["k"],
        "A_v": _A_in["v"],
        "A_shift_k": _A_in["shift_k"],
        "A_ssm_k": _A_in["ssm_k"],
        "A_ssm_D": _A_in["ssm_D"],
        "B_x": _B_in["x"],
        "B_w_gate": _B_in["w_gate"],
        "B_w_up": _B_in["w_up"],
        "B_w_down": _B_in["w_down"],
    }

def reference(A_q, A_k, A_v, A_shift_k, A_ssm_k, A_ssm_D, B_x, B_w_gate, B_w_up, B_w_down):
    def _A_ref(q, k, v, shift_k, ssm_k, ssm_D):
        B, S, D = q.shape
        ks = shift_k.shape[-1]
        k_pad = _pad(k, ((0, 0), (ks - 1, 0), (0, 0)))
        k_shift = torch.zeros_like(k)
        for t in range(ks):
            k_shift = k_shift + k_pad[:, t:t + S, :] * shift_k[:, ks - 1 - t][None, None, :]
        kv = k_shift * v
        L = 2 * S
        kv_pad = _pad(kv, ((0, 0), (0, S), (0, 0)))
        kf_pad = _pad(ssm_k, ((0, 0), (0, S)))
        kv_f = (lambda x, axes=(-2,-1): torch.fft.rfft2(x.float(), dim=axes))(kv_pad[:, None, :, :], axes=(1, 2))
        kf_f = (lambda x, axes=(-2,-1): torch.fft.rfft2(x.float(), dim=axes))(kf_pad[:, None, :], axes=(1, 2))
        kf_f = (lambda x, *d: x.permute(*d))(kf_f, 1, 2, 0)
        y_f = kv_f * kf_f[None, :, :, :]
        y = (lambda x, s, axes=(-2,-1): torch.fft.irfft2(x, s=s, dim=axes).to(torch.bfloat16))(y_f, (1, L), axes=(1, 2))[:, 0, :S, :]
        y = y + kv * ssm_D[None, None, :]
        return q * y

    def _B_ref(x, w_gate, w_up, w_down):
        g = torch.einsum("bsd,df->bsf", x, w_gate)
        u = torch.einsum("bsd,df->bsf", x, w_up)
        h = _gelu(g) * u
        return torch.einsum("bsf,fd->bsd", h, w_down)

    x = A_q
    xn = _layernorm(x, axis=-1)
    return x + _A_ref(xn, A_k, A_v, A_shift_k, A_ssm_k, A_ssm_D) + _B_ref(xn, B_w_gate, B_w_up, B_w_down)
```

```python
import re

REG_RE = re.compile(r'\b([vsa])\[(\d+):(\d+)\]|\b([vsa])(\d+)\b|\b(vcc|exec|m0|scc)\b')

def regs_of(op):
    out = []
    for m in REG_RE.finditer(op):
        if m.group(1):
            out += [f"{m.group(1)}{i}" for i in range(int(m.group(2)), int(m.group(3)) + 1)]
        elif m.group(4):
            out.append(f"{m.group(4)}{m.group(5)}")
        else:
            out.append(m.group(6))
    return out

TRANS = ("v_exp_f32", "v_log_f32", "v_rcp_f32", "v_rsq_f32", "v_sqrt_f32", "v_sin_f32", "v_cos_f32")

class Inst:
    __slots__ = ("text", "op", "kind", "defs", "uses", "tag", "note", "opaque")
    def __init__(self, text, tag=None):
        self.text = text.strip()
        self.tag = tag
        self.opaque = False
        t = self.text.split(";")[0].strip()
        parts = t.split(None, 1)
        self.op = parts[0] if parts else ""
        rest = parts[1] if len(parts) > 1 else ""
        ops = [o.strip() for o in split_ops(rest)]
        self.defs = set(); self.uses = set()
        op = self.op
        if t.endswith(":"):
            self.kind = "label"; return
        if op.startswith("v_mfma"):
            self.kind = "mfma"
            self.defs = set(regs_of(ops[0]))
            for o in ops[1:]: self.uses |= set(regs_of(o))
        elif op.startswith("ds_read") or op.startswith("ds_bpermute") or op.startswith("ds_swizzle") or op.startswith("ds_permute"):
            self.kind = "ds_read"
            self.defs = set(regs_of(ops[0]))
            for o in ops[1:]: self.uses |= set(regs_of(o))
        elif op.startswith("ds_"):
            self.kind = "ds_write"
            for o in ops: self.uses |= set(regs_of(o))
        elif op.startswith("buffer_load") or op.startswith("global_load"):
            if re.search(r'\blds\b', rest):
                self.kind = "dma"
                for o in ops: self.uses |= set(regs_of(o))
                self.uses.add("m0")
            else:
                self.kind = "vload"
                self.defs = set(regs_of(ops[0]))
                for o in ops[1:]: self.uses |= set(regs_of(o))
        elif op.startswith("buffer_store") or op.startswith("global_store"):
            self.kind = "vstore"
            for o in ops: self.uses |= set(regs_of(o))
        elif op.startswith("buffer_atomic") or op.startswith("global_atomic"):
            self.kind = "vstore"
            for o in ops: self.uses |= set(regs_of(o))
            if re.search(r'\bsc0\b', rest):
                self.kind = "vload"; self.defs = set(regs_of(ops[0]))
        elif op.startswith("buffer_") :
            self.kind = "vstore"
        elif op.startswith("s_load") or op.startswith("s_memtime") or op.startswith("s_memrealtime"):
            self.kind = "smem"
            self.defs = set(regs_of(ops[0]))
            for o in ops[1:]: self.uses |= set(regs_of(o))
        elif op == "s_waitcnt":
            self.kind = "wait"
        elif op == "s_barrier":
            self.kind = "barrier"
        elif op in ("s_nop", "s_sleep", "s_setprio", "s_endpgm"):
            self.kind = "nop"
        elif op.startswith("s_cbranch") or op == "s_branch":
            self.kind = "branch"
            if "scc" in op: self.uses.add("scc")
            if "vcc" in op: self.uses.add("vcc")
            if "exec" in op: self.uses.add("exec")
        elif op.startswith("s_cmp"):
            self.kind = "salu"
            for o in ops: self.uses |= set(regs_of(o))
            self.defs = {"scc"}
        elif op.startswith("s_"):
            self.kind = "salu"
            self.defs = set(regs_of(ops[0]))
            for o in ops[1:]: self.uses |= set(regs_of(o))
            if "saveexec" in op: self.defs.add("exec"); self.uses.add("exec")
            if op.startswith("s_cselect") or op.startswith("s_addc") or op.startswith("s_subb"): self.uses.add("scc")
            if not op.startswith("s_mov") and not op.startswith("s_cselect"): self.defs.add("scc")
        elif op.startswith("v_"):
            self.kind = "trans" if any(op.startswith(x) for x in TRANS) else "valu"
            if op.startswith("v_cmp"):
                self.defs = set(regs_of(ops[0]))
                for o in ops[1:]: self.uses |= set(regs_of(o))
                if op.startswith("v_cmpx"): self.defs.add("exec")
            elif op.startswith("v_permlane") and "swap" in op:
                self.defs = set(regs_of(ops[0])) | set(regs_of(ops[1]))
                self.uses = set(self.defs)
            elif op.startswith("v_readfirstlane") or op.startswith("v_readlane"):
                self.defs = set(regs_of(ops[0]))
                for o in ops[1:]: self.uses |= set(regs_of(o))
            else:
                self.defs = set(regs_of(ops[0]))
                rest_ops = ops[1:]
                if ("_co_" in op) and rest_ops and rest_ops[0] in ("vcc",) :
                    self.defs.add("vcc"); rest_ops = rest_ops[1:]
                for o in rest_ops: self.uses |= set(regs_of(o))
                if op.startswith("v_fmac") or op.startswith("v_dot2c") or op.startswith("v_mac") or op.startswith("v_writelane"):
                    self.uses |= set(regs_of(ops[0]))
            self.uses.add("exec")
        elif op.startswith("."):
            self.kind = "directive"
        elif op == "WAITVM" or op == "WAITLG" or op == "DRAIN":
            self.kind = "pseudo"
        else:
            raise ValueError("unknown op: " + self.text)

def split_ops(s):
    out = []; depth = 0; cur = ""
    for ch in s:
        if ch == "[": depth += 1
        if ch == "]": depth -= 1
        if ch == "," and depth == 0:
            out.append(cur); cur = ""
        else:
            cur += ch
    if cur.strip(): out.append(cur)
    return out

VM_KINDS = ("vload", "vstore", "dma")
LG_KINDS = ("ds_read", "ds_write")

class Prog:
    def __init__(self):
        self.ins = []
    def __call__(self, text, tag=None):
        for line in text.split("\n"):
            line = line.strip()
            if not line or line.startswith(";"): continue
            self.ins.append(Inst(line, tag))
        return self
    def add(self, inst): self.ins.append(inst)
    def waitvm(self, tag):
        i = Inst("WAITVM"); i.tag = tag; self.ins.append(i)
    def waitlg(self, tag=None):
        i = Inst("WAITLG"); i.tag = tag; self.ins.append(i)
    def drain(self):
        self.ins.append(Inst("DRAIN"))

    def insert_waits(self):
        out = []
        vm = []
        lg = []
        smem_pending = set()
        def emit_wait(vn=None, ln=None):
            s = "s_waitcnt"
            if vn is not None: s += f" vmcnt({min(vn,63)})"
            if ln is not None: s += f" lgkmcnt({min(ln,15)})"
            out.append(Inst(s))
        for ins in self.ins:
            if ins.opaque:
                out.append(ins); continue
            if ins.kind == "pseudo":
                if ins.op == "WAITVM":
                    idx = [i for i, e in enumerate(vm) if e[1] == ins.tag]
                    if idx:
                        p = max(idx); n = len(vm) - 1 - p
                        emit_wait(vn=n);
                        if n <= 63: vm = vm[p+1:]
                        else: vm = vm[len(vm)-63:]
                elif ins.op == "WAITLG":
                    if ins.tag is None:
                        if lg or smem_pending:
                            emit_wait(ln=0); lg = []; smem_pending = set()
                    else:
                        idx = [i for i, e in enumerate(lg) if e[1] == ins.tag]
                        if idx:
                            p = max(idx); n = len(lg) - 1 - p
                            if smem_pending: n = 0
                            emit_wait(ln=n); lg = lg[len(lg)-min(n,15):] if n > 0 else []
                            if n == 0: smem_pending = set()
                elif ins.op == "DRAIN":
                    emit_wait(vn=0, ln=0); vm = []; lg = []; smem_pending = set()
                continue
            if ins.kind == "wait":
                m = re.search(r'vmcnt\((\d+)\)', ins.text)
                if m:
                    n = int(m.group(1)); vm = vm[len(vm)-n:] if n < len(vm) and n > 0 else ([] if n == 0 else vm)
                m = re.search(r'lgkmcnt\((\d+)\)', ins.text)
                if m:
                    n = int(m.group(1))
                    if n == 0: lg = []; smem_pending = set()
                    elif not smem_pending and n < len(lg): lg = lg[len(lg)-n:]
                out.append(ins); continue
            touch = ins.uses | ins.defs
            vneed = None; lneed = None
            for p, e in enumerate(vm):
                if e[0] & touch: vneed = len(vm) - 1 - p
            for p, e in enumerate(lg):
                if e[0] & touch: lneed = len(lg) - 1 - p
            if smem_pending & touch: lneed = 0
            if lneed is not None and smem_pending: lneed = 0
            if vneed is not None or lneed is not None:
                emit_wait(vneed, lneed)
                if vneed is not None:
                    n = min(vneed, 63); vm = vm[len(vm)-n:] if n > 0 else []
                if lneed is not None:
                    n = min(lneed, 15); lg = lg[len(lg)-n:] if n > 0 else []
                    if n == 0: smem_pending = set()
            if ins.kind in VM_KINDS: vm.append((set(ins.defs), ins.tag))
            if ins.kind in LG_KINDS: lg.append((set(ins.defs), ins.tag))
            if ins.kind == "smem": smem_pending |= set(ins.defs) or {"_"}
            out.append(ins)
        self.ins = out

    def pad_hazards(self):
        out = []
        def dist_since(pred, maxd):
            d = 0
            for prev in reversed(out):
                if prev.kind in ("label", "directive"): continue
                if pred(prev): return d
                if prev.op == "s_nop":
                    d += int(prev.text.split()[1]) + 1
                else:
                    d += 1
                if d >= maxd: return None
            return None
        for ins in self.ins:
            need = 0
            def req(pred, n):
                nonlocal need
                d = dist_since(pred, n)
                if d is not None and n - d > need: need = n - d
            isv = lambda r: r[0] == "v" and r != "vcc" or r[0] == "a"
            vuses = {r for r in ins.uses if r[0] in "va" and r != "vcc"}
            vdefs = {r for r in ins.defs if r[0] in "va" and r != "vcc"}
            suses = {r for r in ins.uses if (r[0] == "s" and r != "scc") or r == "vcc"}
            VAL = ("valu", "trans")
            if ins.kind == "mfma":
                req(lambda p: p.kind in VAL and (p.defs & vuses), 2)
                ops = split_ops(ins.text.split(None, 1)[1])
                ab = set(regs_of(ops[1])) | set(regs_of(ops[2])); c = set(regs_of(ops[3]));
                req(lambda p: p.kind == "mfma" and (p.defs & ab), 8 if "16x16" in ins.op else 12)
                req(lambda p: p.kind == "mfma" and (p.defs & c) and p.defs != c, 6 if "16x16" in ins.op else 10)
                req(lambda p: p.kind in VAL and "exec" in p.defs, 4)
            if ins.kind in VAL or ins.kind in ("ds_read", "ds_write", "vload", "vstore", "dma"):
                req(lambda p: p.kind == "mfma" and (p.defs & (vuses | vdefs)), 8)
                req(lambda p: p.kind == "mfma" and "32x32" in p.op and (p.defs & (vuses | vdefs)), 12)
            if ins.kind in VAL or ins.kind in ("ds_read", "ds_write", "vload", "vstore", "dma", "mfma"):
                if ins.op.startswith("v_dot"):
                    ops_ = split_ops(ins.text.split(None, 1)[1])
                    ab_ = set(regs_of(ops_[1])) | set(regs_of(ops_[2]))
                    req(lambda p: p.op.startswith("v_dot") and (p.defs & ab_), 3)
                else:
                    req(lambda p: p.op.startswith("v_dot") and (p.defs & (vuses | vdefs)), 3)
            if ins.kind in VAL:
                def srcc_war(p):
                    if p.kind != "mfma": return False
                    ops = split_ops(p.text.split(None, 1)[1]); return bool(set(regs_of(ops[3])) & vdefs)
                req(srcc_war, 3)
                req(lambda p: p.kind == "trans" and (p.defs & vuses) and ins.kind != "trans", 1)
                req(lambda p: p.kind == "trans" and (p.defs & vuses), 1)
                req(lambda p: p.kind in VAL and (p.defs & suses), 2)
                req(lambda p: p.kind == "vstore" and ("x4" in p.op or "x3" in p.op) and (p.uses & vdefs), 2)
                if ins.op.startswith("v_permlane"):
                    req(lambda p: p.kind in VAL and (p.defs & vuses), 2)
                if ins.op.startswith("v_readfirstlane") or ins.op.startswith("v_readlane"):
                    req(lambda p: p.kind in VAL and (p.defs & vuses), 1)
                    req(lambda p: p.kind in VAL and (p.defs & suses), 4)
                if "dpp" in ins.text or "row_" in ins.text or "quad_perm" in ins.text:
                    req(lambda p: p.kind in VAL and (p.defs & vuses), 2)
                    req(lambda p: p.kind in VAL and "exec" in p.defs, 5)
            if ins.kind in ("vload", "vstore", "dma"):
                req(lambda p: p.kind in VAL and (p.defs & suses), 5)
            if ins.kind == "dma":
                req(lambda p: p.kind == "salu" and "m0" in p.defs, 1)
            if ins.kind in ("ds_read", "vload"):
                req(lambda p: p.kind == "vstore" and ("x4" in p.op or "x3" in p.op) and (p.uses & vdefs), 1)
            if ins.kind == "salu" or ins.kind == "branch":
                req(lambda p: p.kind in VAL and (p.defs & (suses | ({"vcc"} & ins.uses))), 4)
            while need > 0:
                k = min(need, 16); out.append(Inst(f"s_nop {k-1}")); need -= k
            out.append(ins)
        self.ins = out

    def text(self):
        return "\n".join(("" if i.kind == "label" else "  ") + i.text for i in self.ins) + "\n"

    def finalize(self):
        self.insert_waits(); self.pad_hazards(); return self.text()

    def stats(self):
        from collections import Counter
        return Counter(i.kind for i in self.ins)
```

```python
import sys, math, struct
sys.path.insert(0, "gen")
from fw import *

NAME = "parallel_sum__ssm_conv_h3__glu_gated_geglu__prompt"
def f2u(x): return struct.unpack("<I", struct.pack("<f", x))[0]
OOB = 0x80000000

WS_SIZE = 268435456
WS_BASE = 0xD000000
WS_P    = WS_BASE
WS_KVT  = WS_BASE + 0x2400000
WS_ZT   = WS_BASE + 0x2640000
WS_ST   = WS_BASE + 0x2880000
WS_CSP  = WS_BASE + 0x2890000
WS_FLAG = WS_BASE + 0x2930000
WS_DUMP = WS_BASE + 0x2940000
FA, FB, ZF = 0, 4096, 8192

SLOT = 36864
L_X = 110592
L_H = 73728
L_CS = 147456
L_KVL = 149760
L_DUMMY = 159552
L_CSL = 161536
LDS_BYTES = 163840
C_TCA, C_TCB, C_KP, C_YR = 0, 33280, 66560, 80384
C_ZL = 145920
C_C8 = 0

S_X, S_WG, S_WU, S_WD, S_WS, S_W5 = 8, 12, 16, 20, 24, 28
S_OUT, S_T0, S_DBG = 32, 36, 40
sW, sM, sJ = 44, 45, 46
sW1024, sM5, sKoff, sT, sH = 47, 48, 49, 50, 51
sM5D = 52
sTmp, sTmp2, sTmp3 = 53, 54, 55
sPoff = 56
sPF = 3
sEX = 58
sKA = 60
sXoff = 4
sTmp4 = 5
def srd(n): return f"s[{n}:{n+3}]"

vLane, vN, vQ = 1, 2, 3
vA, vAS = 4, 5
vB = [6, 7, 8, 9]
vO0, vO1, vO5 = 10, 11, 12
vXA = 13
vPF1, vPF2, vPFX = 14, 15, 16
vDum = 17
vD0, vD5, vA2, vP0 = 18, 19, 20, 21
vK0 = 24
TMP = 40
FR0 = 56; NFR = 6
BFR = [80, 96]
ACC = 112
def vr(a, n=4): return f"v[{a}:{a+n-1}]"
def accb(P): return ACC + 72 * P
def acc_own(P, a, ten, i): return accb(P) + 4 * ((a * 2 + ten) * 4 + i)
def acc_sh(P, ten): return accb(P) + 4 * (16 + ten)

class Gen:
    def __init__(self, stamps=False, **kw):
        self.p = Prog()
        self.stamps = stamps
        self.opt = dict(pf=True, nostore=False, stop=None, dump=None)
        self.opt.update(kw)
        self.uid = 0

    def stamp(self, idx):
        if self.stamps: self.p(f"s_memtime s[{86+2*idx}:{87+2*idx}]")
    def label(self, base):
        self.uid += 1; return f"L_{base}_{self.uid}"
    def build_srd(self, dst, ka_off, nbytes):
        k = sKA + ka_off // 4
        self.p(f"s_mov_b32 s{dst}, s{k}\ns_and_b32 s{dst+1}, s{k+1}, 0xffff\ns_mov_b32 s{dst+2}, {nbytes}\ns_mov_b32 s{dst+3}, 0x20000")
    def add_units(self, units):
        for u in units:
            if isinstance(u, list):
                for i in u: self.p.add(i)
            else: self.p.add(u)
    def I(self, text, tag=None):
        return [Inst(l, tag) for l in text.split("\n") if l.strip()]
    def nodef(self, text, tag):
        i = Inst(text, tag); i.defs = set(); return i

    PFD = 6
    def pf_tile(self, tile):
        if not self.opt["pf"] or tile > 26: return []
        if tile < 18:
            P, sg = divmod(tile, 9)
            return [Inst(f"s_mov_b32 s{sPF}, {sg * 64 * 9216 + P * 256}"),
                    self.nodef(f"buffer_load_dword v{vDum}, v{vPF1}, {srd(S_W5)}, s{sPF} offen", "pf")]
        return [Inst(f"s_mov_b32 s{sPF}, {(tile - 18) * 128}"),
                self.nodef(f"buffer_load_dword v{vDum}, v{vPF2}, {srd(S_WD)}, s{sPF} offen", "pf")]

    def dma_tile(self, tile):
        out = []
        base = (tile % 3) * SLOT
        tag = f"tile{tile}"
        if tile < 18:
            P, sg = divmod(tile, 9)
            koff = sg * 64 * 9216 + P * 288
            first = True
            for (srd_, vo, off) in ((S_WG, vO0, 0), (S_WG, vO1, 8192), (S_WU, vO0, 18432), (S_WU, vO1, 18432 + 8192)):
                u = []
                if first: u.append(Inst(f"s_mov_b32 s{sKoff}, {koff}")); first = False
                u.append(Inst(f"s_add_u32 m0, s{sW1024}, {base + off}"))
                u.append(Inst(f"buffer_load_dwordx4 v{vo}, {srd(srd_)}, s{sKoff} offen lds", tag=tag))
                out.append(u)
            out.append([Inst(f"s_add_u32 m0, s{sM5}, {base}"), Inst("s_mov_b32 exec_hi, 0"),
                        Inst(f"buffer_load_dwordx4 v{vO5}, {srd(S_W5)}, s{sKoff} offen lds", tag=tag),
                        Inst("s_mov_b32 exec_hi, -1")])
        else:
            c = tile - 18
            for a in range(4):
                out.append([Inst(f"s_mov_b32 s{sKoff}, {a * 73728 + c * 128}"),
                            Inst(f"s_add_u32 m0, s{sW1024}, {base + a * 8192}"),
                            Inst(f"buffer_load_dwordx4 v{vD0}, {srd(S_WD)}, s{sKoff} offen lds", tag=tag)])
            out.append([Inst(f"s_mov_b32 s{sKoff}, {c * 128}"),
                        Inst(f"s_add_u32 m0, s{sM5D}, {base}"), Inst("s_mov_b32 exec_hi, 0"),
                        Inst(f"buffer_load_dwordx4 v{vD5}, {srd(S_WD)}, s{sKoff} offen lds", tag=tag),
                        Inst("s_mov_b32 exec_hi, -1")])
        return out

    def dma_x(self, tile):
        sg = tile % 9
        base = L_X + (tile % 2) * 16384
        tag = f"x{tile}"
        out = []
        for k in range(2):
            out.append([Inst(f"s_mov_b32 s{sXoff}, {sg * 128 + k * 8 * 1152}"),
                        Inst(f"s_lshl_b32 s{sTmp4}, s{sW1024}, 1"),
                        Inst(f"s_add_u32 m0, s{sTmp4}, {base + k * 1024}"),
                        Inst(f"buffer_load_dwordx4 v{vXA}, {srd(S_X)}, s{sXoff} offen lds", tag=tag)])
        return out

    def prologue(self):
        p = self.p
        p("s_cmp_ge_u32 s2, 256\ns_cbranch_scc1 L_end")
        p(f"s_load_dwordx16 s[{sKA}:{sKA+15}], s[0:1], 0")
        p(f"s_load_dwordx8 s[{sKA+16}:{sKA+23}], s[0:1], 64")
        p(f"s_load_dwordx2 s[{sKA+24}:{sKA+25}], s[0:1], 96")
        p(f"v_lshrrev_b32 v40, 6, v0\nv_and_b32 v{vLane}, 63, v0")
        p(f"v_readfirstlane_b32 s{sW}, v40")
        p(f"v_and_b32 v{vN}, 15, v{vLane}\nv_lshrrev_b32 v{vQ}, 4, v{vLane}")
        p(f"s_and_b32 s{sJ}, s2, 3\ns_lshl_b32 s{sJ}, s{sJ}, 2\ns_bfe_u32 s{sTmp}, s2, 0x20003\ns_add_u32 s{sJ}, s{sJ}, s{sTmp}")
        p(f"s_bfe_u32 s{sM}, s2, 0x10002\ns_lshl_b32 s{sM}, s{sM}, 3\ns_lshr_b32 s{sTmp}, s2, 5\ns_add_u32 s{sM}, s{sM}, s{sTmp}")
        p(f"s_lshr_b32 s{sT}, s{sW}, 2\ns_and_b32 s{sH}, s{sW}, 3\ns_lshl_b32 s{sW1024}, s{sW}, 10")
        p("s_waitcnt lgkmcnt(0)")
        self.build_srd(S_X, 0, 2359296)
        self.build_srd(S_WG, 56, 5308416)
        self.build_srd(S_WU, 64, 5308416)
        self.build_srd(S_WD, 72, 5308416)
        self.build_srd(S_WS, 96, WS_SIZE)
        self.build_srd(S_OUT, 80, 2359296)
        self.build_srd(S_DBG, 88, 256)
        p(f"s_cmp_lt_u32 s{sW}, 4")
        for i in range(4): p(f"s_cselect_b32 s{S_W5+i}, s{S_WG+i}, s{S_WU+i}")
        p(f"v_mov_b32 v55, {OOB:#x}")
        p(f"s_lshl_b32 s{sTmp}, s{sM}, 7\ns_lshl_b32 s{sTmp2}, s{sW}, 4\ns_add_u32 s{sTmp}, s{sTmp}, s{sTmp2}")
        p(f"v_bfe_u32 v40, v{vLane}, 2, 3\nv_add_u32 v40, s{sTmp}, v40\nv_mul_u32_u24 v40, 1152, v40")
        p(f"v_lshrrev_b32 v41, 5, v{vLane}\nv_lshlrev_b32 v41, 6, v41\nv_add_u32 v40, v40, v41")
        p(f"v_bfe_u32 v41, v{vLane}, 4, 1\nv_mul_u32_u24 v41, 3, v41\nv_and_b32 v42, 3, v{vLane}\nv_xor_b32 v41, v41, v42\nv_lshlrev_b32 v41, 4, v41")
        p(f"v_add_u32 v{vXA}, v40, v41")
        def w_voff(dst, ireg):
            p(f"v_mul_u32_u24 v42, 3641, v{ireg}\nv_lshrrev_b32 v42, 16, v42")
            p(f"v_mul_u32_u24 v43, 18, v42\nv_sub_u32 v43, v{ireg}, v43\nv_lshlrev_b32 v43, 4, v43")
            p(f"v_and_b32 v44, 0x33, v42\nv_and_b32 v45, 4, v42\nv_lshlrev_b32 v45, 1, v45\nv_or_b32 v44, v44, v45")
            p(f"v_and_b32 v45, 8, v42\nv_lshrrev_b32 v45, 1, v45\nv_or_b32 v44, v44, v45")
            p(f"v_mul_u32_u24 v44, 9216, v44\nv_add_u32 v44, v44, v43\nv_add_u32 v{dst}, s{sTmp3}, v44")
        p(f"s_mul_i32 s{sTmp3}, s{sJ}, 576")
        p(f"s_lshl_b32 s{sTmp}, s{sW}, 6\nv_add_u32 v41, s{sTmp}, v{vLane}")
        w_voff(vO0, 41)
        p(f"v_add_u32 v41, 512, v41")
        w_voff(vO1, 41)
        p(f"s_bfe_u32 s{sTmp}, s{sW}, 0x10001\ns_add_u32 s{sTmp}, s{sTmp}, 16\ns_lshl_b32 s{sTmp}, s{sTmp}, 6")
        p(f"s_and_b32 s{sTmp2}, s{sW}, 1\ns_lshl_b32 s{sTmp2}, s{sTmp2}, 5\ns_add_u32 s{sTmp}, s{sTmp}, s{sTmp2}")
        p(f"v_add_u32 v41, s{sTmp}, v{vLane}")
        w_voff(vO5, 41)
        p(f"s_lshl_b32 s{sM5}, s{sTmp}, 4\ns_mul_i32 s{sTmp2}, s{sT}, 18432\ns_add_u32 s{sM5}, s{sM5}, s{sTmp2}")
        self.add_units(self.dma_x(0)); self.add_units(self.dma_tile(0))
        p(f"s_and_b32 s{sTmp}, s{sM}, 7")
        p(f"s_and_b32 s{sTmp2}, s{sJ}, 3\ns_mul_i32 s{sTmp2}, s{sTmp2}, 288\ns_mul_i32 s{sTmp3}, s{sW}, 36\ns_add_u32 s{sTmp2}, s{sTmp2}, s{sTmp3}")
        p(f"s_mul_i32 s{sTmp3}, s{sM}, 1152\ns_add_u32 s{sTmp2}, s{sTmp2}, s{sTmp3}")
        p(f"v_add_u32 v40, s{sTmp2}, v{vLane}\nv_lshlrev_b32 v40, 7, v40\nv_cmp_gt_u32 vcc, 36, v{vLane}\nv_cndmask_b32 v{vPFX}, v55, v40, vcc")
        p(f"s_lshl_b32 s{sTmp2}, s{sTmp}, 3\ns_and_b32 s{sTmp3}, s{sW}, 3\ns_lshl_b32 s{sTmp3}, s{sTmp3}, 1\ns_add_u32 s{sTmp2}, s{sTmp2}, s{sTmp3}")
        p(f"v_cmp_lt_u32 vcc, 2, v{vLane}\nv_cndmask_b32 v40, 0, 1, vcc\nv_mul_u32_u24 v41, 3, v40\nv_sub_u32 v41, v{vLane}, v41")
        p(f"v_add_u32 v40, s{sTmp2}, v40\nv_mul_u32_u24 v40, 9216, v40\nv_lshlrev_b32 v41, 7, v41\nv_add_u32 v40, v40, v41")
        p(f"s_mul_i32 s{sTmp3}, s{sJ}, 576\ns_and_b32 s{sTmp3}, s{sTmp3}, 0xffffff80\nv_add_u32 v40, s{sTmp3}, v40")
        p(f"v_cmp_gt_u32 vcc, 6, v{vLane}\nv_cndmask_b32 v{vPF1}, v55, v40, vcc")
        p(f"s_lshl_b32 s{sTmp2}, s{sTmp}, 3\ns_add_u32 s{sTmp2}, s{sTmp2}, s{sW}\ns_mul_i32 s{sTmp2}, s{sTmp2}, 5")
        p(f"v_add_u32 v40, s{sTmp2}, v{vLane}\ns_mul_i32 s{sTmp3}, s{sJ}, 288\nv_add_u32 v41, s{sTmp3}, v40\nv_mul_u32_u24 v41, 1152, v41")
        p(f"v_cmp_gt_u32 vcc, 5, v{vLane}\nv_cndmask_b32 v41, v55, v41, vcc\nv_cmp_gt_u32 vcc, 288, v40\nv_cndmask_b32 v{vPF2}, v55, v41, vcc")
        if self.opt["pf"]:
            p.add(self.nodef(f"buffer_load_dword v{vDum}, v{vPFX}, {srd(S_X)}, 0 offen", "pf"))
            for t in range(1, self.PFD):
                for i in self.pf_tile(t): p.add(i)
        self.add_units(self.dma_x(1)); self.add_units(self.dma_tile(1)); self.add_units(self.dma_tile(2))
        self.early_loads()
        p(f"v_bfe_u32 v40, v{vLane}, 2, 2\nv_lshrrev_b32 v41, 1, v{vQ}\nv_lshlrev_b32 v41, 4, v41\nv_and_b32 v42, 1, v{vQ}\nv_lshlrev_b32 v42, 2, v42")
        p(f"v_add_u32 v41, v41, v42\nv_add_u32 v41, v41, v40\nv_mul_u32_u24 v41, 288, v41")
        p(f"v_and_b32 v42, 3, v{vLane}\nv_lshlrev_b32 v42, 3, v42\nv_add_u32 v41, v41, v42")
        p(f"s_lshl_b32 s{sTmp}, s{sH}, 6\nv_add_u32 v{vA}, s{sTmp}, v41\nv_add_u32 v{vAS}, 256, v41")
        p(f"v_bfe_u32 v40, v{vN}, 2, 1\nv_mul_u32_u24 v40, 3, v40\nv_xor_b32 v40, v{vQ}, v40\nv_lshlrev_b32 v40, 4, v40")
        p(f"v_lshrrev_b32 v41, 3, v{vN}\nv_lshlrev_b32 v41, 10, v41\nv_and_b32 v42, 7, v{vN}\nv_lshlrev_b32 v42, 6, v42\nv_add_u32 v41, v41, v42\nv_add_u32 v40, v40, v41")
        p(f"s_lshl_b32 s{sTmp}, s{sT}, 13\ns_add_u32 s{sTmp}, s{sTmp}, {L_X}")
        for i in range(4):
            p(f"s_xor_b32 s{sTmp2}, s{sH}, {i}\ns_lshl_b32 s{sTmp2}, s{sTmp2}, 11\ns_add_u32 s{sTmp2}, s{sTmp2}, s{sTmp}\nv_add_u32 v{vB[i]}, s{sTmp2}, v40")
        p(f"s_mul_i32 s{sTmp}, s{sJ}, 288\ns_lshl_b32 s{sTmp2}, s{sW}, 3\ns_add_u32 s{sTmp}, s{sTmp}, s{sTmp2}")
        p(f"v_lshrrev_b32 v41, 3, v{vLane}\nv_add_u32 v42, s{sTmp}, v41\nv_mul_u32_u24 v42, 1152, v42")
        p(f"v_bfe_u32 v43, v{vLane}, 1, 2\nv_bfe_u32 v44, v{vLane}, 4, 1")
        p(f"s_and_b32 s{sTmp2}, s{sW}, 1\ns_lshl_b32 s{sTmp2}, s{sTmp2}, 1")
        p(f"v_or_b32 v45, s{sTmp2}, v44\nv_xor_b32 v45, v43, v45\nv_lshlrev_b32 v45, 5, v45")
        p(f"v_and_b32 v46, 1, v{vLane}\nv_lshlrev_b32 v46, 4, v46\nv_add_u32 v45, v45, v46\nv_add_u32 v{vD0}, v42, v45")
        p(f"s_lshr_b32 s{sTmp}, s{sW}, 1\ns_add_u32 s{sTmp}, s{sTmp}, 32")
        p(f"s_and_b32 s{sTmp2}, s{sW}, 1")
        p(f"s_lshl_b32 s{sM5D}, s{sTmp}, 10\ns_lshl_b32 s{sTmp3}, s{sTmp2}, 9\ns_add_u32 s{sM5D}, s{sM5D}, s{sTmp3}")
        p(f"s_lshl_b32 s{sTmp3}, s{sTmp}, 3\ns_lshl_b32 s{sTmp2}, s{sTmp2}, 2\ns_add_u32 s{sTmp3}, s{sTmp3}, s{sTmp2}")
        p(f"s_mul_i32 s{sTmp2}, s{sJ}, 288\ns_add_u32 s{sTmp3}, s{sTmp3}, s{sTmp2}")
        p(f"v_add_u32 v42, s{sTmp3}, v41\nv_mul_u32_u24 v42, 1152, v42")
        p(f"s_and_b32 s{sTmp}, s{sTmp}, 1\ns_lshl_b32 s{sTmp}, s{sTmp}, 1")
        p(f"v_or_b32 v45, s{sTmp}, v44\nv_xor_b32 v45, v43, v45\nv_lshlrev_b32 v45, 5, v45\nv_add_u32 v45, v45, v46\nv_add_u32 v{vD5}, v42, v45")
        p(f"v_bfe_u32 v40, v{vLane}, 2, 2\nv_lshlrev_b32 v41, 3, v{vQ}\nv_add_u32 v41, v41, v40\nv_lshlrev_b32 v41, 7, v41")
        p(f"v_lshrrev_b32 v42, 1, v40\nv_and_b32 v43, 1, v{vQ}\nv_lshlrev_b32 v43, 1, v43\nv_or_b32 v42, v42, v43")
        p(f"v_xor_b32 v42, s{sH}, v42\nv_lshlrev_b32 v42, 5, v42\nv_add_u32 v41, v41, v42")
        p(f"v_and_b32 v42, 3, v{vLane}\nv_lshlrev_b32 v42, 3, v42\nv_add_u32 v{vA2}, v41, v42")
        p(f"v_and_b32 v40, 1, v{vQ}\nv_lshlrev_b32 v40, 1, v40\nv_lshrrev_b32 v41, 3, v{vN}\nv_add_u32 v40, v40, v41")
        p(f"s_lshl_b32 s{sTmp}, s{sT}, 3\nv_add_u32 v40, s{sTmp}, v40\ns_mov_b32 s{sTmp2}, 147456\nv_mul_lo_u32 v40, v40, s{sTmp2}")
        p(f"v_lshrrev_b32 v41, 1, v{vQ}\nv_lshlrev_b32 v41, 7, v41\nv_and_b32 v42, 7, v{vN}\nv_lshlrev_b32 v42, 4, v42\nv_add_u32 v41, v41, v42")
        p(f"s_lshl_b32 s{sTmp}, s{sH}, 8\nv_add_u32 v41, s{sTmp}, v41\nv_add_u32 v{vP0}, v40, v41")
        p(f"s_mul_i32 s{sPoff}, s{sM}, {16*147456}\ns_lshl_b32 s{sTmp}, s{sJ}, 10\ns_add_u32 s{sPoff}, s{sPoff}, s{sTmp}\ns_add_u32 s{sPoff}, s{sPoff}, {WS_P}")
        self.early_compute()

    E_X, E_W, E_K, E_V, E_S = 184, 192, 228, 242, 250
    def early_loads(self):
        p = self.p
        p(f"s_lshl_b32 s{sTmp}, s{sM}, 7\ns_lshl_b32 s{sTmp2}, s{sJ}, 3\ns_add_u32 s{sTmp}, s{sTmp}, s{sTmp2}\ns_add_u32 s{sTmp}, s{sTmp}, s{sW}\ns_mul_i32 s{sTmp}, s{sTmp}, 1152")
        p(f"v_lshlrev_b32 v40, 4, v{vLane}\nv_add_u32 v41, 1024, v40\nv_cmp_gt_u32 vcc, 8, v{vLane}\nv_cndmask_b32 v41, v55, v41, vcc")
        p(f"buffer_load_dwordx4 v[184:187], v40, {srd(S_X)}, s{sTmp} offen", tag="e1")
        p(f"buffer_load_dwordx4 v[188:191], v41, {srd(S_X)}, s{sTmp} offen", tag="e1")
        p(f"v_cmp_gt_u32 vcc, 36, v{vLane}\nv_cndmask_b32 v42, v55, v40, vcc")
        p(f"s_mul_i32 s{sTmp}, s{sM}, 36\ns_add_u32 s{sTmp}, s{sTmp}, s{sH}\ns_mul_i32 s{sTmp}, s{sTmp}, 9216\ns_mul_i32 s{sTmp2}, s{sJ}, 576\ns_add_u32 s{sTmp}, s{sTmp}, s{sTmp2}")
        for a in range(9):
            p(f"buffer_load_dwordx4 {vr(192+4*a)}, v42, {srd(S_W5)}, s{sTmp} offen", tag="e2")
            if a < 8: p(f"s_add_u32 s{sTmp}, s{sTmp}, {4*9216}")
        K0, V0, SH0 = 228, 242, 112
        self.build_srd(S_T0, 8, 2359296)
        p(f"v_mul_u32_u24 v43, 7282, v0\nv_lshrrev_b32 v43, 16, v43")
        p(f"v_mul_u32_u24 v44, 9, v43\nv_sub_u32 v44, v0, v44")
        p(f"s_lshl_b32 s{sTmp}, s{sM}, 7\nv_lshlrev_b32 v45, 2, v43\nv_add_u32 v45, s{sTmp}, v45")
        p(f"s_mul_i32 s{sTmp2}, s{sJ}, 72\nv_lshlrev_b32 v46, 3, v44\nv_add_u32 v46, s{sTmp2}, v46")
        p(f"v_mul_u32_u24 v47, 1152, v45\nv_add_u32 v47, v47, v46")
        p(f"v_cmp_gt_u32 vcc, 288, v0\nv_cndmask_b32 v47, v55, v47, vcc")
        for r in range(7):
            d = (r - 3) * 1152
            if d < 0: p(f"v_subrev_u32 v48, {-d}, v47")
            else: p(f"v_add_u32 v48, {d}, v47")
            p(f"buffer_load_dwordx2 {vr(K0+2*r,2)}, v48, {srd(S_T0)}, 0 offen", tag="e3")
        self.build_srd(S_T0, 16, 2359296)
        for i in range(4):
            p(f"buffer_load_dwordx2 {vr(V0+2*i,2)}, v47, {srd(S_T0)}, 0 offen offset:{1152*i}", tag="e3")
        self.build_srd(S_T0, 24, 4608)
        p(f"s_mul_i32 s{sTmp2}, s{sJ}, 288\nv_lshlrev_b32 v48, 5, v44\nv_add_u32 v48, s{sTmp2}, v48\nv_cmp_gt_u32 vcc, 288, v0\nv_cndmask_b32 v48, v55, v48, vcc")
        p(f"buffer_load_dwordx4 v[250:253], v48, {srd(S_T0)}, 0 offen", tag="e3")
        p(f"buffer_load_dwordx4 v[120:123], v48, {srd(S_T0)}, 0 offen offset:16", tag="e3")
        p(f"v_mul_u32_u24 v53, {4*272}, v44\nv_lshlrev_b32 v48, 3, v43\nv_add_u32 v53, v53, v48\nv_add_u32 v53, {L_KVL}, v53")
        p(f"v_lshlrev_b32 v48, 3, v{vLane}\nv_add_u32 v48, {L_DUMMY}, v48\nv_cmp_gt_u32 vcc, 288, v0\nv_cndmask_b32 v53, v48, v53, vcc")
        p(f"v_mov_b32 v124, 0\nv_mov_b32 v125, 0\nv_mov_b32 v126, 0\nv_mov_b32 v127, 0")
        p(f"v_lshlrev_b32 v48, 4, v0\nv_add_u32 v48, {L_CSL}, v48\nv_lshlrev_b32 v49, 4, v{vLane}\nv_add_u32 v49, {L_DUMMY}, v49\nv_cmp_gt_u32 vcc, 144, v0\nv_cndmask_b32 v48, v49, v48, vcc")
        p(f"ds_write_b128 v48, v[124:127]")
        p(f"v_cmp_eq_u32 vcc, 0, v0\nv_cndmask_b32 v54, v55, v124, vcc")
        p(f"s_lshl_b32 s{sTmp}, s{sM}, 7\ns_lshl_b32 s{sTmp2}, s{sJ}, 2\ns_add_u32 s{sTmp}, s{sTmp}, s{sTmp2}\ns_add_u32 s{sTmp}, s{sTmp}, {WS_FLAG}")
        p(f"buffer_store_dword v124, v54, {srd(S_WS)}, s{sTmp} offen sc1", tag="est")
        p(f"buffer_store_dword v124, v54, {srd(S_WS)}, s{sTmp} offen offset:{FB - 0 if FB < 4096 else 0} sc1" if False else f"s_add_u32 s{sTmp}, s{sTmp}, {FB}")
        p(f"buffer_store_dword v124, v54, {srd(S_WS)}, s{sTmp} offen sc1", tag="est")
        p(f"s_lshl_b32 s{sTmp}, s2, 2\ns_add_u32 s{sTmp}, s{sTmp}, {WS_FLAG + ZF}")
        p(f"buffer_store_dword v124, v54, {srd(S_WS)}, s{sTmp} offen sc1", tag="est")

    def early_compute(self):
        p = self.p
        p(f"v_mov_b32 v40, 0x3f803f80\nv_mov_b32 v41, 0\nv_mov_b32 v42, 0")
        for r in range(8):
            p(f"v_dot2_f32_bf16 v41, v{184+r}, v40, v41\nv_dot2_f32_bf16 v42, v{184+r}, v{184+r}, v42")
        for reg in (41, 42):
            for d in ("quad_perm:[1,0,3,2]", "quad_perm:[2,3,0,1]", "row_half_mirror", "row_mirror"):
                p(f"v_add_f32_dpp v{reg}, v{reg}, v{reg} {d} row_mask:0xf bank_mask:0xf")
            for sw in ("v_permlane16_swap_b32", "v_permlane32_swap_b32"):
                p(f"v_mov_b32 v43, v{reg}\n{sw} v{reg}, v43\nv_add_f32 v{reg}, v{reg}, v43")
        p(f"v_mul_f32 v41, {f2u(1/576):#x}, v41\nv_mul_f32 v42, {f2u(1/576):#x}, v42")
        p("v_fma_f32 v42, -v41, v41, v42\nv_max_f32 v42, 0, v42")
        p("v_cvt_pk_bf16_f32 v43, v41, v42")
        p("v_lshlrev_b32 v41, 16, v43\nv_and_b32 v42, 0xffff0000, v43")
        p(f"v_add_f32 v42, {f2u(1e-5):#x}, v42")
        p("v_cvt_pk_bf16_f32 v42, v42, v42\nv_lshlrev_b32 v42, 16, v42\nv_sqrt_f32 v42, v42")
        p("v_cvt_pk_bf16_f32 v42, v42, v42\nv_lshlrev_b32 v42, 16, v42")
        p("v_rcp_f32 v43, v42")
        c1 = -2.0 * math.sqrt(2.0 / math.pi) * math.log2(math.e)
        p(f"v_sub_f32 v44, 0, v41\nv_mul_f32 v45, {f2u(c1):#x}, v43")
        p(f"v_mul_f32 v46, v43, v43\nv_mul_f32 v46, v46, v43\nv_mul_f32 v46, {f2u(c1*0.044715):#x}, v46\nv_mul_f32 v47, v42, v42")
        p(f"s_lshl_b32 s{sTmp}, s{sM}, 7\ns_lshl_b32 s{sTmp2}, s{sJ}, 3\ns_add_u32 s{sTmp}, s{sTmp}, s{sTmp2}\ns_add_u32 s{sTmp}, s{sTmp}, s{sW}\ns_lshl_b32 s{sTmp}, s{sTmp}, 4\ns_add_u32 s{sTmp}, s{sTmp}, {WS_ST}")
        p(f"v_cmp_eq_u32 vcc, 0, v{vLane}\nv_cndmask_b32 v48, v55, v{vLane}, vcc")
        p(f"buffer_store_dwordx4 v[44:47], v48, {srd(S_WS)}, s{sTmp} offen sc1", tag="est")
        for e in range(8): p(f"v_mov_b32 v{128+e}, 0")
        for a in range(9):
            for r in range(4):
                s = 192 + 4 * a + r
                p(f"v_lshlrev_b32 v40, 16, v{s}\nv_and_b32 v41, 0xffff0000, v{s}\nv_add_f32 v{128+2*r}, v{128+2*r}, v40\nv_add_f32 v{129+2*r}, v{129+2*r}, v41")
        p(f"s_mul_i32 s{sTmp}, s{sT}, 1152\ns_add_u32 s{sTmp}, s{sTmp}, {L_CSL}\nv_lshlrev_b32 v40, 5, v{vLane}\nv_add_u32 v40, s{sTmp}, v40")
        p(f"v_lshlrev_b32 v41, 2, v{vLane}\nv_add_u32 v41, {L_DUMMY}, v41\nv_cmp_gt_u32 vcc, 36, v{vLane}\nv_cndmask_b32 v40, v41, v40, vcc")
        p.waitlg(); p("s_barrier")
        for e in range(8):
            p(f"ds_add_f32 v40, v{128+e} offset:{4*e}" if True else "")
        K0, V0 = 228, 242
        W = [250, 251, 252, 253, 120, 121, 122, 123]
        for c in range(4):
            p(f"v_lshlrev_b32 v{136+4*c}, 16, v{W[2*c]}\nv_and_b32 v{137+4*c}, 0xffff0000, v{W[2*c]}")
            p(f"v_lshlrev_b32 v{138+4*c}, 16, v{W[2*c+1]}\nv_and_b32 v{139+4*c}, 0xffff0000, v{W[2*c+1]}")
        for r in range(7):
            p(f"v_lshlrev_b32 v{152+4*r}, 16, v{K0+2*r}\nv_and_b32 v{153+4*r}, 0xffff0000, v{K0+2*r}")
            p(f"v_lshlrev_b32 v{154+4*r}, 16, v{K0+2*r+1}\nv_and_b32 v{155+4*r}, 0xffff0000, v{K0+2*r+1}")
        for c in range(4):
            for i in range(4):
                d = 44 + i
                p(f"v_mul_f32 v{d}, v{152+4*(3+i)+c}, v{136+4*c}")
                for jj in range(1, 4):
                    p(f"v_fmac_f32 v{d}, v{152+4*(3+i-jj)+c}, v{136+4*c+jj}")
                src = V0 + 2 * i + (c >> 1)
                if c % 2 == 0: p(f"v_lshlrev_b32 v48, 16, v{src}")
                else: p(f"v_and_b32 v48, 0xffff0000, v{src}")
                p(f"v_mul_f32 v{d}, v{d}, v48")
            p(f"v_cvt_pk_bf16_f32 v50, v44, v45\nv_cvt_pk_bf16_f32 v51, v46, v47")
            p(f"ds_write_b64 v53, v[50:51] offset:{c*272}")
        p.waitlg(); p("s_barrier")
        for rnd in range(2):
            if rnd == 0: p(f"v_mov_b32 v40, v0")
            else: p(f"v_add_u32 v40, 512, v0")
            p(f"v_lshrrev_b32 v41, 4, v40\nv_and_b32 v42, 15, v40\nv_mul_u32_u24 v43, 272, v41\nv_lshlrev_b32 v42, 4, v42\nv_add_u32 v43, v43, v42\nv_add_u32 v43, {L_KVL}, v43")
            p(f"v_lshlrev_b32 v41, 12, v41\nv_add_u32 v41, v41, v42")
            if rnd == 1:
                p(f"v_lshlrev_b32 v44, 4, v{vLane}\nv_add_u32 v44, {L_DUMMY}, v44\nv_cmp_gt_u32 vcc, 576, v40\nv_cndmask_b32 v43, v44, v43, vcc\nv_cndmask_b32 v41, v55, v41, vcc")
            p(f"ds_read_b128 v[{44+4*rnd}:{47+4*rnd}], v43")
            p(f"s_mul_i32 s{sTmp}, s{sJ}, {36*4096}\ns_lshl_b32 s{sTmp2}, s{sM}, 8\ns_add_u32 s{sTmp}, s{sTmp}, s{sTmp2}\ns_add_u32 s{sTmp}, s{sTmp}, {WS_KVT}")
            p(f"buffer_store_dwordx4 v[{44+4*rnd}:{47+4*rnd}], v41, {srd(S_WS)}, s{sTmp} offen sc1", tag="est")
        p(f"v_lshlrev_b32 v40, 4, v0\nv_add_u32 v41, {L_CSL}, v40\nv_lshlrev_b32 v42, 4, v{vLane}\nv_add_u32 v42, {L_DUMMY}, v42\nv_cmp_gt_u32 vcc, 144, v0\nv_cndmask_b32 v41, v42, v41, vcc\nv_cndmask_b32 v40, v55, v40, vcc")
        p(f"ds_read_b128 v[124:127], v41")
        p(f"s_lshl_b32 s{sTmp}, s{sJ}, 4\ns_add_u32 s{sTmp}, s{sTmp}, s{sM}\ns_mul_i32 s{sTmp}, s{sTmp}, 2304\ns_add_u32 s{sTmp}, s{sTmp}, {WS_CSP}")
        p(f"buffer_store_dwordx4 v[124:127], v40, {srd(S_WS)}, s{sTmp} offen sc1", tag="est")

    def signal_all(self):
        return self.I(f"v_cmp_eq_u32 vcc, 0, v0\nv_mov_b32 v40, {OOB:#x}\nv_cndmask_b32 v40, v40, 0, vcc\nv_mov_b32 v41, 1") + \
               [Inst(f"buffer_atomic_add v41, v40, {srd(S_DBG)}, 0 offen", tag="atom")]

    def poll_issue(self, reg):
        return self.I(f"v_mov_b32 v{reg}, 0") + [Inst(f"buffer_load_dword v{reg}, v{reg}, {srd(S_DBG)}, 0 offen sc1", tag="poll")]
    def poll_check(self, reg, target, srd_, soff):
        L = self.label("spin"); D = self.label("spind")
        out = self.I(f"v_readfirstlane_b32 s{sTmp}, v{reg}\ns_cmp_eq_u32 s{sTmp}, {target}\ns_cbranch_scc1 {D}")
        out += self.I(f"s_mov_b32 s{sTmp2}, 0x20000")
        sp = [Inst(f"{L}:")]
        sp += self.I(f"s_sleep 8\nv_mov_b32 v{reg}, 0\nbuffer_load_dword v{reg}, v{reg}, {srd(srd_)}, {soff} offen sc1\ns_waitcnt vmcnt(0)\nv_readfirstlane_b32 s{sTmp}, v{reg}\ns_sub_u32 s{sTmp2}, s{sTmp2}, 1\ns_cmp_eq_u32 s{sTmp2}, 0\ns_cbranch_scc1 {D}\ns_cmp_lg_u32 s{sTmp}, {target}\ns_cbranch_scc1 {L}")
        for x in sp: x.opaque = True
        out += sp
        out += [Inst(f"{D}:")]
        return [out]

    def emit_step(self, mf, pre):
        p = self.p
        for i, m in enumerate(mf):
            for x in pre.get(i, []): p.add(x)
            p.add(m)
        for x in pre.get(len(mf), []): p.add(x)

    def slot_advance(self, regs, frm, to):
        d = ((to % 3) - (frm % 3)) * SLOT
        if d > 0: return [Inst(f"v_add_u32 v{r}, {d}, v{r}") for r in regs]
        return [Inst(f"v_subrev_u32 v{r}, {-d}, v{r}") for r in regs]

    G1_START = [0, 1, 2, 6, 10, 14, 18, 19, 20, 24, 28, 32]
    G1_READ  = [-6, -5, -4, -1, 3, 7, 10, 11, 13, 15, 17, 19]
    BARSLOT = 28
    def g1_frag_reads(self, st, fi):
        kk, f = divmod(fi, 6)
        buf = FR0 + 4 * ((st * 12 + fi) % NFR)
        if f < 2: base, off = vAS, f * 18432
        else:
            a = (f - 2) // 2; ten = (f - 2) % 2
            base, off = vA, ten * 18432 + a * 32
        off += kk * 9216
        return [Inst(f"ds_read_b64_tr_b16 {vr(buf,2)}, v{base} offset:{off}"),
                Inst(f"ds_read_b64_tr_b16 {vr(buf+2,2)}, v{base} offset:{off + 2304}")]
    def g1_b_reads(self, st, kk):
        return [Inst(f"ds_read_b128 {vr(BFR[kk] + 4*i)}, v{vB[i]} offset:{(st % 2) * 16384 + kk * 512}") for i in range(4)]
    def g1_mfmas(self, st):
        P, sg = divmod(st, 9)
        out = []
        for fi in range(12):
            kk, f = divmod(fi, 6)
            buf = FR0 + 4 * ((st * 12 + fi) % NFR)
            B = BFR[kk]
            if f < 2: lst = [(0, acc_sh(P, f))]
            else:
                a = (f - 2) // 2; ten = (f - 2) % 2
                lst = [(i, acc_own(P, a, ten, i)) for i in range(4)]
            for (i, acc) in lst:
                c = "0" if (sg == 0 and kk == 0) else vr(acc)
                out.append(Inst(f"v_mfma_f32_16x16x32_bf16 {vr(acc)}, {vr(buf)}, {vr(B + 4*i)}, {c}"))
        return out

    def gelu_pair(self, G, U, T, K, CG, CU):
        o = []
        for i in range(4): o.append(f"v_fma_f32 v{G+i}, v{CG+i}, v{K}, v{G+i}")
        for i in range(4): o.append(f"v_fma_f32 v{U+i}, v{CU+i}, v{K}, v{U+i}")
        for i in range(4): o.append(f"v_mul_f32 v{T+i}, v{G+i}, v{G+i}")
        for i in range(4): o.append(f"v_fma_f32 v{T+i}, v{T+i}, v{K+2}, v{K+1}")
        for i in range(4): o.append(f"v_mul_f32 v{T+i}, v{T+i}, v{G+i}")
        for i in range(4): o.append(f"v_exp_f32 v{T+i}, v{T+i}")
        for i in range(4): o.append(f"v_mul_f32 v{U+i}, v{G+i}, v{U+i}")
        for i in range(4): o.append(f"v_fma_f32 v{T+i}, v{T+i}, v{K+3}, v{K+3}")
        for i in range(4): o.append(f"v_rcp_f32 v{T+i}, v{T+i}")
        for i in range(4): o.append(f"v_mul_f32 v{U+i}, v{U+i}, v{T+i}")
        o.append(f"v_cvt_pk_bf16_f32 v{G}, v{U}, v{U+1}")
        o.append(f"v_cvt_pk_bf16_f32 v{G+1}, v{U+2}, v{U+3}")
        return [Inst(x) for x in o]

    vCSa, vCSs = 22, 23
    def gelu_stream(self, P):
        o = []
        CG, CU = 40, 44
        T = [48, 52]
        k = 0
        o += self.I(f"ds_read_b128 {vr(CG)}, v{self.vCSs} offset:{P*576}\nds_read_b128 {vr(CU)}, v{self.vCSs} offset:{1152 + P*576}")
        o += self.gelu_pair(acc_sh(P, 0), acc_sh(P, 1), T[k % 2], vK0, CG, CU); k += 1
        for a in range(2):
            o += self.I(f"ds_read_b128 {vr(CG)}, v{self.vCSa} offset:{P*576 + a*64}\nds_read_b128 {vr(CU)}, v{self.vCSa} offset:{1152 + P*576 + a*64}")
            for i in range(4):
                o += self.gelu_pair(acc_own(P, a, 0, i), acc_own(P, a, 1, i), T[k % 2], vK0 + 4 * i, CG, CU); k += 1
        return o

    def consts_fetch(self):
        ld = []
        ld += self.I(f"s_lshl_b32 s{sTmp}, s{sM}, 7\ns_lshl_b32 s{sTmp2}, s{sT}, 6\ns_add_u32 s{sTmp}, s{sTmp}, s{sTmp2}\ns_lshl_b32 s{sTmp}, s{sTmp}, 4\ns_add_u32 s{sTmp}, s{sTmp}, {WS_ST}")
        ld += self.I(f"v_lshlrev_b32 v40, 4, v{vN}")
        for i in range(4):
            ld += self.I(f"s_xor_b32 s{sTmp2}, s{sH}, {i}\ns_lshl_b32 s{sTmp2}, s{sTmp2}, 8\ns_add_u32 s{sTmp2}, s{sTmp2}, s{sTmp}")
            ld.append(Inst(f"buffer_load_dwordx4 {vr(vK0+4*i)}, v40, {srd(S_WS)}, s{sTmp2} offen sc1", tag="kc"))
        ld += self.I(f"v_lshlrev_b32 v41, 3, v0\nv_mov_b32 v42, {OOB:#x}\nv_cmp_gt_u32 vcc, 288, v0\nv_cndmask_b32 v41, v42, v41, vcc")
        ld += self.I(f"s_mul_i32 s{sTmp}, s{sJ}, {16*2304}\ns_add_u32 s{sTmp}, s{sTmp}, {WS_CSP}")
        for mm in range(16):
            ld.append(Inst(f"buffer_load_dwordx2 {vr(184+2*mm,2)}, v41, {srd(S_WS)}, s{sTmp} offen sc1", tag="cs"))
            if mm < 15: ld.append(Inst(f"s_add_u32 s{sTmp}, s{sTmp}, 2304"))
        sm = []
        for mm in range(1, 16):
            sm += self.I(f"v_add_f32 v184, v184, v{184+2*mm}\nv_add_f32 v185, v185, v{185+2*mm}")
        sm += self.I(f"v_lshlrev_b32 v41, 3, v0\nv_add_u32 v41, {L_CS}, v41\nv_lshlrev_b32 v42, 3, v{vLane}\nv_add_u32 v42, {L_DUMMY}, v42\nv_cmp_gt_u32 vcc, 288, v0\nv_cndmask_b32 v41, v42, v41, vcc")
        sm += self.I(f"ds_write_b64 v41, v[184:185]")
        sm += self.I(f"v_lshlrev_b32 v42, 4, v{vQ}\ns_lshl_b32 s{sTmp}, s{sH}, 7\ns_add_u32 s{sTmp}, s{sTmp}, {L_CS}\nv_add_u32 v{self.vCSa}, s{sTmp}, v42\nv_add_u32 v{self.vCSs}, {L_CS + 512}, v42")
        return ld, sm

    def g1(self):
        p = self.p
        p.waitvm("tile0"); p.waitvm("x0"); p.waitlg(); p("s_barrier")
        for i in self.g1_b_reads(0, 0): p.add(i)
        for fi in range(4):
            for i in self.g1_frag_reads(0, fi): p.add(i)
        self.stamp(1)
        gA = self.gelu_stream(0)
        gpos = 0
        carry = []
        for st in range(18):
            pre = {}
            def put(slot, insts): pre.setdefault(slot, []).extend(insts)
            def spread(insts, lo, hi):
                n = len(insts)
                for k, x in enumerate(insts): put(lo + (k * (hi - lo + 1)) // n, x if isinstance(x, list) else [x])
            for fi in range(4, 12): put(self.G1_READ[fi], self.g1_frag_reads(st, fi))
            br = self.g1_b_reads(st, 1); put(8, br[:2]); put(9, br[2:])
            if carry: spread(carry, 1, 26); carry = []
            if st == 2:
                w = Inst("WAITVM"); w.tag = "est"; put(27, [w])
            if st == 3: spread(self.signal_all(), 2, 8)
            if st == 6: put(2, self.poll_issue(54))
            if st == 7:
                put(2, self.poll_check(54, 256, S_DBG, 0)[0])
                ld, sm = self.consts_fetch(); self._sm = sm
                spread(ld, 3, 26)
            if st == 8: spread(self._sm, 1, 26)
            if st >= 9:
                n = (len(gA) - gpos + (17 - st)) // (18 - st)
                spread(gA[gpos:gpos + n], 0, 35); gpos += n
            w = [Inst("WAITLG")]
            if st + 1 < 18:
                wv = Inst("WAITVM"); wv.tag = f"tile{st+1}"; w.append(wv)
                wv = Inst("WAITVM"); wv.tag = f"x{st+1}"; w.append(wv)
            w.append(Inst("s_barrier"))
            put(self.BARSLOT, w)
            if st + 1 < 18:
                put(self.BARSLOT, self.slot_advance([vAS, vA], st, st + 1))
                br = self.g1_b_reads(st + 1, 0)
                put(29, br[:2]); put(30, br[2:])
                for fi in range(4): put(36 + self.G1_READ[fi], self.g1_frag_reads(st + 1, fi))
            vm = []
            if st + 2 < 18: vm += self.dma_x(st + 2)
            if st + 3 < 20: vm += self.dma_tile(st + 3)
            pfl = self.pf_tile(st + self.PFD)
            if pfl: vm.append(pfl)
            if vm:
                spread(vm[:2], 29, 35); carry = vm[2:]
            self.emit_step(self.g1_mfmas(st), pre)
        self.add_units(carry)

    def gelu_tail(self):
        p = self.p
        for i in self.gelu_stream(1): p.add(i)
        HW = [56, 57, 58, 59]
        p(f"v_bfe_u32 v40, v{vN}, 2, 1\nv_mul_u32_u24 v40, 3, v40")
        p(f"s_lshl_b32 s{sTmp}, s{sT}, 6\nv_add_u32 v41, s{sTmp}, v{vN}\nv_mul_u32_u24 v41, 576, v41")
        p(f"v_xor_b32 v42, v{vQ}, v40\nv_lshlrev_b32 v42, 4, v42\nv_add_u32 v60, v41, v42\nv_add_u32 v60, {L_H}, v60")
        p(f"v_and_b32 v42, 1, v{vQ}\nv_lshlrev_b32 v42, 3, v42\nv_add_u32 v41, v41, v42\nv_add_u32 v41, {L_H}, v41")
        p(f"v_lshrrev_b32 v42, 1, v{vQ}")
        p(f"v_xor_b32 v43, v42, v40\nv_lshlrev_b32 v43, 4, v43\nv_add_u32 v43, v41, v43")
        p(f"v_add_u32 v44, 2, v42\nv_xor_b32 v44, v44, v40\nv_lshlrev_b32 v44, 4, v44\nv_add_u32 v44, v41, v44")
        for i in range(4):
            p(f"s_xor_b32 s{sTmp}, s{sH}, {i}\ns_mul_i32 s{sTmp}, s{sTmp}, 9216\ns_lshl_b32 s{sTmp2}, s{sH}, 6\ns_add_u32 s{sTmp}, s{sTmp}, s{sTmp2}")
            p(f"v_add_u32 v{64+i}, s{sTmp}, v43\nv_add_u32 v{68+i}, s{sTmp}, v44")
        p(f"s_mul_i32 s{sTmp}, s{sH}, 9216\nv_add_u32 v72, s{sTmp}, v43\nv_add_u32 v73, s{sTmp}, v44")
        for P in range(2):
            if P == 0: p(f"ds_write_b64 v72, {vr(acc_sh(0,0),2)} offset:256")
            else: p(f"ds_write_b64 v73, {vr(acc_sh(1,0),2)} offset:512")
            for a in range(2):
                for i in range(4):
                    ft_par = (9 * P + a) % 2
                    up = ((9 * P + a) >> 1)
                    base = (64 if ft_par == 0 else 68) + i
                    p(f"ds_write_b64 v{base}, {vr(acc_own(P,a,0,i),2)} offset:{64*up}")
        p.waitlg(); p("s_barrier")
        for s in range(9):
            for tt in range(4):
                p(f"ds_read_b128 {vr(ACC + 4*(tt*9+s))}, v60 offset:{tt * 9216 + s * 64}")

    G2_READ = [-6, -2, 2, 6, 10, 13, 16, 18, 20]
    def g2_frag_reads(self, c, s):
        buf = FR0 + 4 * ((c * 9 + s) % NFR)
        return [Inst(f"ds_read_b64_tr_b16 {vr(buf,2)}, v{vA2} offset:{s * 4096}"),
                Inst(f"ds_read_b64_tr_b16 {vr(buf+2,2)}, v{vA2} offset:{s * 4096 + 512}")]
    def g2_mfmas(self, c):
        out = []
        A2 = BFR[c % 2]
        for s in range(9):
            buf = FR0 + 4 * ((c * 9 + s) % NFR)
            for tt in range(4):
                acc = A2 + 4 * tt
                cc = "0" if s == 0 else vr(acc)
                out.append(Inst(f"v_mfma_f32_16x16x32_bf16 {vr(acc)}, {vr(buf)}, {vr(ACC + 4*(tt*9+s))}, {cc}"))
        return out
    def g2_epilogue(self, c):
        A2 = BFR[c % 2]; T = TMP
        o = []
        for tt in range(4):
            o.append(Inst(f"v_cvt_pk_bf16_f32 v{T+2*tt}, v{A2+4*tt}, v{A2+4*tt+1}"))
            o.append(Inst(f"v_cvt_pk_bf16_f32 v{T+2*tt+1}, v{A2+4*tt+2}, v{A2+4*tt+3}"))
        for pr in range(2):
            o.append(Inst(f"v_permlane16_swap_b32 v{T+4*pr}, v{T+4*pr+2}"))
            o.append(Inst(f"v_permlane16_swap_b32 v{T+4*pr+1}, v{T+4*pr+3}"))
        for pr in range(2):
            o.append(Inst(f"s_add_u32 s{sTmp}, s{sPoff}, {c * 16384 + pr * 4 * 147456}"))
            if not self.opt["nostore"]:
                o.append(Inst(f"buffer_store_dwordx4 {vr(T+4*pr)}, v{vP0}, {srd(S_WS)}, s{sTmp} offen sc1", tag=f"pst{c}"))
        return o
    def set_flag(self, off_expr_insts, tag):
        return self.I(off_expr_insts) + self.I(f"v_cmp_eq_u32 vcc, 0, v0\nv_mov_b32 v50, {OOB:#x}\nv_cndmask_b32 v50, v50, 0, vcc\nv_mov_b32 v51, 1") + \
               [Inst(f"buffer_store_dword v51, v50, {srd(S_WS)}, s{sTmp2} offen sc1", tag=tag)]
    def flag_addr(self, which):
        return f"s_lshl_b32 s{sTmp2}, s{sM}, 7\ns_lshl_b32 s{sTmp3}, s{sJ}, 2\ns_add_u32 s{sTmp2}, s{sTmp2}, s{sTmp3}\ns_add_u32 s{sTmp2}, s{sTmp2}, {WS_FLAG + which}"

    def g2(self):
        p = self.p
        p.waitlg(); p.waitvm("tile18"); p("s_barrier")
        self.add_units(self.dma_tile(20))
        p.add(Inst(f"v_mov_b32 v{vA2}, v{vA2}"))
        for s in range(2):
            for i in self.g2_frag_reads(0, s): p.add(i)
        self.stamp(3)
        carry = []
        for c in range(9):
            T = 18 + c
            pre = {}
            def put(slot, insts): pre.setdefault(slot, []).extend(insts)
            def spread(insts, lo, hi):
                n = len(insts)
                for k, x in enumerate(insts): put(lo + (k * (hi - lo + 1)) // n, x if isinstance(x, list) else [x])
            for s in range(2, 9): put(self.G2_READ[s], self.g2_frag_reads(c, s))
            if c > 0: spread(self.g2_epilogue(c - 1), 3, 20)
            if carry: spread(carry, 1, 26); carry = []
            if c == 8:
                put(1, self.set_flag(self.flag_addr(FA), "fa"))
            w = [Inst("WAITLG")]
            if c + 1 < 9:
                wv = Inst("WAITVM"); wv.tag = f"tile{T+1}"; w.append(wv)
                if c == 7:
                    wv = Inst("WAITVM"); wv.tag = "pst5"; w.append(wv)
                w.append(Inst("s_barrier"))
                put(self.BARSLOT, w)
                put(self.BARSLOT, self.slot_advance([vA2], T, T + 1))
                put(30, self.g2_frag_reads(c + 1, 0)); put(34, self.g2_frag_reads(c + 1, 1))
                vm = []
                if c + 3 < 9: vm += self.dma_tile(T + 3)
                pfl = self.pf_tile(T + self.PFD)
                if pfl: vm.append(pfl)
                if vm: spread(vm[:1], 30, 35); carry = vm[1:]
            self.emit_step(self.g2_mfmas(c), pre)
        for i in self.g2_epilogue(8): p.add(i)
        p.drain(); p("s_barrier")
        for i in self.set_flag(self.flag_addr(FB), "fb"): p.add(i)

    def conv(self):
        p = self.p
        p("s_cmp_ge_u32 s2, 192\ns_cbranch_scc1 L_noconv")
        p(f"s_mul_i32 s{sTmp}, s2, {3*4096}\ns_add_u32 s{sTmp}, s{sTmp}, {WS_KVT}")
        p(f"v_lshlrev_b32 v40, 4, v0\nv_add_u32 v41, 8192, v40\nv_mov_b32 v55, {OOB:#x}\nv_cmp_gt_u32 vcc, 256, v0\nv_cndmask_b32 v41, v55, v41, vcc")
        p(f"buffer_load_dwordx4 v[44:47], v40, {srd(S_WS)}, s{sTmp} offen sc1\nbuffer_load_dwordx4 v[48:51], v41, {srd(S_WS)}, s{sTmp} offen sc1")
        p(f"v_and_b32 v42, 255, v0\nv_lshlrev_b32 v42, 4, v42\nv_subrev_u32 v43, 16, v42")
        k = sKA + 32 // 4
        def h_srd(ch_expr):
            p(ch_expr)
            p(f"s_lshl_b32 s{sTmp}, s{sTmp}, 12\ns_add_u32 s{S_T0}, s{k}, s{sTmp}\ns_addc_u32 s{S_T0+1}, s{k+1}, 0\ns_and_b32 s{S_T0+1}, s{S_T0+1}, 0xffff\ns_mov_b32 s{S_T0+2}, 4096\ns_mov_b32 s{S_T0+3}, 0x20000")
        h_srd(f"s_mul_i32 s{sTmp}, s2, 3\ns_add_u32 s{sTmp}, s{sTmp}, s{sT}")
        p(f"buffer_load_dwordx4 v[112:115], v43, {srd(S_T0)}, 0 offen\nbuffer_load_dwordx4 v[116:119], v42, {srd(S_T0)}, 0 offen")
        h_srd(f"s_mul_i32 s{sTmp}, s2, 3\ns_add_u32 s{sTmp}, s{sTmp}, 2")
        p(f"buffer_load_dwordx4 v[120:123], v43, {srd(S_T0)}, 0 offen\nbuffer_load_dwordx4 v[124:127], v42, {srd(S_T0)}, 0 offen")
        self.build_srd(S_T0, 40, 1152)
        p(f"s_mul_i32 s{sTmp}, s2, 6\nv_mov_b32 v39, 0")
        for c in range(3):
            p(f"buffer_load_ushort v{52+c}, v39, {srd(S_T0)}, s{sTmp} offen offset:{2*c}")
        p(f"v_mov_b32 v60, 0\nv_mov_b32 v61, 0\nv_mov_b32 v62, 0\nv_mov_b32 v63, 0")
        DUM = C_ZL + 9216
        p(f"v_lshrrev_b32 v56, 5, v0\nv_mul_u32_u24 v56, 4608, v56\nv_and_b32 v57, 31, v0\nv_lshlrev_b32 v57, 4, v57\nv_add_u32 v56, v56, v57\nv_add_u32 v56, {C_KP}, v56")
        p(f"v_lshlrev_b32 v58, 4, v{vLane}\nv_add_u32 v58, {DUM}, v58\nv_cmp_gt_u32 vcc, 96, v0\nv_cndmask_b32 v56, v58, v56, vcc\nds_write_b128 v56, v[60:63]")
        p(f"v_mul_u32_u24 v56, 4160, v0\nv_add_u32 v56, {16*258}, v56\nv_cmp_gt_u32 vcc, 16, v0\nv_cndmask_b32 v56, v58, v56, vcc\nds_write_b128 v56, v[60:63]")
        p(f"v_lshrrev_b32 v56, 8, v0\nv_lshlrev_b32 v56, 9, v56\nv_add_u32 v56, v56, v40\nv_add_u32 v56, {C_KP + 512}, v56\nds_write_b128 v56, v[44:47]")
        p(f"v_add_u32 v56, {C_KP + 512 + 8192 + 1024}, v40\nv_cmp_gt_u32 vcc, 256, v0\nv_cndmask_b32 v56, v58, v56, vcc\nds_write_b128 v56, v[48:51]")
        p(f"v_mov_b32 v59, 0xffff")
        def build(S, dstbase_reg):
            WE, WO, VE, VO = 64, 70, 76, 82
            for i in range(6):
                p(f"v_alignbit_b32 v{WE+i}, v{S+7-i}, v{S+7-i}, 16")
                p(f"v_alignbit_b32 v{WO+i}, v{S+6-i}, v{S+6-i}, 16")
                p(f"v_bfi_b32 v{VE+i}, v59, v{S+7-i}, v{S+6-i}")
                p(f"v_bfi_b32 v{VO+i}, v59, v{S+6-i}, v{S+5-i}")
            for sg, r in ((0, WE), (4, WE+2), (2, WO), (6, WO+2), (1, VE), (5, VE+2), (3, VO), (7, VO+2)):
                p(f"ds_write_b128 v{dstbase_reg}, {vr(r)} offset:{sg*4160}")
        p(f"s_mul_i32 s{sTmp}, s{sT}, 33280\ns_add_u32 s{sTmp}, s{sTmp}, {16*257}\nv_sub_u32 v57, s{sTmp}, v42")
        build(112, 57)
        p(f"v_and_b32 v40, 7, v{vN}\nv_sub_u32 v40, 7, v40\nv_mul_u32_u24 v40, 4160, v40\nv_lshrrev_b32 v41, 3, v{vN}\nv_sub_u32 v41, v{vQ}, v41\nv_add_u32 v41, 255, v41\nv_lshlrev_b32 v41, 4, v41\nv_add_u32 v40, v40, v41")
        p(f"s_lshl_b32 s{sTmp}, s{sW}, 6\ns_add_u32 s{sTmp}, s{sTmp}, 3584\nv_subrev_u32 v44, s{sTmp}, v40")
        p(f"v_lshlrev_b32 v40, 5, v{vN}\nv_lshlrev_b32 v41, 4, v{vQ}\nv_add_u32 v40, v40, v41\nv_add_u32 v40, {480 + C_KP}, v40\ns_lshl_b32 s{sTmp}, s{sW}, 6\nv_subrev_u32 v45, s{sTmp}, v40")
        p(f"v_lshlrev_b32 v46, 4, v{vLane}\nv_add_u32 v46, s{sW1024}, v46\nv_add_u32 v46, {C_YR}, v46")
        p(f"v_lshlrev_b32 v47, 4, v{vLane}\ns_lshl_b32 s{sTmp}, s{sW}, 13\ns_add_u32 s{sTmp}, s{sTmp}, {C_YR}\nv_add_u32 v47, s{sTmp}, v47")
        p(f"v_lshlrev_b32 v48, 5, v{vN}\nv_lshlrev_b32 v49, 3, v{vQ}\nv_add_u32 v48, v48, v49\ns_lshl_b32 s{sTmp}, s{sW}, 9\nv_add_u32 v48, s{sTmp}, v48")
        p(f"v_add_u32 v49, {C_KP + 512}, v48")
        TF, BF, Y = 128, 160, 192
        def mfma_ch(c, tc):
            for i in range(8):
                p(f"ds_read_b128 {vr(TF+4*i)}, v44 offset:{tc + 512*(7-i)}")
                p(f"ds_read_b128 {vr(BF+4*i)}, v45 offset:{c*4608 + 512*i}")
            first = set()
            pairs = sorted([(i, g - i, g) for g in range(8) for i in range(g + 1)], key=lambda t: (max(t[0], t[1]), t[2]))
            for (i, m, g) in pairs:
                cc = "0" if g not in first else vr(Y+4*g); first.add(g)
                p(f"v_mfma_f32_16x16x32_bf16 {vr(Y+4*g)}, {vr(TF+4*i)}, {vr(BF+4*m)}, {cc}")
            for g in range(8):
                p(f"ds_write_b128 v46, {vr(Y+4*g)} offset:{g*8192}")
        def reduce_ch(c):
            for r in range(8):
                p(f"ds_read_b128 {vr(TF+4*r)}, v47 offset:{r*1024}")
            p(f"ds_read_b64 v[50:51], v49 offset:{c*4608}")
            for r in range(1, 8):
                for e in range(4): p(f"v_add_f32 v{TF+e}, v{TF+e}, v{TF+4*r+e}")
            p(f"v_lshlrev_b32 v56, 16, v{52+c}")
            p(f"v_lshlrev_b32 v60, 16, v50\nv_and_b32 v61, 0xffff0000, v50\nv_lshlrev_b32 v62, 16, v51\nv_and_b32 v63, 0xffff0000, v51")
            for e in range(4): p(f"v_fmac_f32 v{TF+e}, v{60+e}, v56")
            p(f"v_cvt_pk_bf16_f32 v60, v{TF}, v{TF+1}\nv_cvt_pk_bf16_f32 v61, v{TF+2}, v{TF+3}")
            p(f"s_mul_i32 s{sTmp}, s2, {3*4096}\ns_add_u32 s{sTmp}, s{sTmp}, {WS_ZT + c*4096}")
            p(f"buffer_store_dwordx2 v[60:61], v48, {srd(S_WS)}, s{sTmp} offen sc1", tag="zst")
        p.waitlg(); p("s_barrier")
        mfma_ch(0, C_TCA); p.waitlg(); p("s_barrier")
        reduce_ch(0)
        p(f"s_mov_b32 s{sTmp}, {16*257}\nv_sub_u32 v57, s{sTmp}, v42")
        build(120, 57)
        p.waitlg(); p("s_barrier")
        mfma_ch(1, C_TCB); p.waitlg(); p("s_barrier")
        reduce_ch(1); p.waitlg(); p("s_barrier")
        mfma_ch(2, C_TCA); p.waitlg(); p("s_barrier")
        reduce_ch(2)
        p.drain(); p("s_barrier")
        for i in self.set_flag(f"s_lshl_b32 s{sTmp2}, s2, 2\ns_add_u32 s{sTmp2}, s{sTmp2}, {WS_FLAG + ZF}", "zf"): p.add(i)
        p.drain()
        p("L_noconv:")

    def spin_flags(self, voff_reg, nlanes_desc, soff_sreg, val_regs):
        p = self.p
        L = self.label("fl"); D = self.label("fld")
        p(f"s_mov_b32 s{sTmp2}, 0x20000")
        p(f"{L}:")
        for (vo, r) in zip(voff_reg, val_regs):
            p(f"buffer_load_dword v{r}, v{vo}, {srd(S_WS)}, s{soff_sreg} offen sc1")
        p("s_waitcnt vmcnt(0)")
        p(f"v_mov_b32 v39, v{val_regs[0]}")
        for r in val_regs[1:]: p(f"v_and_b32 v39, v39, v{r}")
        p(f"v_cmp_ne_u32 vcc, 1, v39\ns_nop 4\ns_sub_u32 s{sTmp2}, s{sTmp2}, 1\ns_cmp_eq_u32 s{sTmp2}, 0\ns_cbranch_scc1 {D}")
        p(f"s_cmp_eq_u64 vcc, 0\ns_cbranch_scc1 {D}\ns_sleep 4\ns_branch {L}")
        p(f"{D}:")

    def final(self):
        p = self.p
        p.drain(); p("s_barrier")
        p(f"v_lshlrev_b32 v40, 2, v{vN}\ns_lshl_b32 s{sTmp}, s{sM}, 7\ns_add_u32 s{sTmp}, s{sTmp}, {WS_FLAG + FB}")
        self.spin_flags([40], None, sTmp, [41])
        p(f"s_lshl_b32 s{sTmp}, s{sM}, 4\ns_add_u32 s{sTmp}, s{sTmp}, s{sJ}\ns_mul_i32 s{sTmp}, s{sTmp}, 147456\ns_add_u32 s{sTmp}, s{sTmp}, {WS_P}")
        p(f"s_lshl_b32 s{sTmp2}, s{sW}, 14\ns_add_u32 s{sTmp2}, s{sTmp2}, s{sTmp}")
        p(f"v_lshlrev_b32 v40, 4, v{vLane}")
        for b in range(16):
            if b % 4 == 0 and b > 0: p(f"s_add_u32 s{sTmp2}, s{sTmp2}, 4096")
            p(f"buffer_load_dwordx4 {vr(112+4*b)}, v40, {srd(S_WS)}, s{sTmp2} offen offset:{(b%4)*1024} sc1")
        p(f"s_lshl_b32 s{sTmp2}, s{sW}, 11\ns_add_u32 s{sTmp2}, s{sTmp2}, s{sTmp}\ns_add_u32 s{sTmp2}, s{sTmp2}, {8*16384}")
        for b in range(2):
            p(f"buffer_load_dwordx4 {vr(176+4*b)}, v40, {srd(S_WS)}, s{sTmp2} offen offset:{b*1024} sc1")
        p(f"s_lshl_b32 s{sTmp}, s{sM}, 7\ns_lshl_b32 s{sTmp2}, s{sJ}, 3\ns_add_u32 s{sTmp}, s{sTmp}, s{sTmp2}")
        p(f"v_and_b32 v41, 7, v{vLane}\nv_add_u32 v41, s{sTmp}, v41")
        p(f"v_mul_u32_u24 v42, 1152, v41\nv_lshrrev_b32 v43, 3, v{vLane}\nv_lshlrev_b32 v43, 4, v43\nv_add_u32 v42, v42, v43")
        p(f"s_lshl_b32 s{sTmp2}, s{sW}, 7")
        p(f"buffer_load_dwordx4 v[184:187], v42, {srd(S_X)}, s{sTmp2} offen")
        p(f"buffer_load_dwordx4 v[188:191], v42, {srd(S_X)}, 0 offen offset:1024")
        p(f"v_lshlrev_b32 v43, 4, v41\ns_mov_b32 s{sTmp3}, {WS_ST}")
        p(f"buffer_load_dwordx4 v[192:195], v43, {srd(S_WS)}, s{sTmp3} offen sc1")
        p(f"v_mov_b32 v44, 0x3f80\nv_mov_b32 v45, 0x3f800000")
        for e in range(8): p(f"v_mov_b32 v{200+e}, 0\nv_mov_b32 v{208+e}, 0")
        for b in range(16):
            for r in range(4):
                p(f"v_dot2_f32_bf16 v{200+2*r}, v{112+4*b+r}, v44, v{200+2*r}\nv_dot2_f32_bf16 v{201+2*r}, v{112+4*b+r}, v45, v{201+2*r}")
        for b in range(2):
            for r in range(4):
                p(f"v_dot2_f32_bf16 v{208+2*r}, v{176+4*b+r}, v44, v{208+2*r}\nv_dot2_f32_bf16 v{209+2*r}, v{176+4*b+r}, v45, v{209+2*r}")
        p(f"v_lshlrev_b32 v46, 5, v{vLane}\ns_lshl_b32 s{sTmp2}, s{sW}, 11\nv_add_u32 v46, s{sTmp2}, v46\nv_add_u32 v46, {C_C8}, v46")
        p(f"ds_write_b128 v46, v[208:211]\nds_write_b128 v46, v[212:215] offset:16")
        p(f"v_lshlrev_b32 v47, 2, v{vLane}\nv_add_u32 v48, 256, v47\nv_add_u32 v49, 512, v47\ns_mov_b32 s{sTmp}, {WS_FLAG + ZF}")
        p.drain()
        self.spin_flags([47, 48, 49], None, sTmp, [50, 51, 52])
        self.stamp(6)
        p(f"s_lshl_b32 s{sTmp}, s{sM}, 7\ns_lshl_b32 s{sTmp2}, s{sJ}, 3\ns_add_u32 s{sTmp}, s{sTmp}, s{sTmp2}\ns_lshl_b32 s{sTmp}, s{sTmp}, 1\ns_add_u32 s{sTmp}, s{sTmp}, {WS_ZT}")
        p(f"v_lshlrev_b32 v47, 12, v{vLane}\ns_lshl_b32 s{sTmp2}, s{sW}, 18\ns_add_u32 s{sTmp2}, s{sTmp2}, s{sTmp}\ns_add_u32 s{sTmp3}, s{sTmp}, {512*4096}")
        p(f"buffer_load_dwordx4 v[216:219], v47, {srd(S_WS)}, s{sTmp2} offen sc1\nbuffer_load_dwordx4 v[220:223], v47, {srd(S_WS)}, s{sTmp3} offen sc1")
        p(f"v_lshlrev_b32 v48, 4, v{vLane}\nv_add_u32 v48, s{sW1024}, v48\nv_add_u32 v48, {C_ZL}, v48")
        p(f"ds_write_b128 v48, v[216:219]")
        DZ = C_ZL + 8192
        p(f"v_lshlrev_b32 v49, 4, v{vLane}\nv_add_u32 v49, {DZ}, v49\nds_write_b128 v49, v[220:223]")
        p.waitlg(); p("s_barrier")
        p(f"v_bfe_u32 v50, v{vLane}, 2, 2\nv_lshlrev_b32 v51, 4, v{vQ}\nv_add_u32 v50, v50, v51\nv_bfe_u32 v51, v{vLane}, 1, 1\nv_lshlrev_b32 v51, 3, v51\nv_add_u32 v50, v50, v51\nv_lshlrev_b32 v50, 4, v50")
        p(f"v_and_b32 v51, 1, v{vLane}\nv_lshlrev_b32 v51, 3, v51\nv_add_u32 v50, v50, v51")
        p(f"v_add_u32 v51, s{sW1024}, v50\nv_add_u32 v51, {C_ZL}, v51\nv_add_u32 v52, {DZ}, v50")
        p(f"ds_read_b64_tr_b16 v[216:217], v51\nds_read_b64_tr_b16 v[218:219], v51 offset:64")
        p(f"ds_read_b64_tr_b16 v[220:221], v52\nds_read_b64_tr_b16 v[222:223], v52 offset:64")
        p(f"v_lshlrev_b32 v46, 5, v{vLane}\nv_add_u32 v46, {C_C8}, v46")
        for wv in range(8):
            p(f"ds_read_b128 {vr(112+8*wv)}, v46 offset:{wv*2048}\nds_read_b128 {vr(116+8*wv)}, v46 offset:{wv*2048+16}")
        for wv in range(1, 8):
            for e in range(8): p(f"v_add_f32 v{112+e}, v{112+e}, v{112+8*wv+e}")
        c1 = -2.0 * math.sqrt(2.0 / math.pi) * math.log2(math.e)
        p(f"v_mul_f32 v53, {f2u(1/c1):#x}, v193\nv_mul_f32 v54, v192, v53")
        def fin(X, Z, S, dst):
            for r in range(4):
                p(f"v_lshlrev_b32 v56, 16, v{X+r}\nv_and_b32 v57, 0xffff0000, v{X+r}")
                p(f"v_fma_f32 v58, v56, v53, v54\nv_fma_f32 v59, v57, v53, v54")
                p(f"v_lshlrev_b32 v60, 16, v{Z+r}\nv_and_b32 v61, 0xffff0000, v{Z+r}")
                p(f"v_fmac_f32 v56, v58, v60\nv_fmac_f32 v57, v59, v61")
                p(f"v_add_f32 v56, v56, v{S+2*r}\nv_add_f32 v57, v57, v{S+2*r+1}")
                p(f"v_cvt_pk_bf16_f32 v{dst+r}, v56, v57")
        fin(184, 216, 200, 64)
        p(f"s_lshl_b32 s{sTmp2}, s{sW}, 7")
        p(f"buffer_store_dwordx4 v[64:67], v42, {srd(S_OUT)}, s{sTmp2} offen")
        fin(188, 220, 112, 68)
        p(f"v_mov_b32 v55, {OOB:#x}\ns_cmp_eq_u32 s{sW}, 0\ns_cselect_b32 s{sTmp}, 0, {OOB:#x}\nv_add_u32 v43, s{sTmp}, v42")
        p(f"buffer_store_dwordx4 v[68:71], v43, {srd(S_OUT)}, 0 offen offset:1024")

    def write_stamps(self, n):
        p = self.p
        p("s_waitcnt lgkmcnt(0)")
        p(f"v_cmp_eq_u32 vcc, 0, v0\ns_and_saveexec_b64 s[{sEX}:{sEX+1}], vcc\ns_cbranch_execz L_nostamp")
        p(f"s_lshl_b32 s{sTmp}, s2, 7\ns_add_u32 s{sTmp}, s{sTmp}, {WS_DUMP}\nv_mov_b32 v4, 0")
        for i in range(n):
            p(f"v_mov_b32 v6, s{86+2*i}\nv_mov_b32 v7, s{87+2*i}")
            p(f"buffer_store_dwordx2 v[6:7], v4, {srd(S_WS)}, s{sTmp} offen offset:{8*i}")
            p("s_waitcnt vmcnt(0)")
        p(f"L_nostamp:\ns_mov_b64 exec, -1")

    def build(self):
        p = self.p
        self.stamp(0)
        self.prologue()
        self.g1()
        self.stamp(2)
        self.gelu_tail()
        self.g2()
        self.stamp(4)
        if self.opt["stop"] != "mlp":
            self.conv()
            self.stamp(5)
            self.final()
        p.drain()
        if self.stamps:
            self.stamp(7)
            self.write_stamps(8)
        p("L_end:\ns_endpgm")
        return p.finalize()

def kernel_wrap(name, body, nvgpr=256, nsgpr=102):
    t = f".globl {name}\n.p2align 8\n.type {name},@function\n{name}:\n" + body
    d = f""".p2align 6
.amdhsa_kernel {name}
  .amdhsa_next_free_vgpr {nvgpr}
  .amdhsa_next_free_sgpr {nsgpr}
  .amdhsa_accum_offset {nvgpr}
  .amdhsa_group_segment_fixed_size 0
  .amdhsa_kernarg_size 104
  .amdhsa_user_sgpr_count 2
  .amdhsa_user_sgpr_kernarg_segment_ptr 1
  .amdhsa_system_sgpr_workgroup_id_x 1
.end_amdhsa_kernel
"""
    return t, d

def make(stamps=False, listform=False, **kw):
    g = Gen(stamps=stamps, **kw)
    body = g.build()
    name = NAME + "_kernel"
    t, d = kernel_wrap(name, body)
    ref = open(f"cdna_kernels/{NAME}.s.ref").read().split("\n")
    hdr = [l for l in ref if l.startswith(";") and "@launch" not in l and "Override launch" not in l and "grid=ceil" not in l]
    hdr = [l for l in hdr if not l.strip().startswith("; v1") ]
    launch = f"; @launch grid=(256,1,1) block=(512,1,1) lds={LDS_BYTES}"
    if listform: launch = f"; @launch kernel={name} grid=(256,1,1) block=(512,1,1) lds={LDS_BYTES}"
    head = "\n".join(hdr[:15]) + "\n" + launch + "\n"
    asm = head + '.amdgcn_target "amdgcn-amd-amdhsa--gfx950"\n.text\n' + t + '.section .rodata,"a"\n' + d
    return asm, g

if __name__ == "__main__":
    asm, g = make(stamps=False)
    open(f"cdna_kernels/{NAME}.s", "w").write(asm)
    print(g.p.stats(), len(g.p.ins), len(asm))
```

```python
import re

REG_RE = re.compile(r'\b([vsa])\[(\d+):(\d+)\]|\b([vsa])(\d+)\b|\b(vcc|exec|m0|scc)\b')

def regs_of(op):
    out = []
    for m in REG_RE.finditer(op):
        if m.group(1):
            out += [f"{m.group(1)}{i}" for i in range(int(m.group(2)), int(m.group(3)) + 1)]
        elif m.group(4):
            out.append(f"{m.group(4)}{m.group(5)}")
        else:
            out.append(m.group(6))
    return out

TRANS = ("v_exp_f32", "v_log_f32", "v_rcp_f32", "v_rsq_f32", "v_sqrt_f32", "v_sin_f32", "v_cos_f32")

class Inst:
    __slots__ = ("text", "op", "kind", "defs", "uses", "tag", "note", "opaque")
    def __init__(self, text, tag=None):
        self.text = text.strip()
        self.tag = tag
        self.opaque = False
        t = self.text.split(";")[0].strip()
        parts = t.split(None, 1)
        self.op = parts[0] if parts else ""
        rest = parts[1] if len(parts) > 1 else ""
        ops = [o.strip() for o in split_ops(rest)]
        self.defs = set(); self.uses = set()
        op = self.op
        if t.endswith(":"):
            self.kind = "label"; return
        if op.startswith("v_mfma"):
            self.kind = "mfma"
            self.defs = set(regs_of(ops[0]))
            for o in ops[1:]: self.uses |= set(regs_of(o))
        elif op.startswith("ds_read") or op.startswith("ds_bpermute") or op.startswith("ds_swizzle") or op.startswith("ds_permute"):
            self.kind = "ds_read"
            self.defs = set(regs_of(ops[0]))
            for o in ops[1:]: self.uses |= set(regs_of(o))
        elif op.startswith("ds_"):
            self.kind = "ds_write"
            for o in ops: self.uses |= set(regs_of(o))
        elif op.startswith("buffer_load") or op.startswith("global_load"):
            if re.search(r'\blds\b', rest):
                self.kind = "dma"
                for o in ops: self.uses |= set(regs_of(o))
                self.uses.add("m0")
            else:
                self.kind = "vload"
                self.defs = set(regs_of(ops[0]))
                for o in ops[1:]: self.uses |= set(regs_of(o))
        elif op.startswith("buffer_store") or op.startswith("global_store"):
            self.kind = "vstore"
            for o in ops: self.uses |= set(regs_of(o))
        elif op.startswith("buffer_atomic") or op.startswith("global_atomic"):
            self.kind = "vstore"
            for o in ops: self.uses |= set(regs_of(o))
            if re.search(r'\bsc0\b', rest):
                self.kind = "vload"; self.defs = set(regs_of(ops[0]))
        elif op.startswith("buffer_") :
            self.kind = "vstore"
        elif op.startswith("s_load") or op.startswith("s_memtime") or op.startswith("s_memrealtime"):
            self.kind = "smem"
            self.defs = set(regs_of(ops[0]))
            for o in ops[1:]: self.uses |= set(regs_of(o))
        elif op == "s_waitcnt":
            self.kind = "wait"
        elif op == "s_barrier":
            self.kind = "barrier"
        elif op in ("s_nop", "s_sleep", "s_setprio", "s_endpgm"):
            self.kind = "nop"
        elif op.startswith("s_cbranch") or op == "s_branch":
            self.kind = "branch"
            if "scc" in op: self.uses.add("scc")
            if "vcc" in op: self.uses.add("vcc")
            if "exec" in op: self.uses.add("exec")
        elif op.startswith("s_cmp"):
            self.kind = "salu"
            for o in ops: self.uses |= set(regs_of(o))
            self.defs = {"scc"}
        elif op.startswith("s_"):
            self.kind = "salu"
            self.defs = set(regs_of(ops[0]))
            for o in ops[1:]: self.uses |= set(regs_of(o))
            if "saveexec" in op: self.defs.add("exec"); self.uses.add("exec")
            if op.startswith("s_cselect") or op.startswith("s_addc") or op.startswith("s_subb"): self.uses.add("scc")
            if not op.startswith("s_mov") and not op.startswith("s_cselect"): self.defs.add("scc")
        elif op.startswith("v_"):
            self.kind = "trans" if any(op.startswith(x) for x in TRANS) else "valu"
            if op.startswith("v_cmp"):
                self.defs = set(regs_of(ops[0]))
                for o in ops[1:]: self.uses |= set(regs_of(o))
                if op.startswith("v_cmpx"): self.defs.add("exec")
            elif op.startswith("v_permlane") and "swap" in op:
                self.defs = set(regs_of(ops[0])) | set(regs_of(ops[1]))
                self.uses = set(self.defs)
            elif op.startswith("v_readfirstlane") or op.startswith("v_readlane"):
                self.defs = set(regs_of(ops[0]))
                for o in ops[1:]: self.uses |= set(regs_of(o))
            else:
                self.defs = set(regs_of(ops[0]))
                rest_ops = ops[1:]
                if ("_co_" in op) and rest_ops and rest_ops[0] in ("vcc",) :
                    self.defs.add("vcc"); rest_ops = rest_ops[1:]
                for o in rest_ops: self.uses |= set(regs_of(o))
                if op.startswith("v_fmac") or op.startswith("v_dot2c") or op.startswith("v_mac") or op.startswith("v_writelane"):
                    self.uses |= set(regs_of(ops[0]))
            self.uses.add("exec")
        elif op.startswith("."):
            self.kind = "directive"
        elif op in ("WAITVM", "WAITLG", "DRAIN", "SAVE", "RESTORE"):
            self.kind = "pseudo"
        else:
            raise ValueError("unknown op: " + self.text)

def split_ops(s):
    out = []; depth = 0; cur = ""
    for ch in s:
        if ch == "[": depth += 1
        if ch == "]": depth -= 1
        if ch == "," and depth == 0:
            out.append(cur); cur = ""
        else:
            cur += ch
    if cur.strip(): out.append(cur)
    return out

VM_KINDS = ("vload", "vstore", "dma")
LG_KINDS = ("ds_read", "ds_write")

class Prog:
    def __init__(self):
        self.ins = []
    def __call__(self, text, tag=None):
        for line in text.split("\n"):
            line = line.strip()
            if not line or line.startswith(";"): continue
            self.ins.append(Inst(line, tag))
        return self
    def add(self, inst): self.ins.append(inst)
    def waitvm(self, tag):
        i = Inst("WAITVM"); i.tag = tag; self.ins.append(i)
    def waitlg(self, tag=None):
        i = Inst("WAITLG"); i.tag = tag; self.ins.append(i)
    def drain(self):
        self.ins.append(Inst("DRAIN"))
    def save(self):
        self.ins.append(Inst("SAVE"))
    def restore(self):
        self.ins.append(Inst("RESTORE"))

    def insert_waits(self):
        out = []
        vm = []
        lg = []
        smem_pending = set()
        def emit_wait(vn=None, ln=None):
            s = "s_waitcnt"
            if vn is not None: s += f" vmcnt({min(vn,63)})"
            if ln is not None: s += f" lgkmcnt({min(ln,15)})"
            out.append(Inst(s))
        for ins in self.ins:
            if ins.opaque:
                out.append(ins); continue
            if ins.kind == "pseudo":
                if ins.op == "WAITVM":
                    idx = [i for i, e in enumerate(vm) if e[1] == ins.tag]
                    if idx:
                        p = max(idx); n = len(vm) - 1 - p
                        emit_wait(vn=n);
                        if n <= 63: vm = vm[p+1:]
                        else: vm = vm[len(vm)-63:]
                elif ins.op == "WAITLG":
                    if ins.tag is None:
                        if lg or smem_pending:
                            emit_wait(ln=0); lg = []; smem_pending = set()
                    else:
                        idx = [i for i, e in enumerate(lg) if e[1] == ins.tag]
                        if idx:
                            p = max(idx); n = len(lg) - 1 - p
                            if smem_pending: n = 0
                            emit_wait(ln=n); lg = lg[len(lg)-min(n,15):] if n > 0 else []
                            if n == 0: smem_pending = set()
                elif ins.op == "DRAIN":
                    emit_wait(vn=0, ln=0); vm = []; lg = []; smem_pending = set()
                elif ins.op == "SAVE":
                    saved = (list(vm), list(lg), set(smem_pending))
                elif ins.op == "RESTORE":
                    vm, lg, smem_pending = list(saved[0]), list(saved[1]), set(saved[2])
                continue
            if ins.kind == "wait":
                m = re.search(r'vmcnt\((\d+)\)', ins.text)
                if m:
                    n = int(m.group(1)); vm = vm[len(vm)-n:] if n < len(vm) and n > 0 else ([] if n == 0 else vm)
                m = re.search(r'lgkmcnt\((\d+)\)', ins.text)
                if m:
                    n = int(m.group(1))
                    if n == 0: lg = []; smem_pending = set()
                    elif not smem_pending and n < len(lg): lg = lg[len(lg)-n:]
                out.append(ins); continue
            touch = ins.uses | ins.defs
            vneed = None; lneed = None
            for p, e in enumerate(vm):
                if e[0] & touch: vneed = len(vm) - 1 - p
            for p, e in enumerate(lg):
                if e[0] & touch: lneed = len(lg) - 1 - p
            if smem_pending & touch: lneed = 0
            if lneed is not None and smem_pending: lneed = 0
            if vneed is not None or lneed is not None:
                emit_wait(vneed, lneed)
                if vneed is not None:
                    n = min(vneed, 63); vm = vm[len(vm)-n:] if n > 0 else []
                if lneed is not None:
                    n = min(lneed, 15); lg = lg[len(lg)-n:] if n > 0 else []
                    if n == 0: smem_pending = set()
            if ins.kind in VM_KINDS: vm.append((set(ins.defs), ins.tag))
            if ins.kind in LG_KINDS: lg.append((set(ins.defs), ins.tag))
            if ins.kind == "smem": smem_pending |= set(ins.defs) or {"_"}
            out.append(ins)
        self.ins = out

    def pad_hazards(self):
        out = []
        def dist_since(pred, maxd):
            d = 0
            for prev in reversed(out):
                if prev.kind in ("label", "directive"): continue
                if pred(prev): return d
                if prev.op == "s_nop":
                    d += int(prev.text.split()[1]) + 1
                else:
                    d += 1
                if d >= maxd: return None
            return None
        for ins in self.ins:
            need = 0
            def req(pred, n):
                nonlocal need
                d = dist_since(pred, n)
                if d is not None and n - d > need: need = n - d
            isv = lambda r: r[0] == "v" and r != "vcc" or r[0] == "a"
            vuses = {r for r in ins.uses if r[0] in "va" and r != "vcc"}
            vdefs = {r for r in ins.defs if r[0] in "va" and r != "vcc"}
            suses = {r for r in ins.uses if (r[0] == "s" and r != "scc") or r == "vcc"}
            VAL = ("valu", "trans")
            if ins.kind == "mfma":
                req(lambda p: p.kind in VAL and (p.defs & vuses), 2)
                ops = split_ops(ins.text.split(None, 1)[1])
                ab = set(regs_of(ops[1])) | set(regs_of(ops[2])); c = set(regs_of(ops[3]));
                req(lambda p: p.kind == "mfma" and (p.defs & ab), 8 if "16x16" in ins.op else 12)
                req(lambda p: p.kind == "mfma" and (p.defs & c) and p.defs != c, 6 if "16x16" in ins.op else 10)
                req(lambda p: p.kind in VAL and "exec" in p.defs, 4)
            if ins.kind in VAL or ins.kind in ("ds_read", "ds_write", "vload", "vstore", "dma"):
                req(lambda p: p.kind == "mfma" and (p.defs & (vuses | vdefs)), 8)
                req(lambda p: p.kind == "mfma" and "32x32" in p.op and (p.defs & (vuses | vdefs)), 12)
            if ins.kind in VAL or ins.kind in ("ds_read", "ds_write", "vload", "vstore", "dma", "mfma"):
                if ins.op.startswith("v_dot"):
                    ops_ = split_ops(ins.text.split(None, 1)[1])
                    ab_ = set(regs_of(ops_[1])) | set(regs_of(ops_[2]))
                    req(lambda p: p.op.startswith("v_dot") and (p.defs & ab_), 3)
                else:
                    req(lambda p: p.op.startswith("v_dot") and (p.defs & (vuses | vdefs)), 3)
            if ins.kind in VAL:
                def srcc_war(p):
                    if p.kind != "mfma": return False
                    ops = split_ops(p.text.split(None, 1)[1]); return bool(set(regs_of(ops[3])) & vdefs)
                req(srcc_war, 3)
                req(lambda p: p.kind == "trans" and (p.defs & vuses) and ins.kind != "trans", 1)
                req(lambda p: p.kind == "trans" and (p.defs & vuses), 1)
                req(lambda p: p.kind in VAL and (p.defs & suses), 2)
                req(lambda p: p.kind == "vstore" and ("x4" in p.op or "x3" in p.op) and (p.uses & vdefs), 2)
                if ins.op.startswith("v_permlane"):
                    req(lambda p: p.kind in VAL and (p.defs & vuses), 2)
                if ins.op.startswith("v_readfirstlane") or ins.op.startswith("v_readlane"):
                    req(lambda p: p.kind in VAL and (p.defs & vuses), 1)
                    req(lambda p: p.kind in VAL and (p.defs & suses), 4)
                if "dpp" in ins.text or "row_" in ins.text or "quad_perm" in ins.text:
                    req(lambda p: p.kind in VAL and (p.defs & vuses), 2)
                    req(lambda p: p.kind in VAL and "exec" in p.defs, 5)
            if ins.kind in ("vload", "vstore", "dma"):
                req(lambda p: p.kind in VAL and (p.defs & suses), 5)
            if ins.kind == "dma":
                req(lambda p: p.kind == "salu" and "m0" in p.defs, 1)
            if ins.kind in ("ds_read", "vload"):
                req(lambda p: p.kind == "vstore" and ("x4" in p.op or "x3" in p.op) and (p.uses & vdefs), 1)
            if ins.kind == "salu" or ins.kind == "branch":
                req(lambda p: p.kind in VAL and (p.defs & (suses | ({"vcc"} & ins.uses))), 4)
            while need > 0:
                k = min(need, 16); out.append(Inst(f"s_nop {k-1}")); need -= k
            out.append(ins)
        self.ins = out

    def text(self):
        return "\n".join(("" if i.kind == "label" else "  ") + i.text for i in self.ins) + "\n"

    def finalize(self):
        self.insert_waits(); self.pad_hazards(); return self.text()

    def stats(self):
        from collections import Counter
        return Counter(i.kind for i in self.ins)
```

```python
import sys, math, struct
sys.path.insert(0, "gen")
from fw import *

NAME = "parallel_sum__ssm_conv_h3__glu_gated_geglu__prompt"
def f2u(x): return struct.unpack("<I", struct.pack("<f", x))[0]
OOB = 0x80000000

WS_SIZE = 268435456
WS_BASE = 0xD000000
WS_P    = WS_BASE
WS_KVT  = WS_BASE + 0x2400000
WS_ZT   = WS_BASE + 0x2640000
WS_XN   = WS_BASE + 0x2950000
WS_ST   = WS_BASE + 0x2880000
WS_CSP  = WS_BASE + 0x2890000
WS_FLAG = WS_BASE + 0x2930000
WS_DUMP = WS_BASE + 0x2940000
FA, FB, FC, ZF, S1, S2 = 0, 4096, 8192, 12288, 16384, 20480

SLOT = 36864
L_X = 110592
L_H = 73728
L_CS = 147456
L_KVL = 149760
L_DUMMY = 159552
L_STG = 147456
LDS_BYTES = 163840
C_TCA, C_TCB = 0, 33280
C_KP = 132096
C_YRA = 66560
C_YRB = 99328
C_DUM = 145920
C_ZL = 33280
C_C8 = 0

S_X, S_WG, S_WU, S_WD, S_WS, S_W5 = 8, 12, 16, 20, 24, 28
S_OUT, S_T0, S_DBG = 32, 36, 40
sW, sM, sJ = 44, 45, 46
sW1024, sM5, sKoff, sT, sH = 47, 48, 49, 50, 51
sM5D = 52
sTmp, sTmp2, sTmp3 = 53, 54, 55
sPoff = 56
sPF = 3
sEX = 4
sKA = 60
sXoff = 4
sTmp4 = 5
sCS = 6
sCW = 7
sEP = 58
sPL = 59
sNonce = 57
sSite = 73
sMask = 74
def srd(n): return f"s[{n}:{n+3}]"

vLane, vN, vQ = 1, 2, 3
vAE, vAO, vAS = 4, 5, 6
vB, vB2 = 7, 8
vO0, vO1, vO5 = 9, 10, 11
vXA = 12
vPF1, vPF2 = 13, 14
vDum = 15
vD0, vD5, vA2, vP0 = 16, 17, 18, 19
vOOB = 20
vE = 21
vK0 = 24
TMP = 40
FR0 = 56; NFR = 6
BFR = [80, 96]
ACC = 112
def vr(a, n=4): return f"v[{a}:{a+n-1}]"
def acc_own(a, ten, i): return ACC + 4 * ((a * 2 + ten) * 4 + i)
def acc_sh(ten, k): return ACC + 4 * (32 + ten * 2 + k)
sE2 = 72

class Gen:
    def __init__(self, stamps=False, **kw):
        self.p = Prog()
        self.stamps = stamps
        self.opt = dict(pf=True, nostore=False, stop=None, dump=None, nofill=False, dma4=True, dmaslots=None, prio=False, pf64=False, pfd=6, g1read=None, barslot=28, frbuf=None, order=None, nocvin=False, early=16, prio2=False, sitesM2=False, dropst=0, noe3=True, pfB=True, xsc1=True, stflags='sc1', g2nodma=False, stslots=(16,22), g2carry=(1,12), nodma=False, breadslot=(29,30), vmfirst=(30,35), vmcarry=(1,22))
        self.opt.update(kw)
        self.uid = 0

    def stamp(self, name):
        if self.stamps and name in self.stamps:
            idx = self.stamps.index(name)
            self.p(f"{self.opt.get('clk','s_memtime')} s[{86+2*idx}:{87+2*idx}]")
    def stamp_i(self, name):
        if self.stamps and name in self.stamps:
            idx = self.stamps.index(name)
            return [Inst(f"{self.opt.get('clk','s_memtime')} s[{86+2*idx}:{87+2*idx}]")]
        return []
    def label(self, base):
        self.uid += 1; return f"L_{base}_{self.uid}"
    def build_srd(self, dst, ka_off, nbytes):
        k = sKA + ka_off // 4
        self.p(f"s_mov_b32 s{dst}, s{k}\ns_and_b32 s{dst+1}, s{k+1}, 0xffff\ns_mov_b32 s{dst+2}, {nbytes}\ns_mov_b32 s{dst+3}, 0x20000")
    def build_xn_srd(self):
        k = sKA + 96 // 4
        self.p(f"s_add_u32 s{S_X}, s{k}, {WS_XN}\ns_addc_u32 s{S_X+1}, s{k+1}, 0\ns_and_b32 s{S_X+1}, s{S_X+1}, 0xffff\ns_mov_b32 s{S_X+2}, 2359296\ns_mov_b32 s{S_X+3}, 0x20000")
    def add_units(self, units):
        for u in units:
            if isinstance(u, list):
                for i in u: self.p.add(i)
            else: self.p.add(u)
    def I(self, text, tag=None):
        return [Inst(l, tag) for l in text.split("\n") if l.strip()]
    def nodef(self, text, tag):
        i = Inst(text, tag); i.defs = set(); return i

    @property
    def PFD(self): return self.opt['pfd']
    def pf_tile(self, tile):
        if not self.opt["pf"] or tile > 26: return []
        if tile < 18:
            if self.opt["pfB"] and tile >= 3:
                return [Inst(f"s_mov_b32 s{sPF}, {tile * 32 * 9216}"),
                        self.nodef(f"buffer_load_dword v{vDum}, v{vPF1}, {srd(S_WG)}, s{sPF} offen", "pf"),
                        self.nodef(f"buffer_load_dword v{vDum}, v{vPF1}, {srd(S_WU)}, s{sPF} offen", "pf")]
            return [Inst(f"s_mov_b32 s{sPF}, {tile * 32 * 9216}"),
                    self.nodef(f"buffer_load_dword v{vDum}, v{vPF1}, {srd(S_W5)}, s{sPF} offen", "pf")]
        return [Inst(f"s_mov_b32 s{sPF}, {(tile - 18) * 128}"),
                self.nodef(f"buffer_load_dword v{vDum}, v{vPF2}, {srd(S_WD)}, s{sPF} offen", "pf")]
    def pf_x(self, line):
        if not self.opt["pf"] or line > 8: return []
        return [Inst(f"s_mov_b32 s{sPF}, {line * 128}"),
                self.nodef(f"buffer_load_dword v{vDum}, v{vE}, {srd(S_X)}, s{sPF} offen", "pf")]

    def onlyB(self, u):
        if not u: return u
        if self.cls == "A": return []
        if self.cls == "B": return u
        L = self.label("sk")
        r = [Inst(f"s_cmp_lt_u32 s{sW}, 4"), Inst(f"s_cbranch_scc1 {L}")] + u + [Inst(f"{L}:")]
        for x in r: x.opaque = True
        return r
    def dma_tile(self, tile):
        out = []
        if tile < 18 and self.opt["dma4"]: return self.dma_tile4(tile)
        base = (tile % 3) * SLOT
        tag = f"tile{tile}"
        if tile < 18:
            first = True
            for (srd_, vo, off) in ((S_WG, vO0, 0), (S_WG, vO1, 8192), (S_WU, vO0, 18432), (S_WU, vO1, 18432 + 8192)):
                u = []
                if first: u.append(Inst(f"s_mov_b32 s{sKoff}, {tile * 32 * 9216}")); first = False
                u.append(Inst(f"s_add_u32 m0, s{sW1024}, {base + off}"))
                u.append(Inst(f"buffer_load_dwordx4 v{vo}, {srd(srd_)}, s{sKoff} offen lds", tag=tag))
                out.append(u)
            out.append([Inst(f"s_add_u32 m0, s{sM5}, {base}"), Inst("s_mov_b32 exec_hi, 0"),
                        Inst(f"buffer_load_dwordx4 v{vO5}, {srd(S_W5)}, s{sKoff} offen lds", tag=tag),
                        Inst("s_mov_b32 exec_hi, -1")])
        else:
            c = tile - 18
            for a in range(4):
                out.append([Inst(f"s_mov_b32 s{sKoff}, {a * 73728 + c * 128}"),
                            Inst(f"s_add_u32 m0, s{sW1024}, {base + a * 8192}"),
                            Inst(f"buffer_load_dwordx4 v{vD0}, {srd(S_WD)}, s{sKoff} offen lds", tag=tag)])
            out.append([Inst(f"s_mov_b32 s{sKoff}, {c * 128}"),
                        Inst(f"s_add_u32 m0, s{sM5D}, {base}"), Inst("s_mov_b32 exec_hi, 0"),
                        Inst(f"buffer_load_dwordx4 v{vD5}, {srd(S_WD)}, s{sKoff} offen lds", tag=tag),
                        Inst("s_mov_b32 exec_hi, -1")])
        return out

    def dma_tile4(self, tile):
        out = []
        base = (tile % 3) * SLOT
        tag = f"tile{tile}"
        L = self.label("d4")
        first = True
        for ten, srd_ in ((0, S_WG), (1, S_WU)):
            for a in range(4):
                u = []
                u.append(Inst(f"s_add_u32 m0, s{sW1024}, {base + ten*18432 + a*4096}"))
                u.append(Inst(f"s_mov_b32 s{sKoff}, {tile * 32 * 9216}"))
                u.append(Inst(f"buffer_load_dwordx4 v{self.vO4[a]}, {srd(srd_)}, s{sKoff} offen lds", tag=tag))
                out.append(u)
        out.append([Inst(f"s_add_u32 m0, s{sM5}, {base}"), Inst(f"s_mov_b32 s{sKoff}, {tile * 32 * 9216}"), Inst(f"buffer_load_dwordx4 v{vO5}, {srd(S_W5)}, s{sKoff} offen lds", tag=tag)])
        return [self.skipB(u) for u in out]
    cls = None
    def skipB(self, u):
        if self.cls == "A": return u
        if self.cls == "B": return []
        L = self.label("sk")
        return [Inst(f"s_cmp_ge_u32 s{sW}, 4"), Inst(f"s_cbranch_scc1 {L}")] + u + [Inst(f"{L}:")]
    vO4 = [9, 10, 32, 33]
    def dma_x4(self, s):
        base = L_X + (s % 3) * 8192
        out = []
        for k in range(2):
            out.append(self.skipB([Inst(f"s_add_u32 m0, s{sW1024}, {base + k * 4096}"),
                 Inst(f"s_mov_b32 s{sXoff}, {s * 64 + k * 64 * 1152}"),
                 Inst(f"buffer_load_dwordx4 v{vXA}, {srd(S_X)}, s{sXoff} offen {'sc1 ' if self.opt['xsc1'] else ''}lds", tag=f"x{s}")]))
        return out

    def dma_x(self, s):
        if self.opt["dma4"]: return self.dma_x4(s)
        base = L_X + (s % 3) * 8192
        return [[Inst(f"s_mov_b32 s{sXoff}, {s * 64}"),
                 Inst(f"s_add_u32 m0, s{sW1024}, {base}"),
                 Inst(f"buffer_load_dwordx4 v{vXA}, {srd(S_X)}, s{sXoff} offen {'sc1 ' if self.opt['xsc1'] else ''}lds", tag=f"x{s}")]]

    def prologue(self):
        p = self.p
        p("s_cmp_ge_u32 s2, 256\ns_cbranch_scc1 L_end")
        p(f"s_load_dwordx16 s[{sKA}:{sKA+15}], s[0:1], 0")
        p(f"s_load_dwordx8 s[{sKA+16}:{sKA+23}], s[0:1], 64")
        p(f"s_load_dwordx2 s[{sKA+24}:{sKA+25}], s[0:1], 96")
        p(f"v_lshrrev_b32 v40, 6, v0\nv_and_b32 v{vLane}, 63, v0")
        p(f"v_readfirstlane_b32 s{sW}, v40")
        p(f"v_and_b32 v{vN}, 15, v{vLane}\nv_lshrrev_b32 v{vQ}, 4, v{vLane}\nv_mov_b32 v{vOOB}, {OOB:#x}")
        p(f"s_and_b32 s{sJ}, s2, 3\ns_lshl_b32 s{sJ}, s{sJ}, 2\ns_bfe_u32 s{sTmp}, s2, 0x20003\ns_add_u32 s{sJ}, s{sJ}, s{sTmp}")
        p(f"s_bfe_u32 s{sM}, s2, 0x10002\ns_lshl_b32 s{sM}, s{sM}, 3\ns_lshr_b32 s{sTmp}, s2, 5\ns_add_u32 s{sM}, s{sM}, s{sTmp}")
        p(f"s_lshr_b32 s{sT}, s{sW}, 2\ns_and_b32 s{sH}, s{sW}, 3\ns_lshl_b32 s{sW1024}, s{sW}, 10")
        p(f"s_lshl_b32 s{sTmp}, s{sM}, 7\ns_lshl_b32 s{sTmp2}, s{sJ}, 3\ns_add_u32 s{sTmp}, s{sTmp}, s{sTmp2}\ns_add_u32 s{sTmp}, s{sTmp}, s{sW}\ns_mul_i32 s{sPoff}, s{sTmp}, 1152")
        p(f"v_lshlrev_b32 v52, 4, v{vLane}\nv_add_u32 v53, 1024, v52\nv_cmp_gt_u32 vcc, 8, v{vLane}\nv_cndmask_b32 v53, v{vOOB}, v53, vcc")
        p(f"s_and_b32 s{sTmp}, s{sM}, 7\ns_lshl_b32 s{sTmp2}, s{sTmp}, 2\ns_add_u32 s{sTmp2}, s{sTmp2}, s{sH}\ns_mul_i32 s{sTmp2}, s{sTmp2}, 9216")
        p(f"s_mul_i32 s{sTmp3}, s{sJ}, 576\ns_and_b32 s{sTmp4}, s{sTmp3}, 0xffffff80\ns_add_u32 s{sTmp2}, s{sTmp2}, s{sTmp4}")
        p(f"v_lshlrev_b32 v40, 7, v{vLane}\nv_add_u32 v40, s{sTmp2}, v40\nv_cmp_gt_u32 vcc, 5, v{vLane}\nv_cndmask_b32 v{vPF1}, v{vOOB}, v40, vcc")
        p("s_waitcnt lgkmcnt(0)")
        self.stamp("karg")
        self.build_srd(S_T0, 0, 2359296)
        p(f"buffer_load_dwordx4 v[24:27], v52, {srd(S_T0)}, s{sPoff} offen\nbuffer_load_dwordx4 v[28:31], v53, {srd(S_T0)}, s{sPoff} offen", tag="xrow")
        self.build_srd(S_DBG, 88, 256)
        p("s_memrealtime s[72:73]")
        self.build_srd(S_WG, 56, 5308416)
        self.build_srd(S_WU, 64, 5308416)
        p(f"s_cmp_lt_u32 s{sW}, 4")
        for i in range(4): p(f"s_cselect_b32 s{S_W5+i}, s{S_WG+i}, s{S_WU+i}")
        p("s_waitcnt lgkmcnt(0)")
        p(f"s_or_b32 s72, s72, 1\ns_cmp_eq_u32 s2, 0\ns_cselect_b32 s73, 0, {OOB:#x}\nv_mov_b32 v40, s72\nv_mov_b32 v41, s73\nv_cmp_eq_u32 vcc, 0, v0\nv_cndmask_b32 v41, v{vOOB}, v41, vcc")
        p(f"buffer_store_dword v40, v41, {srd(S_DBG)}, 0 offen sc1", tag="nonce")
        for t in range(3):
            for i in self.pf_tile(t): p.add(i)
        p(f"s_cmp_lt_u32 s{sH}, 2")
        for i in range(4): p(f"s_cselect_b32 s{S_W5+i}, s{S_WG+i}, s{S_WU+i}")
        self.build_srd(S_WS, 96, WS_SIZE)
        self.build_xn_srd()
        p(f"s_lshl_b32 s{sTmp}, s{sM}, 7\ns_lshl_b32 s{sTmp2}, s{sH}, 4\ns_add_u32 s{sTmp}, s{sTmp}, s{sTmp2}")
        p(f"v_lshrrev_b32 v40, 2, v{vLane}\nv_add_u32 v40, s{sTmp}, v40\nv_mul_u32_u24 v40, 1152, v40")
        p(f"v_bfe_u32 v41, v{vLane}, 4, 1\nv_mul_u32_u24 v41, 3, v41\nv_and_b32 v42, 3, v{vLane}\nv_xor_b32 v41, v41, v42\nv_lshlrev_b32 v41, 4, v41\nv_add_u32 v{vXA}, v40, v41")
        def w_voff(dst, ireg):
            p(f"v_mul_u32_u24 v42, 1821, v{ireg}\nv_lshrrev_b32 v42, 16, v42")
            p(f"v_mul_u32_u24 v43, 36, v42\nv_sub_u32 v43, v{ireg}, v43")
            p(f"v_lshrrev_b32 v44, 2, v42\nv_and_b32 v44, 2, v44\nv_xor_b32 v43, v43, v44")
            p(f"v_lshlrev_b32 v43, 4, v43\nv_mul_u32_u24 v42, 9216, v42\nv_add_u32 v42, v42, v43\nv_add_u32 v{dst}, s{sTmp3}, v42")
        p(f"s_mul_i32 s{sTmp3}, s{sJ}, 576")
        p(f"s_lshl_b32 s{sTmp}, s{sH}, 6\nv_add_u32 v41, s{sTmp}, v{vLane}")
        for a_ in range(4):
            w_voff(self.vO4[a_], 41)
            p(f"v_add_u32 v41, 256, v41")
        p(f"s_and_b32 s{sTmp}, s{sH}, 1\ns_add_u32 s{sTmp}, s{sTmp}, 16\ns_lshl_b32 s{sTmp}, s{sTmp}, 6\nv_add_u32 v41, s{sTmp}, v{vLane}")
        w_voff(vO5, 41)
        p(f"s_lshl_b32 s{sM5}, s{sTmp}, 4\ns_lshr_b32 s{sTmp2}, s{sH}, 1\ns_mul_i32 s{sTmp2}, s{sTmp2}, 18432\ns_add_u32 s{sM5}, s{sM5}, s{sTmp2}")
        p(f"s_and_b32 s{sTmp2}, s{sJ}, 3\ns_lshl_b32 s{sTmp2}, s{sTmp2}, 5\ns_lshl_b32 s{sTmp4}, s{sH}, 3\ns_add_u32 s{sTmp2}, s{sTmp2}, s{sTmp4}\ns_lshl_b32 s{sTmp4}, s{sM}, 7\ns_add_u32 s{sTmp2}, s{sTmp2}, s{sTmp4}")
        p(f"v_add_u32 v40, s{sTmp2}, v{vLane}\nv_mul_u32_u24 v40, 1152, v40\nv_cmp_gt_u32 vcc, 8, v{vLane}\nv_cndmask_b32 v{vE}, v{vOOB}, v40, vcc")
        for i in self.nonce_issue(23): p.add(i)
        p("v_mov_b32 v40, 0x3f803f80\nv_mov_b32 v41, 0\nv_mov_b32 v42, 0")
        for r in range(8):
            p(f"v_dot2_f32_bf16 v41, v{24+r}, v40, v41\nv_dot2_f32_bf16 v42, v{24+r}, v{24+r}, v42")
        self.stamp("xrow")
        for reg in (41, 42):
            for d in ("quad_perm:[1,0,3,2]", "quad_perm:[2,3,0,1]", "row_half_mirror", "row_mirror"):
                p(f"v_add_f32_dpp v{reg}, v{reg}, v{reg} {d} row_mask:0xf bank_mask:0xf")
            for sw in ("v_permlane16_swap_b32", "v_permlane32_swap_b32"):
                p(f"v_mov_b32 v43, v{reg}\n{sw} v{reg}, v43\nv_add_f32 v{reg}, v{reg}, v43")
        p(f"v_mul_f32 v41, {f2u(1/576):#x}, v41\nv_mul_f32 v42, {f2u(1/576):#x}, v42")
        p("v_fma_f32 v42, -v41, v41, v42\nv_max_f32 v42, 0, v42")
        p("v_cvt_pk_bf16_f32 v43, v41, v42\nv_lshlrev_b32 v41, 16, v43\nv_and_b32 v42, 0xffff0000, v43")
        p(f"v_add_f32 v42, {f2u(1e-5):#x}, v42")
        p("v_cvt_pk_bf16_f32 v42, v42, v42\nv_lshlrev_b32 v42, 16, v42\nv_sqrt_f32 v42, v42")
        p("v_cvt_pk_bf16_f32 v42, v42, v42\nv_lshlrev_b32 v42, 16, v42\nv_rcp_f32 v43, v42")
        for r in range(8):
            p(f"v_lshlrev_b32 v44, 16, v{24+r}\nv_and_b32 v45, 0xffff0000, v{24+r}\nv_sub_f32 v44, v44, v41\nv_sub_f32 v45, v45, v41")
            p(f"v_cvt_pk_bf16_f32 v44, v44, v45\nv_and_b32 v45, 0xffff0000, v44\nv_lshlrev_b32 v44, 16, v44")
            p(f"v_mul_f32 v44, v44, v43\nv_mul_f32 v45, v45, v43\nv_cvt_pk_bf16_f32 v{24+r}, v44, v45")
        p(f"buffer_store_dwordx4 v[24:27], v52, {srd(S_X)}, s{sPoff} offen sc1\nbuffer_store_dwordx4 v[28:31], v53, {srd(S_X)}, s{sPoff} offen sc1", tag="xnst")
        for i in self.nonce_check(23): p.add(i)
        p.waitvm("xnst"); p("s_barrier")
        for i in self.signal(S1, 40, 41): p.add(i)
        self.stamp("s1set")
        self.add_units(self.dma_tile(0)); self.add_units(self.dma_tile(1)); self.add_units(self.dma_tile(2))
        self.build_srd(S_WD, 72, 5308416)
        self.build_srd(S_OUT, 80, 2359296)
        p(f"v_bfe_u32 v40, v{vLane}, 2, 2")
        p(f"v_lshlrev_b32 v41, 3, v{vQ}\nv_add_u32 v41, v41, v40\nv_mul_u32_u24 v41, 576, v41")
        p(f"v_and_b32 v42, 3, v{vLane}\nv_lshlrev_b32 v42, 3, v42\nv_add_u32 v41, v41, v42")
        p(f"v_and_b32 v43, 1, v{vQ}")
        p(f"s_lshl_b32 s{sTmp}, s{sH}, 2")
        p(f"v_add_u32 v44, s{sTmp}, v43\nv_lshlrev_b32 v44, 5, v44\nv_add_u32 v{vAE}, v41, v44")
        p(f"v_xor_b32 v44, 1, v43\nv_add_u32 v44, s{sTmp}, v44\nv_lshlrev_b32 v44, 5, v44\nv_add_u32 v{vAO}, v41, v44")
        p(f"s_lshr_b32 s{sTmp}, s{sH}, 1\ns_add_u32 s{sTmp}, s{sTmp}, 16")
        p(f"v_xor_b32 v44, s{sTmp}, v43\nv_lshlrev_b32 v44, 5, v44\nv_add_u32 v{vAS}, v41, v44")
        p(f"v_bfe_u32 v40, v{vN}, 2, 1\nv_mul_u32_u24 v40, 3, v40\nv_xor_b32 v40, v{vQ}, v40\nv_lshlrev_b32 v40, 4, v40")
        p(f"s_lshl_b32 s{sTmp}, s{sT}, 6\nv_add_u32 v41, s{sTmp}, v{vN}\nv_lshlrev_b32 v41, 6, v41\nv_add_u32 v41, v41, v40\nv_add_u32 v41, {L_X}, v41")
        p(f"s_and_b32 s{sE2}, s{sH}, 1\ns_lshl_b32 s{sTmp}, s{sE2}, 11")
        p(f"v_add_u32 v{vB}, s{sTmp}, v41\nv_subrev_u32 v{vB2}, s{sTmp}, v41")
        for i in self.fpoll_issue(f"s_lshl_b32 s{sTmp2}, s{sM}, 4\nv_add_u32 v22, s{sTmp2}, v{vN}\nv_lshlrev_b32 v22, 2, v22\nv_add_u32 v22, {S1}, v22", 22, 21): p.add(i)
        for i in self.fpoll_check(22, 21): p.add(i)
        self.stamp("s1ok")
        self.add_units(self.dma_x(0)); self.add_units(self.dma_x(1)); self.add_units(self.dma_x(2))

    def f3_addr(self):
        t = []
        A = lambda s: t.extend(self.I(s))
        A(f"s_and_b32 s{sTmp}, s2, 15\ns_lshl_b32 s{sTmp}, s{sTmp}, 7\ns_lshr_b32 s{sTmp2}, s2, 4\ns_lshl_b32 s{sTmp2}, s{sTmp2}, 7")
        A(f"v_lshrrev_b32 v22, 4, v0\nv_lshlrev_b32 v22, 2, v22\nv_add_u32 v22, s{sTmp}, v22\nv_mul_u32_u24 v22, 1152, v22")
        A(f"v_and_b32 v23, 15, v0\nv_lshlrev_b32 v23, 2, v23\nv_add_u32 v23, s{sTmp2}, v23\nv_add_u32 v22, v22, v23")
        A(f"s_cmp_lt_u32 s2, 144\ns_cselect_b32 s{sTmp}, 0, {OOB:#x}\nv_add_u32 v22, s{sTmp}, v22")
        A(f"v_and_b32 v23, 15, v0\nv_lshrrev_b32 v35, 5, v0\nv_xor_b32 v35, v35, v23\nv_lshlrev_b32 v35, 4, v35\nv_lshlrev_b32 v23, 9, v23\nv_add_u32 v23, v23, v35")
        A(f"v_bfe_u32 v35, v0, 4, 1\nv_lshlrev_b32 v35, 3, v35\nv_add_u32 v23, v23, v35\nv_add_u32 v23, {L_STG}, v23")
        return t
    def f3_loads(self, r):
        t = []
        if r == 1: t += self.I(f"v_add_u32 v22, 64, v22")
        t += [self.t0srd(8, 2359296)]
        for rr in range(3):
            t.append(self.I(f"v_subrev_u32 v35, {(3-rr)*1152}, v22") + [Inst(f"buffer_load_dword v{24+rr}, v35, {srd(S_T0)}, 0 offen", tag="e3")])
        for rr in range(3, 7):
            t.append(Inst(f"buffer_load_dword v{24+rr}, v22, {srd(S_T0)}, 0 offen offset:{(rr-3)*1152}", tag="e3"))
        t += [self.t0srd(16, 2359296)]
        for i in range(4):
            t.append(Inst(f"buffer_load_dword v{31+i}, v22, {srd(S_T0)}, 0 offen offset:{i*1152}", tag="e3"))
        u = self.t0srd(24, 4608) + self.I(f"s_lshr_b32 s{sTmp2}, s2, 4\ns_lshl_b32 s{sTmp2}, s{sTmp2}, 9\ns_add_u32 s{sTmp2}, s{sTmp2}, {256*r}\nv_and_b32 v35, 15, v0\nv_lshlrev_b32 v35, 4, v35\nv_add_u32 v35, s{sTmp2}, v35")
        u.append(Inst(f"buffer_load_dwordx4 v[40:43], v35, {srd(S_T0)}, 0 offen", tag="e3"))
        t.append(u)
        return t
    def f3_compute(self, r):
        t = []
        A = lambda s: t.extend(self.I(s))
        for rr in range(7): A(f"v_lshlrev_b32 v{48+rr}, 16, v{24+rr}\nv_and_b32 v{24+rr}, 0xffff0000, v{24+rr}")
        for c in range(2):
            K = 48 if c == 0 else 24
            A(f"v_lshlrev_b32 v44, 16, v{40+2*c}\nv_and_b32 v45, 0xffff0000, v{40+2*c}\nv_lshlrev_b32 v46, 16, v{41+2*c}\nv_and_b32 v47, 0xffff0000, v{41+2*c}")
            for i in range(4):
                d = 36 + i
                A(f"v_mul_f32 v{d}, v{K+3+i}, v44")
                for jj in range(1, 4): A(f"v_fmac_f32 v{d}, v{K+3+i-jj}, v{44+jj}")
                if c == 0: A(f"v_lshlrev_b32 v35, 16, v{31+i}")
                else: A(f"v_and_b32 v35, 0xffff0000, v{31+i}")
                A(f"v_mul_f32 v{d}, v{d}, v35")
            A(f"v_cvt_pk_bf16_f32 v36, v36, v37\nv_cvt_pk_bf16_f32 v37, v38, v39")
            A(f"ds_write_b64 v23, v[36:37] offset:{c*256 + r*8192}")
        return t
    def f3_prefetch(self):
        t = []
        A = lambda s: t.extend(self.I(s))
        A(f"s_and_b32 s{sTmp}, s2, 15\ns_lshl_b32 s{sTmp}, s{sTmp}, 7\ns_lshl_b32 s{sTmp2}, s{sW}, 4\ns_add_u32 s{sTmp}, s{sTmp}, s{sTmp2}\ns_lshr_b32 s{sTmp2}, s2, 4\ns_lshl_b32 s{sTmp2}, s{sTmp2}, 7")
        A(f"v_add_u32 v24, s{sTmp}, v{vLane}\nv_subrev_u32 v24, 3, v24\ns_movk_i32 s{sTmp3}, 1152\nv_mul_lo_u32 v24, v24, s{sTmp3}\nv_add_u32 v24, s{sTmp2}, v24")
        A(f"v_cmp_gt_u32 vcc, 19, v{vLane}\nv_cndmask_b32 v24, v{vOOB}, v24, vcc\ns_cmp_lt_u32 s2, 144\ns_cselect_b32 s{sTmp}, 0, {OOB:#x}\nv_or_b32 v24, s{sTmp}, v24")
        t.append(self.t0srd(8, 2359296) + [self.nodef(f"buffer_load_dword v{vDum}, v24, {srd(S_T0)}, 0 offen", "pf")])
        t.append(self.t0srd(16, 2359296) + [self.nodef(f"buffer_load_dword v{vDum}, v24, {srd(S_T0)}, 0 offen", "pf")])
        return t
    def kv_store(self):
        t = []
        A = lambda s: t.extend(self.I(s))
        A(f"v_and_b32 v44, 15, v0\nv_lshrrev_b32 v45, 4, v0")
        A(f"v_lshlrev_b32 v46, 12, v45\nv_lshlrev_b32 v47, 4, v44\nv_add_u32 v46, v46, v47")
        A(f"s_cmp_lt_u32 s2, 144\ns_cselect_b32 s{sTmp}, 0, {OOB:#x}\nv_add_u32 v46, s{sTmp}, v46")
        A(f"v_lshrrev_b32 v47, 1, v45\nv_xor_b32 v47, v47, v44\nv_and_b32 v47, 15, v47\nv_lshlrev_b32 v47, 4, v47\nv_lshlrev_b32 v48, 8, v45\nv_add_u32 v47, v47, v48\nv_add_u32 v47, {L_STG}, v47")
        for r in range(2):
            A(f"ds_read_b128 {vr(24+4*r)}, v47 offset:{r*8192}")
        A(f"s_lshr_b32 s{sTmp}, s2, 4\ns_mul_i32 s{sTmp}, s{sTmp}, {64*4096}\ns_and_b32 s{sTmp2}, s2, 15\ns_lshl_b32 s{sTmp2}, s{sTmp2}, 8\ns_add_u32 s{sTmp}, s{sTmp}, s{sTmp2}\ns_add_u32 s{sTmp}, s{sTmp}, {WS_KVT}")
        t.append(Inst(f"buffer_store_dwordx4 v[24:27], v46, {srd(S_WS)}, s{sTmp} offen sc1", tag="est2"))
        A(f"s_add_u32 s{sTmp}, s{sTmp}, {32*4096}")
        t.append(Inst(f"buffer_store_dwordx4 v[28:31], v46, {srd(S_WS)}, s{sTmp} offen sc1", tag="est2"))
        return t

    def g2_setup(self):
        t = []
        A = lambda s: t.extend(self.I(s))
        A(f"s_and_b32 s{sTmp}, s{sM}, 7\ns_lshl_b32 s{sTmp2}, s{sTmp}, 2\ns_add_u32 s{sTmp2}, s{sTmp2}, s{sH}\ns_mul_i32 s{sTmp2}, s{sTmp2}, 9")
        A(f"v_add_u32 v52, s{sTmp2}, v{vLane}\ns_mul_i32 s{sTmp3}, s{sJ}, 288\nv_add_u32 v53, s{sTmp3}, v52\nv_mul_u32_u24 v53, 1152, v53")
        A(f"v_cmp_gt_u32 vcc, 9, v{vLane}\nv_cndmask_b32 v53, v{vOOB}, v53, vcc\nv_cmp_gt_u32 vcc, 288, v52\nv_cndmask_b32 v{vPF2}, v{vOOB}, v53, vcc")
        A(f"s_mul_i32 s{sTmp}, s{sJ}, 288\ns_lshl_b32 s{sTmp2}, s{sW}, 3\ns_add_u32 s{sTmp}, s{sTmp}, s{sTmp2}")
        A(f"v_lshrrev_b32 v52, 3, v{vLane}\nv_add_u32 v53, s{sTmp}, v52\nv_mul_u32_u24 v53, 1152, v53")
        A(f"v_bfe_u32 v54, v{vLane}, 1, 2\nv_bfe_u32 v55, v{vLane}, 4, 1")
        A(f"s_and_b32 s{sTmp2}, s{sW}, 1\ns_lshl_b32 s{sTmp2}, s{sTmp2}, 1")
        A(f"v_or_b32 v{vD0}, s{sTmp2}, v55\nv_xor_b32 v{vD0}, v54, v{vD0}\nv_lshlrev_b32 v{vD0}, 5, v{vD0}")
        A(f"v_and_b32 v{vD5}, 1, v{vLane}\nv_lshlrev_b32 v{vD5}, 4, v{vD5}\nv_add_u32 v{vD0}, v{vD0}, v{vD5}\nv_add_u32 v{vD0}, v53, v{vD0}")
        A(f"s_lshr_b32 s{sTmp}, s{sW}, 1\ns_add_u32 s{sTmp}, s{sTmp}, 32\ns_and_b32 s{sTmp2}, s{sW}, 1")
        A(f"s_lshl_b32 s{sM5D}, s{sTmp}, 10\ns_lshl_b32 s{sTmp3}, s{sTmp2}, 9\ns_add_u32 s{sM5D}, s{sM5D}, s{sTmp3}")
        A(f"s_lshl_b32 s{sTmp3}, s{sTmp}, 3\ns_lshl_b32 s{sTmp2}, s{sTmp2}, 2\ns_add_u32 s{sTmp3}, s{sTmp3}, s{sTmp2}")
        A(f"s_mul_i32 s{sTmp2}, s{sJ}, 288\ns_add_u32 s{sTmp3}, s{sTmp3}, s{sTmp2}")
        A(f"v_add_u32 v53, s{sTmp3}, v52\nv_mul_u32_u24 v53, 1152, v53")
        A(f"s_and_b32 s{sTmp}, s{sTmp}, 1\ns_lshl_b32 s{sTmp}, s{sTmp}, 1")
        A(f"v_or_b32 v52, s{sTmp}, v55\nv_xor_b32 v52, v54, v52\nv_lshlrev_b32 v52, 5, v52\nv_add_u32 v52, v52, v{vD5}\nv_add_u32 v{vD5}, v53, v52")
        self.seg2 = len(t)
        A(f"v_bfe_u32 v52, v{vLane}, 2, 2\nv_lshlrev_b32 v53, 3, v{vQ}\nv_add_u32 v53, v53, v52\nv_lshlrev_b32 v53, 7, v53")
        A(f"v_lshrrev_b32 v54, 1, v52\nv_and_b32 v55, 1, v{vQ}\nv_lshlrev_b32 v55, 1, v55\nv_or_b32 v54, v54, v55")
        A(f"v_xor_b32 v54, s{sH}, v54\nv_lshlrev_b32 v54, 5, v54\nv_add_u32 v53, v53, v54")
        A(f"v_and_b32 v54, 3, v{vLane}\nv_lshlrev_b32 v54, 3, v54\nv_add_u32 v{vA2}, v53, v54")
        A(f"v_and_b32 v52, 1, v{vQ}\nv_lshlrev_b32 v52, 1, v52\nv_lshrrev_b32 v53, 3, v{vN}\nv_add_u32 v52, v52, v53")
        A(f"s_lshl_b32 s{sTmp}, s{sT}, 3\nv_add_u32 v52, s{sTmp}, v52\nv_lshlrev_b32 v52, 10, v52")
        A(f"v_lshrrev_b32 v53, 1, v{vQ}\nv_lshlrev_b32 v53, 7, v53\nv_and_b32 v54, 7, v{vN}\nv_lshlrev_b32 v54, 4, v54\nv_add_u32 v53, v53, v54")
        A(f"s_lshl_b32 s{sTmp}, s{sH}, 8\nv_add_u32 v53, s{sTmp}, v53\nv_add_u32 v{vP0}, v52, v53")
        A(f"s_lshl_b32 s{sPoff}, s{sM}, 4\ns_add_u32 s{sPoff}, s{sPoff}, s{sJ}\ns_mul_i32 s{sPoff}, s{sPoff}, 147456\ns_add_u32 s{sPoff}, s{sPoff}, {WS_P}")
        return t

    def e1_loads(self):
        t = []
        t += self.I(f"s_lshl_b32 s{sTmp}, s{sM}, 7\ns_lshl_b32 s{sTmp2}, s{sJ}, 3\ns_add_u32 s{sTmp}, s{sTmp}, s{sTmp2}\ns_add_u32 s{sTmp}, s{sTmp}, s{sW}\ns_mul_i32 s{sTmp}, s{sTmp}, 1152")
        t += self.I(f"v_lshlrev_b32 v52, 4, v{vLane}\nv_add_u32 v53, 1024, v52\nv_cmp_gt_u32 vcc, 8, v{vLane}\nv_cndmask_b32 v53, v{vOOB}, v53, vcc")
        t.append(Inst(f"buffer_load_dwordx4 v[24:27], v52, {srd(S_X)}, s{sTmp} offen", tag="e1"))
        t.append(Inst(f"buffer_load_dwordx4 v[28:31], v53, {srd(S_X)}, s{sTmp} offen", tag="e1"))
        return t
    def e1_compute(self):
        t = []
        A = lambda s: t.extend(self.I(s))
        A("v_mov_b32 v52, 0\nv_mov_b32 v53, 0")
        for r in range(8):
            A(f"v_lshlrev_b32 v54, 16, v{24+r}\nv_and_b32 v55, 0xffff0000, v{24+r}\nv_add_f32 v52, v52, v54\nv_fmac_f32 v53, v54, v54\nv_add_f32 v52, v52, v55\nv_fmac_f32 v53, v55, v55")
        for reg in (52, 53):
            for d in ("quad_perm:[1,0,3,2]", "quad_perm:[2,3,0,1]", "row_half_mirror", "row_mirror"):
                A(f"v_add_f32_dpp v{reg}, v{reg}, v{reg} {d} row_mask:0xf bank_mask:0xf")
            for sw in ("v_permlane16_swap_b32", "v_permlane32_swap_b32"):
                A(f"v_mov_b32 v54, v{reg}\n{sw} v{reg}, v54\nv_add_f32 v{reg}, v{reg}, v54")
        A(f"v_mul_f32 v52, {f2u(1/576):#x}, v52\nv_mul_f32 v53, {f2u(1/576):#x}, v53")
        A("v_fma_f32 v53, -v52, v52, v53\nv_max_f32 v53, 0, v53")
        A("v_cvt_pk_bf16_f32 v54, v52, v53\nv_lshlrev_b32 v52, 16, v54\nv_and_b32 v53, 0xffff0000, v54")
        A(f"v_add_f32 v53, {f2u(1e-5):#x}, v53")
        A("v_cvt_pk_bf16_f32 v53, v53, v53\nv_lshlrev_b32 v53, 16, v53\nv_sqrt_f32 v53, v53")
        A("v_cvt_pk_bf16_f32 v53, v53, v53\nv_lshlrev_b32 v53, 16, v53\nv_rcp_f32 v54, v53")
        c1 = -2.0 * math.sqrt(2.0 / math.pi) * math.log2(math.e)
        A(f"v_sub_f32 v24, 0, v52\nv_mul_f32 v25, {f2u(c1):#x}, v54")
        A(f"v_mul_f32 v26, v54, v54\nv_mul_f32 v26, v26, v54\nv_mul_f32 v26, {f2u(c1*0.044715):#x}, v26\nv_mul_f32 v27, v53, v53")
        A(f"s_lshl_b32 s{sTmp}, s{sM}, 7\ns_lshl_b32 s{sTmp2}, s{sJ}, 3\ns_add_u32 s{sTmp}, s{sTmp}, s{sTmp2}\ns_add_u32 s{sTmp}, s{sTmp}, s{sW}\ns_lshl_b32 s{sTmp}, s{sTmp}, 4\ns_add_u32 s{sTmp}, s{sTmp}, {WS_ST}")
        A(f"v_cmp_eq_u32 vcc, 0, v{vLane}\nv_cndmask_b32 v54, v{vOOB}, v{vLane}, vcc")
        t.append(Inst(f"buffer_store_dwordx4 v[24:27], v54, {srd(S_WS)}, s{sTmp} offen sc1", tag="est"))
        return t
    def e2_loads(self, r):
        t = []
        if r == 0:
            t += self.I(f"v_lshlrev_b32 v22, 4, v{vLane}\nv_cmp_gt_u32 vcc, 36, v{vLane}\nv_cndmask_b32 v22, v{vOOB}, v22, vcc")
        t += self.I(f"s_mul_i32 s{sTmp}, s{sM}, 36\ns_add_u32 s{sTmp}, s{sTmp}, s{sH}\ns_add_u32 s{sTmp}, s{sTmp}, {20*r}\ns_mul_i32 s{sTmp}, s{sTmp}, 9216\ns_mul_i32 s{sTmp2}, s{sJ}, 576\ns_add_u32 s{sTmp}, s{sTmp}, s{sTmp2}")
        n = 5 if r == 0 else 4
        for a in range(n):
            t.append(Inst(f"buffer_load_dwordx4 {vr(32+4*a)}, v22, {srd(S_W5)}, s{sTmp} offen", tag="e2"))
            if a < n - 1: t += self.I(f"s_add_u32 s{sTmp}, s{sTmp}, {4*9216}")
        return t
    def e2_compute(self, r):
        t = []
        n = 5 if r == 0 else 4
        for a in range(n):
            for q in range(4):
                s = 32 + 4 * a + q
                if r == 0 and a == 0:
                    t += self.I(f"v_lshlrev_b32 v{24+2*q}, 16, v{s}\nv_and_b32 v{25+2*q}, 0xffff0000, v{s}")
                else:
                    t += self.I(f"v_lshlrev_b32 v54, 16, v{s}\nv_and_b32 v55, 0xffff0000, v{s}\nv_add_f32 v{24+2*q}, v{24+2*q}, v54\nv_add_f32 v{25+2*q}, v{25+2*q}, v55")
        return t
    def e2_add(self):
        t = self.I(f"s_mul_i32 s{sTmp}, s{sW}, 1152\ns_add_u32 s{sTmp}, s{sTmp}, {L_KVL}\nv_lshlrev_b32 v54, 5, v{vLane}\nv_add_u32 v54, s{sTmp}, v54")
        t += self.I(f"v_lshlrev_b32 v55, 5, v{vLane}\nv_and_b32 v55, 0x3ff, v55\nv_add_u32 v55, {L_DUMMY}, v55\nv_cmp_gt_u32 vcc, 36, v{vLane}\nv_cndmask_b32 v54, v55, v54, vcc")
        t += self.I(f"ds_write_b128 v54, v[24:27]\nds_write_b128 v54, v[28:31] offset:16")
        return t
    def e2_store(self):
        t = self.I(f"v_cmp_lt_u32 vcc, 71, v0\nv_cndmask_b32 v52, 0, 1, vcc\nv_mul_u32_u24 v53, 72, v52\nv_sub_u32 v53, v0, v53")
        t += self.I(f"v_mul_u32_u24 v52, {4*1152}, v52\nv_lshlrev_b32 v53, 4, v53\nv_add_u32 v53, v53, v52\nv_add_u32 v53, {L_KVL}, v53")
        t += self.I(f"v_lshlrev_b32 v54, 2, v{vLane}\nv_and_b32 v54, 0xf0, v54\nv_add_u32 v54, {L_DUMMY}, v54\nv_cmp_gt_u32 vcc, 144, v0\nv_cndmask_b32 v53, v{vDum}, v53, vcc" if False else f"v_mov_b32 v54, {L_KVL}\nv_cmp_gt_u32 vcc, 144, v0\nv_cndmask_b32 v53, v54, v53, vcc")
        for k in range(4):
            t += self.I(f"ds_read_b128 {vr(32+4*k)}, v53 offset:{k*1152}")
        for k in range(1, 4):
            for e in range(4): t += self.I(f"v_add_f32 v{32+e}, v{32+e}, v{32+4*k+e}")
        t += self.I(f"v_lshlrev_b32 v52, 4, v0\nv_cndmask_b32 v52, v{vOOB}, v52, vcc")
        t += self.I(f"s_lshl_b32 s{sTmp}, s{sJ}, 4\ns_add_u32 s{sTmp}, s{sTmp}, s{sM}\ns_mul_i32 s{sTmp}, s{sTmp}, 2304\ns_add_u32 s{sTmp}, s{sTmp}, {WS_CSP}")
        t.append(Inst(f"buffer_store_dwordx4 v[32:35], v52, {srd(S_WS)}, s{sTmp} offen sc1", tag="est"))
        return t
    E3K, E3V, E3W = 80, 94, 102
    def e3_base(self, dst, t):
        A = lambda s: t.extend(self.I(s))
        A(f"s_and_b32 s{sTmp}, s2, 15\ns_lshl_b32 s{sTmp}, s{sTmp}, 7\ns_lshr_b32 s{sTmp2}, s2, 4\ns_lshl_b32 s{sTmp2}, s{sTmp2}, 7")
        A(f"v_lshrrev_b32 v{dst}, 4, v0\nv_lshlrev_b32 v{dst}, 2, v{dst}\nv_add_u32 v{dst}, s{sTmp}, v{dst}\nv_mul_u32_u24 v{dst}, 1152, v{dst}")
        A(f"v_and_b32 v{dst+1}, 15, v0\nv_lshlrev_b32 v{dst+1}, 3, v{dst+1}\nv_add_u32 v{dst+1}, s{sTmp2}, v{dst+1}\nv_add_u32 v{dst}, v{dst}, v{dst+1}")
        A(f"s_cmp_lt_u32 s2, 144\ns_cselect_b32 s{sTmp}, 0, {OOB:#x}\nv_add_u32 v{dst}, s{sTmp}, v{dst}")
    def t0srd(self, ka, n):
        k = sKA + ka // 4
        return self.I(f"s_mov_b32 s{S_T0}, s{k}\ns_and_b32 s{S_T0+1}, s{k+1}, 0xffff\ns_mov_b32 s{S_T0+2}, {n}\ns_mov_b32 s{S_T0+3}, 0x20000")
    def e3_prefetch(self):
        t = []
        A = lambda s: t.extend(self.I(s))
        A(f"s_and_b32 s{sTmp}, s2, 15\ns_lshl_b32 s{sTmp}, s{sTmp}, 7\ns_lshl_b32 s{sTmp2}, s{sH}, 5\ns_add_u32 s{sTmp}, s{sTmp}, s{sTmp2}\ns_lshr_b32 s{sTmp2}, s2, 4\ns_lshl_b32 s{sTmp2}, s{sTmp2}, 7")
        A(f"v_add_u32 v34, s{sTmp}, v{vLane}\nv_subrev_u32 v34, 3, v34\ns_movk_i32 s{sTmp3}, 1152\nv_mul_lo_u32 v34, v34, s{sTmp3}\nv_add_u32 v34, s{sTmp2}, v34")
        A(f"v_cmp_gt_u32 vcc, 9, v{vLane}\nv_cndmask_b32 v34, v{vOOB}, v34, vcc\ns_cmp_lt_u32 s2, 144\ns_cselect_b32 s{sTmp}, 0, {OOB:#x}\nv_or_b32 v34, s{sTmp}, v34")
        units = []
        for part in range(4):
            for ka in (8, 16):
                u = self.t0srd(ka, 2359296) + [self.nodef(f"buffer_load_dword v{vDum}, v34, {srd(S_T0)}, 0 offen", "pf")]
                if ka == 16 and part < 3: u += self.I(f"v_add_u32 v34, {9*1152}, v34")
                units.append(u)
        return t, units
    def e3_loads(self):
        t = []
        K0, V0, W0 = self.E3K, self.E3V, self.E3W
        self.e3_base(52, t)
        t += self.t0srd(8, 2359296)
        for r in range(3):
            t += self.I(f"v_subrev_u32 v54, {(3-r)*1152}, v52")
            t.append(Inst(f"buffer_load_dwordx2 {vr(K0+2*r,2)}, v54, {srd(S_T0)}, 0 offen", tag="e3"))
        for r in range(3, 7):
            t.append(Inst(f"buffer_load_dwordx2 {vr(K0+2*r,2)}, v52, {srd(S_T0)}, 0 offen offset:{(r-3)*1152}", tag="e3"))
        t += self.t0srd(16, 2359296)
        for i in range(4):
            t.append(Inst(f"buffer_load_dwordx2 {vr(V0+2*i,2)}, v52, {srd(S_T0)}, 0 offen offset:{1152*i}", tag="e3"))
        t += self.t0srd(24, 4608)
        t += self.I(f"s_lshr_b32 s{sTmp2}, s2, 4\ns_lshl_b32 s{sTmp2}, s{sTmp2}, 9\nv_and_b32 v54, 15, v0\nv_lshlrev_b32 v54, 5, v54\nv_add_u32 v54, s{sTmp2}, v54")
        t.append(Inst(f"buffer_load_dwordx4 {vr(W0)}, v54, {srd(S_T0)}, 0 offen", tag="e3"))
        t.append(Inst(f"buffer_load_dwordx4 {vr(W0+4)}, v54, {srd(S_T0)}, 0 offen offset:16", tag="e3"))
        return t
    def e3_compute(self):
        p = self.p
        K0, V0, W0 = self.E3K, self.E3V, self.E3W
        for c in range(4):
            p(f"v_lshlrev_b32 v{136+4*c}, 16, v{W0+2*c}\nv_and_b32 v{137+4*c}, 0xffff0000, v{W0+2*c}")
            p(f"v_lshlrev_b32 v{138+4*c}, 16, v{W0+2*c+1}\nv_and_b32 v{139+4*c}, 0xffff0000, v{W0+2*c+1}")
        for r in range(7):
            p(f"v_lshlrev_b32 v{152+4*r}, 16, v{K0+2*r}\nv_and_b32 v{153+4*r}, 0xffff0000, v{K0+2*r}")
            p(f"v_lshlrev_b32 v{154+4*r}, 16, v{K0+2*r+1}\nv_and_b32 v{155+4*r}, 0xffff0000, v{K0+2*r+1}")
        for i in range(4):
            p(f"v_lshlrev_b32 v{180+4*i}, 16, v{V0+2*i}\nv_and_b32 v{181+4*i}, 0xffff0000, v{V0+2*i}")
            p(f"v_lshlrev_b32 v{182+4*i}, 16, v{V0+2*i+1}\nv_and_b32 v{183+4*i}, 0xffff0000, v{V0+2*i+1}")
        for c in range(4):
            for i in range(4): p(f"v_mul_f32 v{200+4*c+i}, v{152+4*(3+i)+c}, v{136+4*c}")
        for jj in range(1, 4):
            for c in range(4):
                for i in range(4): p(f"v_fmac_f32 v{200+4*c+i}, v{152+4*(3+i-jj)+c}, v{136+4*c+jj}")
        for c in range(4):
            for i in range(4): p(f"v_mul_f32 v{200+4*c+i}, v{200+4*c+i}, v{180+4*i+c}")
        for c in range(4):
            p(f"v_cvt_pk_bf16_f32 v{24+2*c}, v{200+4*c}, v{201+4*c}\nv_cvt_pk_bf16_f32 v{25+2*c}, v{202+4*c}, v{203+4*c}")
    def e3_kvl_write(self):
        p = self.p
        p(f"v_and_b32 v32, 15, v0\nv_lshrrev_b32 v33, 5, v0\nv_xor_b32 v33, v33, v32\nv_lshlrev_b32 v33, 4, v33\nv_lshlrev_b32 v32, 10, v32\nv_add_u32 v32, v32, v33")
        p(f"v_bfe_u32 v33, v0, 4, 1\nv_lshlrev_b32 v33, 3, v33\nv_add_u32 v32, v32, v33\nv_add_u32 v32, {L_STG}, v32")
        for c in range(4): p(f"ds_write_b64 v32, {vr(24+2*c,2)} offset:{c*256}")
    def e3_store(self):
        t = []
        A = lambda s: t.extend(self.I(s))
        A(f"v_and_b32 v5, 255, v0\nv_and_b32 v6, 15, v5\nv_lshrrev_b32 v8, 4, v5")
        A(f"v_lshlrev_b32 v9, 12, v8\nv_lshlrev_b32 v10, 4, v6\nv_add_u32 v9, v9, v10")
        A(f"s_cmp_lt_u32 s2, 144\ns_cselect_b32 s{sTmp}, 0, {OOB:#x}\nv_add_u32 v9, s{sTmp}, v9")
        A(f"v_lshrrev_b32 v10, 6, v5\nv_lshlrev_b32 v8, 8, v8\nv_add_u32 v8, {L_STG}, v8")
        for r in range(4):
            A(f"v_add_u32 v11, {4*r}, v10\nv_xor_b32 v11, v11, v6\nv_and_b32 v11, 15, v11\nv_lshlrev_b32 v11, 4, v11\nv_add_u32 v11, v11, v8")
            A(f"ds_read_b128 {vr(24+4*r)}, v11 offset:{r*4096}")
        A(f"s_lshr_b32 s{sTmp}, s2, 4\ns_mul_i32 s{sTmp}, s{sTmp}, {64*4096}\ns_and_b32 s{sTmp2}, s2, 15\ns_lshl_b32 s{sTmp2}, s{sTmp2}, 8\ns_add_u32 s{sTmp}, s{sTmp}, s{sTmp2}\ns_add_u32 s{sTmp}, s{sTmp}, {WS_KVT}")
        for r in range(4):
            u = [Inst(f"buffer_store_dwordx4 {vr(24+4*r)}, v9, {srd(S_WS)}, s{sTmp} offen sc1", tag="est2")]
            if r < 3: u += self.I(f"s_add_u32 s{sTmp}, s{sTmp}, {16*4096}")
            t.append(u)
        return t

    def signal(self, which, ra=52, rb=53):
        if which == S1: idx = f"s_lshl_b32 s{sTmp2}, s{sM}, 4\ns_add_u32 s{sTmp2}, s{sTmp2}, s{sJ}\ns_lshl_b32 s{sTmp2}, s{sTmp2}, 2"
        else: idx = f"s_lshl_b32 s{sTmp2}, s2, 2"
        return self.set_flag(idx + f"\ns_add_u32 s{sTmp2}, s{sTmp2}, {WS_FLAG + which}", "sig", ra, rb)
    def nonce_issue(self, reg):
        return self.I(f"v_mov_b32 v{reg}, 0") + [Inst(f"buffer_load_dword v{reg}, v{reg}, {srd(S_DBG)}, 0 offen sc1", tag="poll")]
    def nonce_check(self, reg):
        L = self.label("spin"); D = self.label("spind")
        out = self.I(f"v_readfirstlane_b32 s{sNonce}, v{reg}\ns_cmp_lg_u32 s{sNonce}, 0\ns_cbranch_scc1 {D}")
        out += self.I(f"s_mov_b32 s{sTmp2}, 0x20000")
        sp = [Inst(f"{L}:")]
        sp += self.I(f"s_sleep 4\nv_mov_b32 v{reg}, 0\nbuffer_load_dword v{reg}, v{reg}, {srd(S_DBG)}, 0 offen sc1\ns_waitcnt vmcnt(0)\nv_readfirstlane_b32 s{sNonce}, v{reg}\ns_sub_u32 s{sTmp2}, s{sTmp2}, 1\ns_cmp_eq_u32 s{sTmp2}, 0\ns_cbranch_scc1 {D}\ns_cmp_eq_u32 s{sNonce}, 0\ns_cbranch_scc1 {L}")
        for x in sp: x.opaque = True
        out += sp + [Inst(f"{D}:")]
        return out
    def fpoll_issue(self, addr_insts, ra, rv, tag="poll"):
        return self.I(addr_insts) + self.I(f"s_mov_b32 s{sTmp}, {WS_FLAG}") + [Inst(f"buffer_load_dword v{rv}, v{ra}, {srd(S_WS)}, s{sTmp} offen sc1", tag=tag)]
    def fpoll_check(self, ra, rv):
        L = self.label("spin"); D = self.label("spind")
        out = self.I(f"v_readfirstlane_b32 s{sTmp}, v{rv}\nv_cmp_ne_u32 vcc, s{sNonce}, v{rv}\ns_cmp_eq_u64 vcc, 0\ns_cbranch_scc1 {D}")
        out += self.I(f"s_mov_b32 s{sTmp2}, 0x20000\ns_mov_b32 s{sTmp}, {WS_FLAG}")
        sp = [Inst(f"{L}:")]
        sp += self.I(f"s_sleep 4\nbuffer_load_dword v{rv}, v{ra}, {srd(S_WS)}, s{sTmp} offen sc1\ns_waitcnt vmcnt(0)\nv_cmp_ne_u32 vcc, s{sNonce}, v{rv}\ns_nop 4\ns_sub_u32 s{sTmp2}, s{sTmp2}, 1\ns_cmp_eq_u32 s{sTmp2}, 0\ns_cbranch_scc1 {D}\ns_cmp_lg_u64 vcc, 0\ns_cbranch_scc1 {L}")
        for x in sp: x.opaque = True
        out += sp + [Inst(f"{D}:")]
        return out
    def s1_addr(self, ra):
        return (f"s_lshl_b32 s{sTmp2}, s{sM}, 4\nv_add_u32 v{ra}, s{sTmp2}, v{vN}\nv_lshlrev_b32 v{ra+1}, 4, v{vN}\nv_add_u32 v{ra+1}, s{sJ}, v{ra+1}\n"
                f"v_cmp_gt_u32 vcc, 16, v{vLane}\nv_cndmask_b32 v{ra}, v{ra+1}, v{ra}, vcc\nv_lshlrev_b32 v{ra}, 2, v{ra}\nv_add_u32 v{ra}, {S1}, v{ra}")
    def s2_addr(self, ra):
        return (f"s_mul_i32 s{sTmp2}, s{sCW}, 3\ns_add_u32 s{sTmp3}, s{sTmp2}, 2\ns_lshr_b32 s{sTmp2}, s{sTmp2}, 6\ns_lshr_b32 s{sTmp3}, s{sTmp3}, 6\n"
                f"s_lshl_b32 s{sTmp2}, s{sTmp2}, 4\ns_lshl_b32 s{sTmp3}, s{sTmp3}, 4\nv_add_u32 v{ra}, s{sTmp2}, v{vN}\nv_add_u32 v{ra+1}, s{sTmp3}, v{vN}\n"
                f"v_cmp_gt_u32 vcc, 16, v{vLane}\nv_cndmask_b32 v{ra}, v{ra+1}, v{ra}, vcc\nv_lshlrev_b32 v{ra}, 2, v{ra}\nv_add_u32 v{ra}, {S2}, v{ra}")

    def emit_step(self, mf, pre):
        p = self.p
        for i, m in enumerate(mf):
            for x in pre.get(i, []): p.add(x)
            p.add(m)
        for x in pre.get(len(mf), []): p.add(x)

    def slot_advance(self, regs, frm, to):
        d = ((to % 3) - (frm % 3)) * SLOT
        if d > 0: return [Inst(f"v_add_u32 v{r}, {d}, v{r}") for r in regs]
        return [Inst(f"v_subrev_u32 v{r}, {-d}, v{r}") for r in regs]

    G1_START = [0, 2, 4, 8, 12, 16, 20, 24, 28, 32]
    G1_READ = [-6, -4, -2, 2, 6, 10, 13, 16, 18, 20]
    BARSLOT = 28
    def frbuf(self, idx):
        fb = self.opt["frbuf"] or [FR0 + 4 * i for i in range(NFR)]
        return fb[idx % len(fb)]
    def g1_frag_reads(self, s, fi):
        buf = self.frbuf(s * 10 + fi)
        if fi < 2: base, off = vAS, fi * 18432
        else:
            a = (fi - 2) // 2; ten = (fi - 2) % 2
            base = vAE if a % 2 == 0 else vAO
            off = ten * 18432 + (a >> 1) * 64
        return [Inst(f"ds_read_b64_tr_b16 {vr(buf,2)}, v{base} offset:{off}"),
                Inst(f"ds_read_b64_tr_b16 {vr(buf+2,2)}, v{base} offset:{off + 2304}")]
    def g1_b_reads(self, s):
        return [Inst(f"ds_read_b128 {vr(BFR[s % 2] + 4*i)}, v{vB if i < 2 else vB2} offset:{(s % 3) * 8192 + i * 1024}") for i in range(4)]
    def g1_mfmas(self, s):
        out = []
        B = BFR[s % 2]
        for fi in range(10):
            buf = self.frbuf(s * 10 + fi)
            if fi < 2: lst = [(k, acc_sh(fi, k)) for k in range(2)]
            else:
                a = (fi - 2) // 2; ten = (fi - 2) % 2
                lst = [(i, acc_own(a, ten, i)) for i in range(4)]
            for (i, acc) in lst:
                c = "0" if s == 0 else vr(acc)
                out.append(Inst(f"v_mfma_f32_16x16x32_bf16 {vr(acc)}, {vr(buf)}, {vr(B + 4*i)}, {c}"))
        return out

    vC1, vC2 = 22, 23
    def gelu_pair(self, G, U, T):
        o = []
        for i in range(4): o.append(f"v_mul_f32 v{T+i}, v{G+i}, v{G+i}")
        for i in range(4): o.append(f"v_fma_f32 v{T+i}, v{T+i}, v{self.vC2}, v{self.vC1}")
        for i in range(4): o.append(f"v_mul_f32 v{T+i}, v{T+i}, v{G+i}")
        for i in range(4): o.append(f"v_exp_f32 v{T+i}, v{T+i}")
        for i in range(4): o.append(f"v_mul_f32 v{U+i}, v{G+i}, v{U+i}")
        for i in range(4): o.append(f"v_add_f32 v{T+i}, 1.0, v{T+i}")
        for i in range(4): o.append(f"v_rcp_f32 v{T+i}, v{T+i}")
        for i in range(4): o.append(f"v_mul_f32 v{U+i}, v{U+i}, v{T+i}")
        o.append(f"v_cvt_pk_bf16_f32 v{G}, v{U}, v{U+1}")
        o.append(f"v_cvt_pk_bf16_f32 v{G+1}, v{U+2}, v{U+3}")
        return [Inst(x) for x in o]

    def consts_loads(self):
        ld = []
        ld += self.I(f"s_lshl_b32 s{sTmp}, s{sM}, 7\ns_lshl_b32 s{sTmp2}, s{sT}, 6\ns_add_u32 s{sTmp}, s{sTmp}, s{sTmp2}\ns_lshl_b32 s{sTmp}, s{sTmp}, 4\ns_add_u32 s{sTmp}, s{sTmp}, {WS_ST}")
        ld += self.I(f"v_lshlrev_b32 v22, 4, v{vN}\ns_lshl_b32 s{sTmp3}, s{sE2}, 1")
        for i in range(4):
            ld += self.I(f"s_xor_b32 s{sTmp2}, s{sTmp3}, {i}\ns_lshl_b32 s{sTmp2}, s{sTmp2}, 8\ns_add_u32 s{sTmp2}, s{sTmp2}, s{sTmp}")
            ld.append(Inst(f"buffer_load_dwordx4 {vr(vK0+4*i)}, v22, {srd(S_WS)}, s{sTmp2} offen sc1", tag="kc"))
        return ld
    def g1(self):
        p = self.p
        p.waitvm("tile0"); p.waitvm("x0"); p.waitlg(); p("s_barrier")
        for i in self.g1_b_reads(0): p.add(i)
        G1R = self.opt["g1read"] or self.G1_READ
        npre = sum(1 for r in G1R if r < 0)
        for fi in range(npre):
            for i in self.g1_frag_reads(0, fi): p.add(i)
        self.stamp("g1start")
        p(f"s_cmp_ge_u32 s{sW}, 4\ns_cbranch_scc1 L_g1B")
        p.save()
        self.cls = "A"; self.g1_version("A")
        p("s_branch L_g1end")
        p("L_g1B:")
        p.restore()
        self.cls = "B"; self.g1_version("B")
        p("L_g1end:")
        self.cls = None

    def g1_version(self, cls):
        p = self.p
        G1R = self.opt["g1read"] or self.G1_READ
        BAR = self.opt["barslot"]
        npre = sum(1 for r in G1R if r < 0)
        plan = {s: [] for s in range(18)}
        g2s = self.g2_setup()
        if cls == "B":
            plan[0] += [u for u in ([self.pf_x(1), self.pf_x(2)] + [self.pf_tile(t) for t in range(3, self.PFD)]) if u]
        plan[1] += g2s[:12]
        plan[2] += g2s[12:self.seg2]
        plan[3] += g2s[self.seg2:]
        if self.opt["prio"] and cls == "A": p("s_setprio 1")
        carry = []
        for s in range(18):
            pre = {}
            def put(slot, insts): pre.setdefault(slot, []).extend(insts)
            def spread(insts, lo, hi):
                insts = [x for x in insts if not (isinstance(x, list) and not x)]
                n = len(insts)
                for k, x in enumerate(insts): put(lo + (k * (hi - lo + 1)) // n, x if isinstance(x, list) else [x])
            for fi in range(npre, 10): put(G1R[fi], self.g1_frag_reads(s, fi))
            if carry: spread(carry, *self.opt["vmcarry"]); carry = []
            if plan[s]: spread(self.atomize(plan[s]), 1, 26)
            w = [Inst("WAITLG")]
            if s + 1 < 18 and cls == "A":
                for tg in (f"tile{s+1}", f"x{s+1}"):
                    wv = Inst("WAITVM"); wv.tag = tg; w.append(wv)
            w.append(Inst("s_barrier"))
            put(BAR, w)
            if s + 1 < 18:
                put(BAR, self.slot_advance([vAS, vAE, vAO], s, s + 1))
                br = self.g1_b_reads(s + 1)
                put(self.opt["breadslot"][0], br[:2]); put(self.opt["breadslot"][1], br[2:])
                for fi in range(npre): put(36 + G1R[fi], self.g1_frag_reads(s + 1, fi))
            vm = []
            if cls == "A":
                if s + 3 < 18: vm += self.dma_x(s + 3) + self.dma_tile(s + 3)
                elif s + 3 < 20: vm += self.dma_tileA(s + 3)
            else:
                if s + self.PFD < 18: vm.append(self.pf_tile(s + self.PFD))
                if s in (9, 10): vm.append(self.pf_tile(s + 9))
                if s % 2 == 0 and self.pf_x(s // 2 + 3): vm.append(self.pf_x(s // 2 + 3))
                vm = [u for u in vm if u]
            if vm:
                nfirst = min(3, len(vm))
                spread(vm[:nfirst], *self.opt["vmfirst"]); carry = vm[nfirst:]
            put(0, self.stamp_i(f"st{s}"))
            self.emit_step(self.g1_mfmas(s), pre)
        self.add_units(carry)
        if self.opt["prio"] and cls == "A": p("s_setprio 0")

    def atomize(self, insts):
        out = []; i = 0
        while i < len(insts):
            x = insts[i]
            if isinstance(x, list):
                out.append(x); i += 1; continue
            if x.op.startswith("v_readfirstlane") and any((not isinstance(y, list)) and y.kind == "branch" for y in insts[i+1:i+5]):
                j = i
                while not (insts[j].kind == "label" and insts[j].text.startswith("L_spind")): j += 1
                out.append(insts[i:j+1]); i = j + 1; continue
            if x.op.startswith("s_cmp") or (x.op == "s_add_u32" and i + 1 < len(insts) and not isinstance(insts[i+1], list) and insts[i+1].op == "s_addc_u32"):
                j = i + 1
                while j < len(insts) and not isinstance(insts[j], list) and (insts[j].op.startswith("s_cselect") or insts[j].op.startswith("s_addc") or insts[j].kind == "branch"): j += 1
                out.append(insts[i:j]); i = j; continue
            out.append(x); i += 1
        return out

    def cs_ld0(self):
        ld = self.I(f"v_lshlrev_b32 v23, 3, v0\nv_cmp_gt_u32 vcc, 288, v0\nv_cndmask_b32 v23, v{vOOB}, v23, vcc")
        ld += self.I(f"s_mul_i32 s{sCS}, s{sJ}, {16*2304}\ns_add_u32 s{sCS}, s{sCS}, {WS_CSP}")
        for mm in range(8):
            ld.append(Inst(f"buffer_load_dwordx2 {vr(40+2*mm,2)}, v23, {srd(S_WS)}, s{sCS} offen sc1", tag="cs"))
            ld += self.I(f"s_add_u32 s{sCS}, s{sCS}, 2304")
        return ld
    def cs_ld1(self):
        t = []
        for mm in range(1, 8): t += self.I(f"v_add_f32 v40, v40, v{40+2*mm}\nv_add_f32 v41, v41, v{41+2*mm}")
        for mm in range(7):
            t.append(Inst(f"buffer_load_dwordx2 {vr(42+2*mm,2)}, v23, {srd(S_WS)}, s{sCS} offen sc1", tag="cs"))
            t += self.I(f"s_add_u32 s{sCS}, s{sCS}, 2304")
        t.append(Inst(f"buffer_load_dword v21, v23, {srd(S_WS)}, s{sCS} offen sc1", tag="cs"))
        t.append(Inst(f"buffer_load_dword v22, v23, {srd(S_WS)}, s{sCS} offen offset:4 sc1", tag="cs"))
        return t
    vCSa, vCSs = 22, 23
    def cs_sum(self):
        t = []
        for mm in range(7): t += self.I(f"v_add_f32 v40, v40, v{42+2*mm}\nv_add_f32 v41, v41, v{43+2*mm}")
        t += self.I(f"v_add_f32 v40, v40, v21\nv_add_f32 v41, v41, v22")
        t += self.I(f"v_lshlrev_b32 v42, 3, v0\nv_add_u32 v42, {L_CS}, v42\nv_lshlrev_b32 v43, 3, v{vLane}\nv_add_u32 v43, {L_DUMMY}, v43\nv_cmp_gt_u32 vcc, 288, v0\nv_cndmask_b32 v42, v43, v42, vcc")
        t += self.I(f"ds_write_b64 v42, v[40:41]")
        t += self.I(f"v_lshlrev_b32 v43, 4, v{vQ}\ns_lshl_b32 s{sTmp}, s{sH}, 8\ns_add_u32 s{sTmp}, s{sTmp}, {L_CS}\nv_add_u32 v{self.vCSa}, s{sTmp}, v43")
        t += self.I(f"s_lshr_b32 s{sTmp}, s{sH}, 1\ns_lshl_b32 s{sTmp}, s{sTmp}, 6\ns_add_u32 s{sTmp}, s{sTmp}, {L_CS + 1024}\nv_add_u32 v{self.vCSs}, s{sTmp}, v43")
        return t

    def gelu_tail(self):
        p = self.p
        self.add_units(self.e3_loads())
        tl = []
        for t_ in range(20, 27): tl += self.pf_tile(t_)
        k_ = sKA + 32 // 4
        tl += self.I(f"s_min_u32 s{sTmp}, s2, 191\ns_mul_i32 s{sTmp}, s{sTmp}, {3*4096}\ns_add_u32 s{S_T0}, s{k_}, s{sTmp}\ns_addc_u32 s{S_T0+1}, s{k_+1}, 0\ns_and_b32 s{S_T0+1}, s{S_T0+1}, 0xffff\ns_mov_b32 s{S_T0+2}, {3*4096}\ns_mov_b32 s{S_T0+3}, 0x20000")
        tl += self.I(f"s_lshl_b32 s{sTmp}, s{sH}, 5\nv_add_u32 v34, s{sTmp}, v{vLane}\nv_lshlrev_b32 v34, 7, v34\nv_cmp_gt_u32 vcc, 32, v{vLane}\nv_cndmask_b32 v34, v{vOOB}, v34, vcc")
        tl += [self.nodef(f"buffer_load_dword v{vDum}, v34, {srd(S_T0)}, 0 offen", "pf")]
        for x in self.onlyB(tl): p.add(x)
        HR = 54
        HW = [56, 57, 58, 59]
        HWS = 60
        p(f"v_bfe_u32 v40, v{vN}, 1, 2")
        p(f"s_lshl_b32 s{sTmp}, s{sT}, 6\nv_add_u32 v41, s{sTmp}, v{vN}\nv_mul_u32_u24 v41, 576, v41")
        p(f"v_xor_b32 v42, v{vQ}, v40\nv_lshlrev_b32 v42, 4, v42\nv_add_u32 v{HR}, v41, v42\nv_add_u32 v{HR}, {L_H}, v{HR}")
        p(f"v_and_b32 v42, 1, v{vQ}\nv_lshlrev_b32 v42, 3, v42\nv_add_u32 v41, v41, v42\nv_add_u32 v41, {L_H}, v41")
        p(f"v_lshrrev_b32 v42, 1, v{vQ}")
        p(f"s_lshl_b32 s{sTmp}, s{sH}, 7\ns_mul_i32 s{sTmp2}, s{sE2}, {2*9216}")
        p(f"v_xor_b32 v43, v42, v40\nv_lshlrev_b32 v43, 4, v43\nv_add_u32 v43, v41, v43\nv_add_u32 v43, s{sTmp}, v43")
        p(f"v_add_u32 v{HW[0]}, s{sTmp2}, v43\nv_subrev_u32 v{HW[1]}, s{sTmp2}, v43")
        p(f"v_add_u32 v43, 2, v42\nv_xor_b32 v43, v43, v40\nv_lshlrev_b32 v43, 4, v43\nv_add_u32 v43, v41, v43\nv_add_u32 v43, s{sTmp}, v43")
        p(f"v_add_u32 v{HW[2]}, s{sTmp2}, v43\nv_subrev_u32 v{HW[3]}, s{sTmp2}, v43")
        p(f"s_lshr_b32 s{sTmp}, s{sH}, 1\ns_lshl_b32 s{sTmp}, s{sTmp}, 1")
        p(f"v_add_u32 v43, s{sTmp}, v42\nv_xor_b32 v43, v43, v40\nv_lshlrev_b32 v43, 4, v43\nv_add_u32 v43, v41, v43")
        p(f"s_add_u32 s{sTmp2}, s{sTmp2}, 512\nv_add_u32 v{HWS}, s{sTmp2}, v43")
        c1 = -2.0 * math.sqrt(2.0 / math.pi) * math.log2(math.e)
        p(f"v_mov_b32 v{self.vC1}, {f2u(c1):#x}\nv_mov_b32 v{self.vC2}, {f2u(c1 * 0.044715):#x}")
        Ts = [44, 48, 64, 68]
        k = 0
        for kk in range(2):
            G, U = acc_sh(0, kk), acc_sh(1, kk)
            for i in self.gelu_pair(G, U, Ts[k % 4]): p.add(i)
            p(f"ds_write_b64 v{HWS}, {vr(G,2)} offset:{kk * 9216}"); k += 1
        for a in range(4):
            for i in range(4):
                G, U = acc_own(a, 0, i), acc_own(a, 1, i)
                for x in self.gelu_pair(G, U, Ts[k % 4]): p.add(x)
                base = (HW[0] if i < 2 else HW[1]) if a % 2 == 0 else (HW[2] if i < 2 else HW[3])
                p(f"ds_write_b64 v{base}, {vr(G,2)} offset:{i * 9216 + (a >> 1) * 64}"); k += 1
        self.stamp("gelu")
        self.e3_compute()
        self.e3_kvl_write()
        p.waitlg(); p.waitvm("tile18"); p.waitvm("tile19"); p("s_barrier")
        self.HR = HR

    G2_READ = [-6, -2, 2, 6, 10, 13, 16, 18, 20]
    def g2_frag_reads(self, c, s):
        buf = FR0 + 4 * ((c * 9 + s) % NFR)
        return [Inst(f"ds_read_b64_tr_b16 {vr(buf,2)}, v{vA2} offset:{s * 4096}"),
                Inst(f"ds_read_b64_tr_b16 {vr(buf+2,2)}, v{vA2} offset:{s * 4096 + 512}")]
    def h_reads(self, s):
        return [Inst(f"ds_read_b128 {vr(ACC + 4*(tt*9+s))}, v{self.HR} offset:{tt * 9216 + s * 64}") for tt in range(4)]
    def g2_mfmas(self, c):
        out = []
        A2 = BFR[c % 2]
        for s in range(9):
            buf = FR0 + 4 * ((c * 9 + s) % NFR)
            for tt in range(4):
                acc = A2 + 4 * tt
                cc = "0" if s == 0 else vr(acc)
                out.append(Inst(f"v_mfma_f32_16x16x32_bf16 {vr(acc)}, {vr(buf)}, {vr(ACC + 4*(tt*9+s))}, {cc}"))
        return out
    def g2_epilogue(self, c):
        A2 = BFR[c % 2]; T = TMP
        o = []
        for tt in range(4):
            o.append(Inst(f"v_cvt_pk_bf16_f32 v{T+2*tt}, v{A2+4*tt}, v{A2+4*tt+1}"))
            o.append(Inst(f"v_cvt_pk_bf16_f32 v{T+2*tt+1}, v{A2+4*tt+2}, v{A2+4*tt+3}"))
        for pr in range(2):
            o.append(Inst(f"v_permlane16_swap_b32 v{T+4*pr}, v{T+4*pr+2}"))
            o.append(Inst(f"v_permlane16_swap_b32 v{T+4*pr+1}, v{T+4*pr+3}"))
        st = []
        for pr in range(2):
            u = [Inst(f"s_add_u32 s{sEP}, s{sPoff}, {c * 16384 + pr * 4096}")]
            if not self.opt["nostore"]:
                u.append(Inst(f"buffer_store_dwordx4 {vr(T+4*pr)}, v{vP0}, {srd(S_WS)}, s{sEP} offen {self.opt['stflags']}", tag=f"pst{c}"))
            st.append(u)
        return o, st
    def set_flag(self, addr_insts, tag, ra=48, rb=49):
        return self.I(addr_insts) + self.I(f"v_cmp_eq_u32 vcc, 0, v0\nv_cndmask_b32 v{ra}, v{vOOB}, v0, vcc\nv_mov_b32 v{rb}, s{sNonce}") + \
               [Inst(f"buffer_store_dword v{rb}, v{ra}, {srd(S_WS)}, s{sTmp2} offen sc1", tag=tag)]
    def flag_addr(self, which):
        return f"s_lshl_b32 s{sTmp2}, s{sM}, 7\ns_lshl_b32 s{sTmp3}, s{sJ}, 2\ns_add_u32 s{sTmp2}, s{sTmp2}, s{sTmp3}\ns_add_u32 s{sTmp2}, s{sTmp2}, {WS_FLAG + which}"

    def conv_h_loads(self):
        t = []
        A = lambda s: t.extend(self.I(s))
        A(f"s_min_u32 s{sCW}, s2, 191")
        A(f"v_and_b32 v21, 255, v0\nv_lshlrev_b32 v21, 4, v21\nv_subrev_u32 v22, 16, v21")
        k = sKA + 32 // 4
        for (r, chx) in ((0, f"s_mul_i32 s{sTmp}, s{sCW}, 3\ns_add_u32 s{sTmp}, s{sTmp}, s{sT}"), (1, f"s_mul_i32 s{sTmp}, s{sCW}, 3\ns_add_u32 s{sTmp}, s{sTmp}, 2")):
            u = self.I(chx) + self.I(f"s_lshl_b32 s{sTmp}, s{sTmp}, 12\ns_add_u32 s{S_T0}, s{k}, s{sTmp}\ns_addc_u32 s{S_T0+1}, s{k+1}, 0\ns_and_b32 s{S_T0+1}, s{S_T0+1}, 0xffff\ns_mov_b32 s{S_T0+2}, 4096\ns_mov_b32 s{S_T0+3}, 0x20000")
            u.append(Inst(f"buffer_load_dwordx4 {vr(24+8*r)}, v22, {srd(S_T0)}, 0 offen", tag="cvin"))
            u.append(Inst(f"buffer_load_dwordx4 {vr(28+8*r)}, v21, {srd(S_T0)}, 0 offen", tag="cvin"))
            t.append(u)
        k = sKA + 40 // 4
        u = self.I(f"s_mov_b32 s{S_T0}, s{k}\ns_and_b32 s{S_T0+1}, s{k+1}, 0xffff\ns_mov_b32 s{S_T0+2}, 1152\ns_mov_b32 s{S_T0+3}, 0x20000\ns_mul_i32 s{sTmp}, s{sCW}, 6\nv_mov_b32 v21, 0")
        u.append(Inst(f"buffer_load_ushort v22, v21, {srd(S_T0)}, s{sTmp} offen offset:2", tag="cvin"))
        u.append(Inst(f"buffer_load_ushort v23, v21, {srd(S_T0)}, s{sTmp} offen offset:4", tag="cvin"))
        u.append(Inst(f"buffer_load_ushort v21, v21, {srd(S_T0)}, s{sTmp} offen", tag="cvin"))
        t.append(u)
        return t
    def conv_kv_loads(self):
        t = []
        A = lambda s: t.extend(self.I(s))
        A(f"s_mul_i32 s{sTmp}, s{sCW}, {3*4096}\ns_add_u32 s{sTmp}, s{sTmp}, {WS_KVT}")
        A(f"v_lshlrev_b32 v5, 4, v0\nv_add_u32 v6, 8192, v5\nv_cmp_gt_u32 vcc, 256, v0\nv_cndmask_b32 v6, v{vOOB}, v6, vcc")
        t.append(Inst(f"buffer_load_dwordx4 v[48:51], v5, {srd(S_WS)}, s{sTmp} offen sc1", tag="cvin"))
        t.append(Inst(f"buffer_load_dwordx4 v[52:55], v6, {srd(S_WS)}, s{sTmp} offen sc1", tag="cvin"))
        return t
    def conv_build(self, S, dst, R0=6, R1=12):
        t = []
        for half in range(2):
            for i in range(6):
                if half == 0:
                    t += self.I(f"v_alignbit_b32 v{R0+i}, v{S+7-i}, v{S+7-i}, 16\nv_alignbit_b32 v{R1+i}, v{S+6-i}, v{S+6-i}, 16")
                else:
                    t += self.I(f"v_bfi_b32 v{R0+i}, s{sMask}, v{S+7-i}, v{S+6-i}\nv_bfi_b32 v{R1+i}, s{sMask}, v{S+6-i}, v{S+5-i}")
            sgs = ((0, R0), (4, R0+2), (2, R1), (6, R1+2)) if half == 0 else ((1, R0), (5, R0+2), (3, R1), (7, R1+2))
            for sg, r in sgs: t += self.I(f"ds_write_b128 v{dst}, {vr(r)} offset:{sg*4160}")
        return t
    vMASK, vTCW, vU16 = 18 + 0, 5, 19 + 0
    def conv_setup_tc(self):
        t = []
        A = lambda s: t.extend(self.I(s))
        A(f"s_mov_b32 s{sMask}, 0xffff\nv_and_b32 v6, 255, v0\nv_lshlrev_b32 v6, 4, v6")
        A(f"s_mul_i32 s{sTmp}, s{sT}, 33280\ns_add_u32 s{sTmp}, s{sTmp}, {16*257}\nv_sub_u32 v5, s{sTmp}, v6")
        t += self.conv_build(24, 5, 6, 12)
        return t
    def conv_setup_kp(self):
        t = []
        A = lambda s: t.extend(self.I(s))
        A(f"v_mov_b32 v6, 0\nv_mov_b32 v7, 0\nv_mov_b32 v8, 0\nv_mov_b32 v9, 0")
        A(f"v_lshlrev_b32 v12, 4, v{vLane}\nv_add_u32 v12, {C_DUM}, v12")
        A(f"v_lshrrev_b32 v10, 5, v0\nv_mul_u32_u24 v10, 4608, v10\nv_and_b32 v11, 31, v0\nv_lshlrev_b32 v11, 4, v11\nv_add_u32 v10, v10, v11\nv_add_u32 v10, {C_KP}, v10")
        A(f"v_cmp_gt_u32 vcc, 96, v0\nv_cndmask_b32 v10, v12, v10, vcc\nds_write_b128 v10, v[6:9]")
        A(f"v_mul_u32_u24 v10, 4160, v0\nv_add_u32 v10, {16*258}, v10\nv_cmp_gt_u32 vcc, 16, v0\nv_cndmask_b32 v10, v12, v10, vcc\nds_write_b128 v10, v[6:9]")
        A(f"v_lshlrev_b32 v11, 4, v0\nv_lshrrev_b32 v10, 8, v0\nv_lshlrev_b32 v10, 9, v10\nv_add_u32 v10, v10, v11\nv_add_u32 v10, {C_KP + 512}, v10\nds_write_b128 v10, v[48:51]")
        A(f"v_add_u32 v10, {C_KP + 512 + 8192 + 1024}, v11\nv_cmp_gt_u32 vcc, 256, v0\nv_cndmask_b32 v10, v12, v10, vcc\nds_write_b128 v10, v[52:55]")
        return t
    def conv_addrs(self):
        vT, vK, vYW, vYR, vZ, vKV = 50, 51, 52, 53, 54, 55
        t = []
        A = lambda s: t.extend(self.I(s))
        A(f"v_and_b32 v49, 255, v0\nv_lshlrev_b32 v49, 4, v49")
        A(f"v_and_b32 v10, 7, v{vN}\nv_sub_u32 v10, 7, v10\nv_mul_u32_u24 v10, 4160, v10\nv_lshrrev_b32 v11, 3, v{vN}\nv_sub_u32 v11, v{vQ}, v11\nv_add_u32 v11, 255, v11\nv_lshlrev_b32 v11, 4, v11\nv_add_u32 v10, v10, v11")
        A(f"s_lshl_b32 s{sTmp}, s{sW}, 6\ns_add_u32 s{sTmp}, s{sTmp}, 3584\nv_subrev_u32 v{vT}, s{sTmp}, v10")
        A(f"v_lshlrev_b32 v10, 5, v{vN}\nv_lshlrev_b32 v11, 4, v{vQ}\nv_add_u32 v10, v10, v11\nv_add_u32 v10, {480 + C_KP}, v10\ns_lshl_b32 s{sTmp}, s{sW}, 6\nv_subrev_u32 v{vK}, s{sTmp}, v10")
        A(f"v_lshlrev_b32 v{vYW}, 3, v{vLane}\ns_lshl_b32 s{sTmp}, s{sW}, 9\nv_add_u32 v{vYW}, s{sTmp}, v{vYW}\nv_add_u32 v{vYW}, {C_YRA}, v{vYW}")
        A(f"v_lshlrev_b32 v{vYR}, 3, v{vLane}\ns_lshl_b32 s{sTmp}, s{sH}, 12\nv_add_u32 v{vYR}, s{sTmp}, v{vYR}\nv_add_u32 v{vYR}, {C_YRA}, v{vYR}")
        A(f"v_lshlrev_b32 v{vZ}, 5, v{vN}\nv_lshlrev_b32 v{vKV}, 3, v{vQ}\nv_add_u32 v{vZ}, v{vZ}, v{vKV}\ns_lshl_b32 s{sTmp}, s{sH}, 9\nv_add_u32 v{vZ}, s{sTmp}, v{vZ}")
        A(f"v_add_u32 v{vKV}, {C_KP + 512}, v{vZ}")
        t += self.fpoll_issue(f"s_lshl_b32 s{sTmp2}, s{sM}, 7\nv_lshlrev_b32 v16, 2, v{vN}\nv_add_u32 v16, s{sTmp2}, v16\nv_add_u32 v16, {FA}, v16", 16, 17, "fapoll")
        return t

    def dma_tileA(self, tile):
        base = ((tile - 18) % 3) * SLOT
        c = tile - 18
        out = []
        for a in range(9):
            out.append([Inst(f"s_add_u32 m0, s{sW1024}, {base + a * 4096}"),
                        Inst(f"s_mov_b32 s{sKoff}, {a * 36864 + c * 128}"),
                        Inst(f"buffer_load_dwordx4 v{vD0}, {srd(S_WD)}, s{sKoff} offen lds", tag=f"tile{tile}")])
        return out

    def partner_stores(self, c):
        vST = 4
        rd = [Inst(f"ds_read_b128 {vr(TMP)}, v{vST} offset:{(c % 2) * 8192}"), Inst(f"ds_read_b128 {vr(TMP+4)}, v{vST} offset:{(c % 2) * 8192 + 1024}")]
        st = []
        for pr in range(2):
            u = [Inst(f"s_add_u32 s{sEP}, s{sPoff}, {c * 16384 + pr * 4096 - 8192}")]
            if not self.opt["nostore"]:
                u.append(Inst(f"buffer_store_dwordx4 {vr(TMP+4*pr)}, v{vP0}, {srd(S_WS)}, s{sEP} offen {self.opt['stflags']}", tag=f"pst{c}"))
            st.append(u)
        return rd, st
    def g2_version(self, cls):
        p = self.p
        carry = []
        if self.opt["prio2"] and cls == "A": p("s_setprio 1")
        vST = 4
        p(f"v_lshlrev_b32 v{vST}, 4, v{vLane}\ns_lshl_b32 s{sTmp}, s{sH}, 11\ns_add_u32 s{sTmp}, s{sTmp}, {L_STG}\nv_add_u32 v{vST}, s{sTmp}, v{vST}")
        def partner_stores(c):
            return self.partner_stores(c)
        def _unused(c):
            rd = [Inst(f"ds_read_b128 {vr(TMP)}, v{vST} offset:{(c % 2) * 8192}"), Inst(f"ds_read_b128 {vr(TMP+4)}, v{vST} offset:{(c % 2) * 8192 + 1024}")]
            st = []
            for pr in range(2):
                u = [Inst(f"s_add_u32 s{sEP}, s{sPoff}, {c * 16384 + pr * 4096 - 8192}")]
                if not self.opt["nostore"]:
                    u.append(Inst(f"buffer_store_dwordx4 {vr(TMP+4*pr)}, v{vP0}, {srd(S_WS)}, s{sEP} offen {self.opt['stflags']}", tag=f"pst{c}"))
                st.append(u)
            return rd, st
        for c in range(9):
            T = 18 + c
            pre = {}
            def put(slot, insts): pre.setdefault(slot, []).extend(insts)
            def spread(insts, lo, hi):
                n = len(insts)
                for k, x in enumerate(insts): put(lo + (k * (hi - lo + 1)) // n, x if isinstance(x, list) else [x])
            for s in range(2, 9):
                if c == 0: put(max(self.G2_READ[s] - 2, 0), self.h_reads(s))
                put(self.G2_READ[s], self.g2_frag_reads(c, s))
            if carry: spread(carry, 1, 26); carry = []
            if c > 0:
                ev, st = self.g2_epilogue(c - 1)
                spread(ev, 2, 11)
                if cls == "A":
                    put(13, [Inst(f"ds_write_b128 v{vST}, {vr(TMP)} offset:{((c-1) % 2) * 8192}"), Inst(f"ds_write_b128 v{vST}, {vr(TMP+4)} offset:{((c-1) % 2) * 8192 + 1024}")])
                else:
                    put(12, st[0]); put(15, st[1])
            if cls == "B" and c > 1:
                rd, st2 = partner_stores(c - 2)
                put(18, rd)
                if self.opt["dropst"] < 2: put(23, st2[0])
                if self.opt["dropst"] < 1: put(26, st2[1])
            if c == 4: spread(self.atomize(self.conv_h_loads()), 1, 26)
            if cls == "B" and c == 0: spread(self.atomize(self.e3_store()), 1, 26)
            if c == 3: put(2, self.signal(S2, 5, 6))
            if c == 5: put(27, self.fpoll_issue(self.s2_addr(12), 12, 14))
            if c == 6: spread([self.fpoll_check(12, 14)] + self.atomize(self.conv_kv_loads()), 1, 26)
            if cls == "A" and c == 7: spread(self.atomize(self.conv_setup_tc()), 1, 26)
            if c == 8:
                spread(self.atomize(self.conv_setup_kp() + (self.conv_setup_tc() if cls == "B" else []) + self.conv_addrs()), 1, 35)
            w = [Inst("WAITLG")]
            if cls == "A" and c + 1 < 9:
                wv = Inst("WAITVM"); wv.tag = f"tile{T+1}"; w.append(wv)
            if cls == "B" and c == 7:
                wv = Inst("WAITVM"); wv.tag = "pst3"; w.append(wv)
            if cls == "B" and c == 2:
                wv = Inst("WAITVM"); wv.tag = "est2"; w.append(wv)
            w.append(Inst("s_barrier"))
            put(self.BARSLOT, w)
            if c == 7: put(29, self.set_flag(self.flag_addr(FA), "fa", 7, 8))
            if c + 1 < 9:
                put(self.BARSLOT, self.slot_advance([vA2], T, T + 1))
                put(30, self.g2_frag_reads(c + 1, 0)); put(34, self.g2_frag_reads(c + 1, 1))
                vm = []
                if cls == "A" and not self.opt["g2nodma"]:
                    if c == 0: vm += self.dma_tileA(20)
                    if c + 3 < 9: vm += self.dma_tileA(T + 3)
                if vm:
                    nf = 3 if c == 0 else 2
                    spread(vm[:nf], 30, 35); carry = vm[nf:]
            put(0, self.stamp_i(f"c{c}"))
            self.emit_step(self.g2_mfmas(c), pre)
        ev, st = self.g2_epilogue(8)
        if cls == "B":
            rd, st2 = partner_stores(7)
            for i in rd: p.add(i)
            self.add_units(st2)
        for i in ev: p.add(i)
        if cls == "A":
            p(f"ds_write_b128 v{vST}, {vr(TMP)} offset:0\nds_write_b128 v{vST}, {vr(TMP+4)} offset:1024")
        else:
            self.add_units(st)
        p.waitlg()
        if self.opt["prio2"] and cls == "A": p("s_setprio 0")

    def g2(self):
        p = self.p
        for s in range(2):
            for i in self.h_reads(s): p.add(i)
        for s in range(2):
            for i in self.g2_frag_reads(0, s): p.add(i)
        self.stamp("g2start")
        p.drain()
        p(f"s_cmp_ge_u32 s{sW}, 4\ns_cbranch_scc1 L_g2B")
        p.save()
        self.g2_version("A")
        p("s_branch L_g2end")
        p("L_g2B:")
        p.restore()
        self.g2_version("B")
        p("L_g2end:")
        self.stamp("g2end")

    def spin_flags(self, voffs, soff_sreg, vals, opaque=False):
        L = self.label("fl"); D = self.label("fld")
        t = self.I(f"s_mov_b32 s{sTmp4}, 0x20000") + [Inst(f"{L}:")]
        for (vo, r) in zip(voffs, vals):
            t += self.I(f"buffer_load_dword v{r}, v{vo}, {srd(S_WS)}, s{soff_sreg} offen sc1")
        t += self.I("s_waitcnt vmcnt(0)")
        t += self.I(f"v_xor_b32 v{vals[0]}, s{sNonce}, v{vals[0]}")
        for r in vals[1:]: t += self.I(f"v_xor_b32 v{r}, s{sNonce}, v{r}\nv_or_b32 v{vals[0]}, v{vals[0]}, v{r}")
        t += self.I(f"v_cmp_ne_u32 vcc, 0, v{vals[0]}\ns_nop 4\ns_sub_u32 s{sTmp4}, s{sTmp4}, 1\ns_cmp_eq_u32 s{sTmp4}, 0\ns_cbranch_scc1 {D}")
        t += self.I(f"s_cmp_eq_u64 vcc, 0\ns_cbranch_scc1 {D}\ns_sleep 2\ns_branch {L}") + [Inst(f"{D}:")]
        return t

    PL = 112
    def pl_setup(self):
        return self.I(f"s_mul_i32 s{sPL}, s{sM}, {16*147456}\ns_lshl_b32 s{sTmp2}, s{sJ}, 10\ns_add_u32 s{sPL}, s{sPL}, s{sTmp2}\ns_lshl_b32 s{sTmp3}, s{sW}, 14\ns_add_u32 s{sPL}, s{sPL}, s{sTmp3}\ns_add_u32 s{sPL}, s{sPL}, {WS_P}\nv_lshlrev_b32 v18, 4, v{vLane}")
    def pl_site(self, b, cls):
        L = self.label("pl")
        t = self.I(f"s_cmp_eq_u32 s{sSite}, {1 if cls == 'A' else 2}\ns_cbranch_scc0 {L}\nbuffer_load_dwordx4 {vr(self.PL+4*b)}, v18, {srd(S_WS)}, s{sPL} offen sc1\ns_add_u32 s{sPL}, s{sPL}, 147456") + [Inst(f"{L}:")]
        for x in t: x.opaque = True
        return t
    def interleave(self, base, sites):
        out = []; n = len(base); m = len(sites); k = 0
        for i, x in enumerate(base):
            out.append(x)
            while k < m and (i + 1) * (m + 1) >= (k + 1) * n and not x.op.startswith("v_cmp") and not x.op.startswith("s_cmp"):
                out += sites[k]; k += 1
        while k < m: out += sites[k]; k += 1
        return out

    def conv(self):
        p = self.p
        for i in self.pl_setup(): p.add(i)
        p("s_cmp_ge_u32 s2, 192\ns_cbranch_scc1 L_noconv")
        p(f"s_cmp_ge_u32 s{sW}, 4\ns_cbranch_scc1 L_cvB")
        p.save()
        self.conv_version("A")
        p("s_branch L_convdone")
        p("L_cvB:")
        p.restore()
        self.conv_version("B")
        p("s_branch L_convdone")
        p("L_noconv:")
        p.restore()
        p(f"s_mov_b32 s{sSite}, 0")
        p.waitlg(); p("s_barrier")
        rd_, st2 = self.partner_stores(8)
        blk = self.I(f"s_cmp_lt_u32 s{sW}, 4\ns_cbranch_scc1 L_ncA") + rd_ + self.I("s_waitcnt lgkmcnt(0)")
        for u in st2: blk += u
        blk += [Inst("L_ncA:")]
        for x in blk: x.opaque = True; p.add(x)
        self.xload()
        p("s_waitcnt vmcnt(0)"); p.waitlg(); p("s_barrier")
        for i in self.set_flag(self.flag_addr(FC), "fc", 44, 45): i.opaque = True; p.add(i)
        p("L_convdone:")
        self.stamp("convend")
        blk = self.I(f"s_cmp_eq_u32 s{sSite}, 1\ns_cbranch_scc1 L_got\ns_cmp_lt_u32 s{sW}, 4\ns_cselect_b32 s{sTmp}, {FA}, {FC}\ns_lshl_b32 s{sTmp2}, s{sM}, 7\ns_add_u32 s{sTmp}, s{sTmp}, s{sTmp2}\ns_add_u32 s{sTmp}, s{sTmp}, {WS_FLAG}\nv_lshlrev_b32 v44, 2, v{vN}")
        blk += self.spin_flags([44], sTmp, [45])
        blk += self.I(f"s_mov_b32 s{sSite}, 2")
        for b in range(16): blk += self.pl_site(b, "B")
        blk += [Inst("L_got:")]
        for x in blk: x.opaque = True; p.add(x)

    def xload(self):
        p = self.p; XF = 240
        t = self.I(f"s_lshl_b32 s{sTmp}, s{sM}, 7\ns_lshl_b32 s{sTmp2}, s{sJ}, 3\ns_add_u32 s{sTmp}, s{sTmp}, s{sTmp2}")
        t += self.I(f"v_and_b32 v41, 7, v{vLane}\nv_add_u32 v41, s{sTmp}, v41")
        t += self.I(f"v_mul_u32_u24 v47, 1152, v41\nv_lshrrev_b32 v43, 3, v{vLane}\nv_lshlrev_b32 v43, 4, v43\nv_add_u32 v47, v47, v43")
        k0 = sKA
        t += self.I(f"s_mov_b32 s{S_T0}, s{k0}\ns_and_b32 s{S_T0+1}, s{k0+1}, 0xffff\ns_mov_b32 s{S_T0+2}, 2359296\ns_mov_b32 s{S_T0+3}, 0x20000")
        t += self.I(f"s_lshl_b32 s{sTmp2}, s{sW}, 7\nbuffer_load_dwordx4 {vr(XF)}, v47, {srd(S_T0)}, s{sTmp2} offen\nbuffer_load_dwordx4 {vr(XF+4)}, v47, {srd(S_T0)}, 0 offen offset:1024")
        t += self.I(f"buffer_load_dwordx4 {vr(XF+8)}, v47, {srd(S_X)}, s{sTmp2} offen sc1\nbuffer_load_dwordx4 {vr(XF+12)}, v47, {srd(S_X)}, 0 offen offset:1024 sc1")
        for x in t: x.opaque = True; p.add(x)

    def conv_version(self, cls):
        p = self.p
        TF, BF, Y = 176, 208, 80
        vT, vK, vYW, vYR, vZ, vKV = 50, 51, 52, 53, 54, 55
        if cls == "A":
            for x in self.I(f"s_waitcnt vmcnt(0)\nv_cmp_ne_u32 vcc, s{sNonce}, v17\ns_nop 4\ns_cmp_eq_u64 vcc, 0\ns_cselect_b32 s{sSite}, 1, 0"): x.opaque = True; p.add(x)
            if not self.opt["early"]: p(f"s_mov_b32 s{sSite}, 0")
        else:
            p(f"s_mov_b32 s{sSite}, 0")
        def mfma_ch(c, tc):
            rd = []
            for i in range(8):
                rd += self.I(f"ds_read_b128 {vr(TF+4*i)}, v{vT} offset:{tc + 512*(7-i)}\nds_read_b128 {vr(BF+4*i)}, v{vK} offset:{c*4608 + 512*i}")
            first = set(); mf = []
            pairs = sorted([(i, g_ - i, g_) for g_ in range(8) for i in range(g_ + 1)], key=lambda z: (max(z[0], z[1]), z[2]))
            for (i, m, g_) in pairs:
                cc = "0" if g_ not in first else vr(Y+4*g_); first.add(g_)
                mf += self.I(f"v_mfma_f32_16x16x32_bf16 {vr(Y+4*g_)}, {vr(TF+4*i)}, {vr(BF+4*m)}, {cc}")
            return rd, mf
        def ywrite(par):
            t = []
            for g_ in range(8):
                t += self.I(f"v_cvt_pk_bf16_f32 v{Y+4*g_}, v{Y+4*g_}, v{Y+4*g_+1}\nv_cvt_pk_bf16_f32 v{Y+4*g_+1}, v{Y+4*g_+2}, v{Y+4*g_+3}")
                t += self.I(f"ds_write_b64 v{vYW}, {vr(Y+4*g_,2)} offset:{par*(C_YRB-C_YRA) + g_*4096}")
            return t
        RD = 56
        def reduce_ch(c, par):
            t = []
            for k in range(2):
                for r in range(8): t += self.I(f"ds_read_b64 {vr(RD+2*r,2)}, v{vYR} offset:{par*(C_YRB-C_YRA) + k*16384 + r*512}")
                t += self.I(f"ds_read_b64 v[76:77], v{vKV} offset:{c*4608 + k*2048}")
                t += self.I(f"v_lshlrev_b32 v72, 16, v{RD}\nv_and_b32 v73, 0xffff0000, v{RD}\nv_lshlrev_b32 v74, 16, v{RD+1}\nv_and_b32 v75, 0xffff0000, v{RD+1}")
                for r in range(1, 8):
                    t += self.I(f"v_lshlrev_b32 v78, 16, v{RD+2*r}\nv_and_b32 v79, 0xffff0000, v{RD+2*r}\nv_add_f32 v72, v72, v78\nv_add_f32 v73, v73, v79")
                    t += self.I(f"v_lshlrev_b32 v78, 16, v{RD+2*r+1}\nv_and_b32 v79, 0xffff0000, v{RD+2*r+1}\nv_add_f32 v74, v74, v78\nv_add_f32 v75, v75, v79")
                t += self.I(f"v_lshlrev_b32 v40, 16, v{[21,22,23][c]}")
                t += self.I(f"v_lshlrev_b32 v78, 16, v76\nv_and_b32 v79, 0xffff0000, v76\nv_fmac_f32 v72, v78, v40\nv_fmac_f32 v73, v79, v40")
                t += self.I(f"v_lshlrev_b32 v78, 16, v77\nv_and_b32 v79, 0xffff0000, v77\nv_fmac_f32 v74, v78, v40\nv_fmac_f32 v75, v79, v40")
                t += self.I(f"v_cvt_pk_bf16_f32 v{42+2*k}, v72, v73\nv_cvt_pk_bf16_f32 v{43+2*k}, v74, v75")
                u = self.I(f"s_mul_i32 s{sTmp}, s2, {3*4096}\ns_add_u32 s{sTmp}, s{sTmp}, {WS_ZT + c*4096 + k*2048}")
                u.append(Inst(f"buffer_store_dwordx2 {vr(42+2*k,2)}, v{vZ}, {srd(S_WS)}, s{sTmp} offen sc1", tag="zst"))
                t.append(u)
            return t
        def phase(rd, mf, fill, sites):
            for x in rd: p.add(x)
            items = [[f] if not isinstance(f, list) else f for f in fill]
            n = len(mf)
            slots = {i: [] for i in range(n + 1)}
            for k_, it in enumerate(items): slots[min(n, 1 + (k_ * (n - 1)) // max(1, len(items)))] += it
            for k_, st_ in enumerate(sites): slots[min(n, 2 + (k_ * (n - 2)) // max(1, len(sites)))] += st_
            for i, m in enumerate(mf):
                for x in slots[i]: p.add(x)
                p.add(m)
            for x in slots[n]: p.add(x)
        ns = self.opt["early"]
        S = [self.pl_site(b, "A") for b in range(16)] if (cls == "A" and ns) else []
        p.waitlg(); p("s_barrier")
        self.stamp("cv0")
        if cls == "B":
            rd_, st2 = self.partner_stores(8)
            for i in rd_: p.add(i)
            self.add_units(st2)
        rd, mf = mfma_ch(0, C_TCA)
        phase(rd, mf, [], S[:5])
        self.xload()
        for x in ywrite(0): p.add(x)
        p.waitlg(); p("s_barrier")
        self.stamp("cv1")
        rd, mf = mfma_ch(1, C_TCB)
        self.vMASK = 48
        fill = (self.I(f"s_mov_b32 s{sTmp}, {16*257}\nv_sub_u32 v5, s{sTmp}, v49") + self.conv_build(32, 5)) if cls == "A" else reduce_ch(0, 0)
        phase(rd, mf, fill, S[5:11])
        for x in ywrite(1): p.add(x)
        if cls == "B": p("s_waitcnt vmcnt(0)")
        p.waitlg(); p("s_barrier")
        for i in self.set_flag(self.flag_addr(FC), "fc", 44, 45): i.opaque = True; p.add(i)
        self.stamp("cv2")
        rd, mf = mfma_ch(2, C_TCA)
        phase(rd, mf, reduce_ch(1, 1) if cls == "B" else [], S[11:])
        for x in ywrite(0): p.add(x)
        p.waitlg(); p("s_barrier")
        if cls == "B":
            for x in reduce_ch(2, 0):
                for y in (x if isinstance(x, list) else [x]): p.add(y)
            p("s_waitcnt vmcnt(0)")
        self.stamp("cv3")
        p("s_barrier")
        for i in self.set_flag(f"s_lshl_b32 s{sTmp2}, s2, 2\ns_add_u32 s{sTmp2}, s{sTmp2}, {WS_FLAG + ZF}", "zf", 44, 45):
            i.opaque = True; p.add(i)

    def final(self):
        p = self.p
        XF = 240
        blk = self.I(f"s_cmp_ge_u32 s{sW}, 4\ns_cbranch_scc1 L_fc3\ns_lshl_b32 s{sTmp2}, s{sM}, 7\ns_add_u32 s{sTmp}, s{sTmp2}, {WS_FLAG + FC}\nv_lshlrev_b32 v44, 2, v{vN}")
        blk += self.spin_flags([44], sTmp, [45]) + [Inst("L_fc3:")]
        for x in blk: x.opaque = True; p.add(x)
        self.stamp("fbok")
        t = self.I(f"s_lshl_b32 s{sTmp}, s{sM}, 4\ns_lshl_b32 s{sTmp2}, s{sW}, 1\ns_add_u32 s{sTmp}, s{sTmp}, s{sTmp2}\ns_mul_i32 s{sTmp}, s{sTmp}, 147456\ns_lshl_b32 s{sTmp2}, s{sJ}, 10\ns_add_u32 s{sTmp}, s{sTmp}, s{sTmp2}\ns_add_u32 s{sTmp}, s{sTmp}, {WS_P + 8*16384}")
        t += self.I(f"v_lshlrev_b32 v46, 4, v{vLane}\nbuffer_load_dwordx4 v[176:179], v46, {srd(S_WS)}, s{sTmp} offen sc1\ns_add_u32 s{sTmp}, s{sTmp}, 147456\nbuffer_load_dwordx4 v[180:183], v46, {srd(S_WS)}, s{sTmp} offen sc1")
        for x in t: x.opaque = True; p.add(x)
        p(f"v_mov_b32 v44, 0x3f80\nv_mov_b32 v45, 0x3f800000")
        for e in range(8): p(f"v_mov_b32 v{200+e}, 0\nv_mov_b32 v{208+e}, 0")
        p("s_waitcnt vmcnt(2)")
        for b in range(16):
            for r in range(4):
                p(f"v_dot2_f32_bf16 v{200+2*r}, v{self.PL+4*b+r}, v44, v{200+2*r}\nv_dot2_f32_bf16 v{201+2*r}, v{self.PL+4*b+r}, v45, v{201+2*r}")
        p("s_waitcnt vmcnt(0)")
        self.stamp("loaded")
        for b in range(2):
            for r in range(4):
                p(f"v_dot2_f32_bf16 v{208+2*r}, v{176+4*b+r}, v44, v{208+2*r}\nv_dot2_f32_bf16 v{209+2*r}, v{176+4*b+r}, v45, v{209+2*r}")
        p(f"v_lshlrev_b32 v46, 5, v{vLane}\ns_lshl_b32 s{sTmp2}, s{sW}, 11\nv_add_u32 v46, s{sTmp2}, v46\nv_add_u32 v46, {C_C8}, v46")
        p("s_barrier")
        p(f"ds_write_b128 v46, v[208:211]\nds_write_b128 v46, v[212:215] offset:16")
        p(f"s_lshl_b32 s{sPL}, s{sM}, 7\ns_lshl_b32 s{sTmp2}, s{sJ}, 3\ns_add_u32 s{sPL}, s{sPL}, s{sTmp2}\ns_lshl_b32 s{sPL}, s{sPL}, 1\ns_add_u32 s{sPL}, s{sPL}, {WS_ZT}")
        p(f"v_lshlrev_b32 v55, 12, v{vLane}\ns_lshl_b32 s{sTmp2}, s{sW}, 18\ns_add_u32 s{sEP}, s{sTmp2}, s{sPL}\ns_add_u32 s{sPL}, s{sPL}, {512*4096}")
        DZ = C_ZL + 8192
        p(f"v_lshlrev_b32 v56, 4, v{vLane}\nv_add_u32 v57, {DZ}, v56\nv_add_u32 v56, s{sW1024}, v56\nv_add_u32 v56, {C_ZL}, v56")
        p(f"v_bfe_u32 v50, v{vLane}, 2, 2\nv_lshlrev_b32 v51, 4, v{vQ}\nv_add_u32 v50, v50, v51\nv_bfe_u32 v51, v{vLane}, 1, 1\nv_lshlrev_b32 v51, 3, v51\nv_add_u32 v50, v50, v51\nv_lshlrev_b32 v50, 4, v50")
        p(f"v_and_b32 v51, 1, v{vLane}\nv_lshlrev_b32 v51, 3, v51\nv_add_u32 v50, v50, v51")
        p(f"v_add_u32 v51, s{sW1024}, v50\nv_add_u32 v51, {C_ZL}, v51\nv_add_u32 v52, {DZ}, v50")
        p(f"v_lshlrev_b32 v58, 2, v{vLane}\nv_add_u32 v59, 256, v58\nv_add_u32 v60, 512, v58\ns_mov_b32 s{sTmp}, {WS_FLAG + ZF}")
        p.waitlg()
        for x in self.spin_flags([58, 59, 60], sTmp, [61, 62, 63]): x.opaque = True; p.add(x)
        self.stamp("zok")
        p(f"buffer_load_dwordx4 v[216:219], v55, {srd(S_WS)}, s{sEP} offen sc1\nbuffer_load_dwordx4 v[220:223], v55, {srd(S_WS)}, s{sPL} offen sc1")
        p("s_barrier")
        p(f"v_lshlrev_b32 v46, 5, v{vLane}\nv_add_u32 v46, {C_C8}, v46")
        for wv in range(8):
            p(f"ds_read_b128 {vr(112+8*wv)}, v46 offset:{wv*2048}\nds_read_b128 {vr(116+8*wv)}, v46 offset:{wv*2048+16}")
        for wv in range(1, 8):
            for e in range(8): p(f"v_add_f32 v{112+e}, v{112+e}, v{112+8*wv+e}")
        p(f"ds_write_b128 v56, v[216:219]\nds_write_b128 v57, v[220:223]")
        p.waitlg(); p("s_barrier")
        p(f"ds_read_b64_tr_b16 v[216:217], v51\nds_read_b64_tr_b16 v[218:219], v51 offset:64")
        p(f"ds_read_b64_tr_b16 v[220:221], v52\nds_read_b64_tr_b16 v[222:223], v52 offset:64")
        def fin(X, Z, S, dst):
            for r in range(4):
                p(f"v_lshlrev_b32 v56, 16, v{X+r}\nv_and_b32 v57, 0xffff0000, v{X+r}")
                p(f"v_lshlrev_b32 v58, 16, v{X+8+r}\nv_and_b32 v59, 0xffff0000, v{X+8+r}")
                p(f"v_lshlrev_b32 v60, 16, v{Z+r}\nv_and_b32 v61, 0xffff0000, v{Z+r}")
                p(f"v_fmac_f32 v56, v58, v60\nv_fmac_f32 v57, v59, v61")
                p(f"v_add_f32 v56, v56, v{S+2*r}\nv_add_f32 v57, v57, v{S+2*r+1}")
                p(f"v_cvt_pk_bf16_f32 v{dst+r}, v56, v57")
        fin(XF, 216, 200, 64)
        p(f"s_lshl_b32 s{sTmp2}, s{sW}, 7")
        p(f"buffer_store_dwordx4 v[64:67], v47, {srd(S_OUT)}, s{sTmp2} offen")
        fin(XF+4, 220, 112, 68)
        p(f"s_cmp_eq_u32 s{sW}, 0\ns_cselect_b32 s{sTmp}, 0, {OOB:#x}\nv_add_u32 v43, s{sTmp}, v47")
        p(f"buffer_store_dwordx4 v[68:71], v43, {srd(S_OUT)}, 0 offen offset:1024")

    def write_stamps(self, n):
        p = self.p
        p("s_waitcnt lgkmcnt(0)")
        p(f"v_cmp_eq_u32 vcc, 0, v0\ns_and_saveexec_b64 s[{sEX}:{sEX+1}], vcc\ns_cbranch_execz L_nostamp")
        p(f"s_lshl_b32 s{sTmp}, s2, 7\ns_add_u32 s{sTmp}, s{sTmp}, {WS_DUMP}\nv_mov_b32 v4, 0")
        for i in range(n):
            p(f"v_mov_b32 v6, s{86+2*i}\nv_mov_b32 v7, s{87+2*i}")
            p(f"buffer_store_dwordx2 v[6:7], v4, {srd(S_WS)}, s{sTmp} offen offset:{8*i}")
            p("s_waitcnt vmcnt(0)")
        p(f"L_nostamp:\ns_mov_b64 exec, -1")

    def build(self):
        p = self.p
        self.stamp("start")
        self.prologue()
        self.g1()
        self.stamp("g1end")
        if self.opt["stop"] != "g1":
            self.gelu_tail()
            self.g2()
        if self.opt["stop"] not in ("g1", "g2"):
            self.conv()
            self.final()
        p.drain()
        if self.stamps:
            self.stamp("end")
            self.write_stamps(len(self.stamps))
        p("L_end:\ns_endpgm")
        return p.finalize()

class Prep(Gen):
    def build(self):
        p = self.p
        if self.opt.get("pstamp"): p("s_memrealtime s[86:87]")
        p("s_cmp_ge_u32 s2, 256\ns_cbranch_scc1 L_pend")
        p(f"s_load_dwordx16 s[{sKA}:{sKA+15}], s[0:1], 0")
        p(f"s_load_dwordx8 s[{sKA+16}:{sKA+23}], s[0:1], 64")
        p(f"s_load_dwordx2 s[{sKA+24}:{sKA+25}], s[0:1], 96")
        p(f"v_lshrrev_b32 v40, 6, v0\nv_and_b32 v{vLane}, 63, v0\nv_mov_b32 v{vOOB}, {OOB:#x}")
        p(f"v_readfirstlane_b32 s{sW}, v40")
        p(f"s_lshl_b32 s{sTmp}, s2, 3\ns_add_u32 s{sTmp}, s{sTmp}, s{sW}\ns_mul_i32 s{sPoff}, s{sTmp}, 1152")
        p(f"v_lshlrev_b32 v52, 4, v{vLane}\nv_add_u32 v53, 1024, v52\nv_cmp_gt_u32 vcc, 8, v{vLane}\nv_cndmask_b32 v53, v{vOOB}, v53, vcc")
        t = []; self.e3_base(56, t)
        for i in t: p.add(i)
        p("s_waitcnt lgkmcnt(0)")
        self.build_srd(S_X, 0, 2359296)
        p(f"buffer_load_dwordx4 v[24:27], v52, {srd(S_X)}, s{sPoff} offen\nbuffer_load_dwordx4 v[28:31], v53, {srd(S_X)}, s{sPoff} offen")
        K0, V0, W0 = 80, 94, 102
        for i in self.t0srd(8, 2359296): p.add(i)
        for r in range(3):
            p(f"v_subrev_u32 v54, {(3-r)*1152}, v56\nbuffer_load_dwordx2 {vr(K0+2*r,2)}, v54, {srd(S_T0)}, 0 offen")
        for r in range(3, 7):
            p(f"buffer_load_dwordx2 {vr(K0+2*r,2)}, v56, {srd(S_T0)}, 0 offen offset:{(r-3)*1152}")
        for i in self.t0srd(16, 2359296): p.add(i)
        for i_ in range(4):
            p(f"buffer_load_dwordx2 {vr(V0+2*i_,2)}, v56, {srd(S_T0)}, 0 offen offset:{1152*i_}")
        for i in self.t0srd(24, 4608): p.add(i)
        p(f"s_lshr_b32 s{sTmp2}, s2, 4\ns_lshl_b32 s{sTmp2}, s{sTmp2}, 9\nv_and_b32 v54, 15, v0\nv_lshlrev_b32 v54, 5, v54\nv_add_u32 v54, s{sTmp2}, v54")
        p(f"buffer_load_dwordx4 {vr(W0)}, v54, {srd(S_T0)}, 0 offen\nbuffer_load_dwordx4 {vr(W0+4)}, v54, {srd(S_T0)}, 0 offen offset:16")
        self.build_srd(S_WS, 96, WS_SIZE)
        if self.opt.get("touch", True):
            p(f"s_mul_i32 s{sTmp}, s2, 162\nv_add_u32 v58, s{sTmp}, v0\nv_lshlrev_b32 v58, 7, v58\nv_cmp_gt_u32 vcc, 162, v0\nv_cndmask_b32 v58, v{vOOB}, v58, vcc")
            for ka in (56, 64, 72):
                for i in self.t0srd(ka, 5308416): p.add(i)
                p.add(self.nodef(f"buffer_load_dword v{vDum}, v58, {srd(S_T0)}, 0 offen", "pf"))
            p(f"s_mul_i32 s{sTmp}, s2, 72\nv_add_u32 v58, s{sTmp}, v0\nv_lshlrev_b32 v58, 7, v58\nv_cmp_gt_u32 vcc, 72, v0\nv_cndmask_b32 v58, v{vOOB}, v58, vcc")
            for i in self.t0srd(32, 2359296): p.add(i)
            p.add(self.nodef(f"buffer_load_dword v{vDum}, v58, {srd(S_T0)}, 0 offen", "pf"))
        p(f"v_mov_b32 v60, 0\nv_cmp_eq_u32 vcc, 0, v0\nv_cndmask_b32 v61, v{vOOB}, v60, vcc")
        p(f"s_lshr_b32 s{sTmp}, s2, 4\ns_lshl_b32 s{sTmp}, s{sTmp}, 7\ns_and_b32 s{sTmp2}, s2, 15\ns_lshl_b32 s{sTmp2}, s{sTmp2}, 2\ns_add_u32 s{sTmp}, s{sTmp}, s{sTmp2}\ns_add_u32 s{sTmp}, s{sTmp}, {WS_FLAG + FA}")
        p(f"buffer_store_dword v60, v61, {srd(S_WS)}, s{sTmp} offen\ns_add_u32 s{sTmp}, s{sTmp}, {FC - FA}\nbuffer_store_dword v60, v61, {srd(S_WS)}, s{sTmp} offen")
        p(f"s_lshl_b32 s{sTmp}, s2, 2\ns_add_u32 s{sTmp}, s{sTmp}, {WS_FLAG + ZF}\nbuffer_store_dword v60, v61, {srd(S_WS)}, s{sTmp} offen")
        p("v_mov_b32 v40, 0x3f803f80\nv_mov_b32 v41, 0\nv_mov_b32 v42, 0")
        for r in range(8):
            p(f"v_dot2_f32_bf16 v41, v{24+r}, v40, v41\nv_dot2_f32_bf16 v42, v{24+r}, v{24+r}, v42")
        for reg in (41, 42):
            for d in ("quad_perm:[1,0,3,2]", "quad_perm:[2,3,0,1]", "row_half_mirror", "row_mirror"):
                p(f"v_add_f32_dpp v{reg}, v{reg}, v{reg} {d} row_mask:0xf bank_mask:0xf")
            for sw in ("v_permlane16_swap_b32", "v_permlane32_swap_b32"):
                p(f"v_mov_b32 v43, v{reg}\n{sw} v{reg}, v43\nv_add_f32 v{reg}, v{reg}, v43")
        p(f"v_mul_f32 v41, {f2u(1/576):#x}, v41\nv_mul_f32 v42, {f2u(1/576):#x}, v42")
        p("v_fma_f32 v42, -v41, v41, v42\nv_max_f32 v42, 0, v42")
        p("v_cvt_pk_bf16_f32 v43, v41, v42\nv_lshlrev_b32 v41, 16, v43\nv_and_b32 v42, 0xffff0000, v43")
        p(f"v_add_f32 v42, {f2u(1e-5):#x}, v42")
        p("v_cvt_pk_bf16_f32 v42, v42, v42\nv_lshlrev_b32 v42, 16, v42\nv_sqrt_f32 v42, v42")
        p("v_cvt_pk_bf16_f32 v42, v42, v42\nv_lshlrev_b32 v42, 16, v42\nv_rcp_f32 v43, v42")
        for r in range(8):
            p(f"v_lshlrev_b32 v44, 16, v{24+r}\nv_and_b32 v45, 0xffff0000, v{24+r}\nv_sub_f32 v44, v44, v41\nv_sub_f32 v45, v45, v41")
            p(f"v_cvt_pk_bf16_f32 v44, v44, v45\nv_and_b32 v45, 0xffff0000, v44\nv_lshlrev_b32 v44, 16, v44")
            p(f"v_mul_f32 v44, v44, v43\nv_mul_f32 v45, v45, v43\nv_cvt_pk_bf16_f32 v{24+r}, v44, v45")
        p(f"s_add_u32 s{sTmp}, s{sPoff}, {WS_XN}")
        sf = self.opt.get("psc", "")
        p(f"buffer_store_dwordx4 v[24:27], v52, {srd(S_WS)}, s{sTmp} offen {sf}\nbuffer_store_dwordx4 v[28:31], v53, {srd(S_WS)}, s{sTmp} offen {sf}")
        for c in range(4):
            p(f"v_lshlrev_b32 v{136+4*c-72}, 16, v{W0+2*c}\nv_and_b32 v{137+4*c-72}, 0xffff0000, v{W0+2*c}")
            p(f"v_lshlrev_b32 v{138+4*c-72}, 16, v{W0+2*c+1}\nv_and_b32 v{139+4*c-72}, 0xffff0000, v{W0+2*c+1}")
        TP, KF, VF, OU = 64, 112, 140, 156
        for r in range(7):
            p(f"v_lshlrev_b32 v{KF+4*r}, 16, v{K0+2*r}\nv_and_b32 v{KF+1+4*r}, 0xffff0000, v{K0+2*r}")
            p(f"v_lshlrev_b32 v{KF+2+4*r}, 16, v{K0+2*r+1}\nv_and_b32 v{KF+3+4*r}, 0xffff0000, v{K0+2*r+1}")
        for i_ in range(4):
            p(f"v_lshlrev_b32 v{VF+4*i_}, 16, v{V0+2*i_}\nv_and_b32 v{VF+1+4*i_}, 0xffff0000, v{V0+2*i_}")
            p(f"v_lshlrev_b32 v{VF+2+4*i_}, 16, v{V0+2*i_+1}\nv_and_b32 v{VF+3+4*i_}, 0xffff0000, v{V0+2*i_+1}")
        for c in range(4):
            for i_ in range(4): p(f"v_mul_f32 v{OU+4*c+i_}, v{KF+4*(3+i_)+c}, v{TP+4*c}")
        for jj in range(1, 4):
            for c in range(4):
                for i_ in range(4): p(f"v_fmac_f32 v{OU+4*c+i_}, v{KF+4*(3+i_-jj)+c}, v{TP+4*c+jj}")
        for c in range(4):
            for i_ in range(4): p(f"v_mul_f32 v{OU+4*c+i_}, v{OU+4*c+i_}, v{VF+4*i_+c}")
        p(f"v_and_b32 v32, 15, v0\nv_lshrrev_b32 v33, 5, v0\nv_xor_b32 v33, v33, v32\nv_lshlrev_b32 v33, 4, v33\nv_lshlrev_b32 v32, 10, v32\nv_add_u32 v32, v32, v33")
        p(f"v_bfe_u32 v33, v0, 4, 1\nv_lshlrev_b32 v33, 3, v33\nv_add_u32 v32, v32, v33")
        for c in range(4):
            p(f"v_cvt_pk_bf16_f32 v{34+2*c}, v{OU+4*c}, v{OU+4*c+1}\nv_cvt_pk_bf16_f32 v{35+2*c}, v{OU+4*c+2}, v{OU+4*c+3}")
            p(f"ds_write_b64 v32, {vr(34+2*c,2)} offset:{c*256}")
        p.waitlg(); p("s_barrier")
        p(f"v_and_b32 v44, 15, v0\nv_lshrrev_b32 v45, 4, v0")
        p(f"v_lshlrev_b32 v46, 12, v45\nv_lshlrev_b32 v47, 4, v44\nv_add_u32 v46, v46, v47")
        p(f"s_cmp_lt_u32 s2, 144\ns_cselect_b32 s{sTmp}, 0, {OOB:#x}\nv_add_u32 v46, s{sTmp}, v46")
        for r in range(2):
            p(f"v_lshrrev_b32 v47, 2, v45\nv_add_u32 v47, {8*r}, v47\nv_xor_b32 v47, v47, v44\nv_and_b32 v47, 15, v47\nv_lshlrev_b32 v47, 4, v47\nv_lshlrev_b32 v48, 8, v45\nv_add_u32 v47, v47, v48")
            p(f"ds_read_b128 {vr(24+4*r)}, v47 offset:{r*8192}")
        p(f"s_lshr_b32 s{sTmp}, s2, 4\ns_mul_i32 s{sTmp}, s{sTmp}, {64*4096}\ns_and_b32 s{sTmp2}, s2, 15\ns_lshl_b32 s{sTmp2}, s{sTmp2}, 8\ns_add_u32 s{sTmp}, s{sTmp}, s{sTmp2}\ns_add_u32 s{sTmp}, s{sTmp}, {WS_KVT}")
        p(f"buffer_store_dwordx4 v[24:27], v46, {srd(S_WS)}, s{sTmp} offen {sf}\ns_add_u32 s{sTmp}, s{sTmp}, {32*4096}\nbuffer_store_dwordx4 v[28:31], v46, {srd(S_WS)}, s{sTmp} offen {sf}")
        if self.opt.get("pstamp"):
            p("s_memrealtime s[88:89]")
            if self.opt.get("pwait"): p("s_waitcnt vmcnt(0)")
            p("s_memrealtime s[90:91]\ns_waitcnt lgkmcnt(0)")
            p(f"v_mov_b32 v4, s86\nv_mov_b32 v5, s88\nv_mov_b32 v6, s90\nv_mov_b32 v7, 0\nv_cmp_eq_u32 vcc, 0, v0\nv_mov_b32 v8, 0\nv_cndmask_b32 v8, v{vOOB}, v8, vcc")
            p(f"s_lshl_b32 s{sTmp}, s2, 4\ns_add_u32 s{sTmp}, s{sTmp}, {WS_DUMP + 0x8000}\nbuffer_store_dwordx4 v[4:7], v8, {srd(S_WS)}, s{sTmp} offen")
        p("L_pend:\ns_endpgm")
        return p.finalize()

def kernel_wrap(name, body, nvgpr=256, nsgpr=102):
    t = f".globl {name}\n.p2align 8\n.type {name},@function\n{name}:\n" + body
    d = f""".p2align 6
.amdhsa_kernel {name}
  .amdhsa_next_free_vgpr {nvgpr}
  .amdhsa_next_free_sgpr {nsgpr}
  .amdhsa_accum_offset {nvgpr}
  .amdhsa_group_segment_fixed_size 0
  .amdhsa_kernarg_size 104
  .amdhsa_user_sgpr_count 2
  .amdhsa_user_sgpr_kernarg_segment_ptr 1
  .amdhsa_system_sgpr_workgroup_id_x 1
.end_amdhsa_kernel
"""
    return t, d

PRODUCER_MAJOR = True
STAMP_SETS = [["start", "g1start", "g1end", "g2start", "g2end", "convend", "zok", "end"],
        ["start", "karg", "xrow", "s1set", "e3done", "s1ok", "g1start", "st2"],
        ["start", "st3", "st5", "st7", "st9", "st11", "st13", "st15"],
        ["start", "st15", "st17", "g1end", "gelu", "g2start", "c1", "c3"],
        ["start", "c3", "c5", "c7", "g2end", "cv0", "cv1", "cv2"],
        ["start", "cv2", "cv3", "convend", "fbok", "loaded", "zok", "end"]]
DEFAULT_STAMPS = ["start", "g1start", "g1end", "g2start", "g2end", "convend", "zok", "end"]
def make(stamps=False, listform=False, **kw):
    if stamps is True: stamps = DEFAULT_STAMPS
    g = Gen(stamps=stamps, **kw)
    body = g.build()
    name = NAME + "_kernel"
    t, d = kernel_wrap(name, body)
    ref = open(f"cdna_kernels/{NAME}.s.ref").read().split("\n")
    hdr = [l for l in ref if l.startswith(";") and "@launch" not in l and "Override launch" not in l and "grid=ceil" not in l]
    hdr = [l for l in hdr if not l.strip().startswith("; v1")]
    launch = f"; @launch grid=(256,1,1) block=(512,1,1) lds={LDS_BYTES}"
    if listform: launch = f"; @launch kernel={name} grid=(256,1,1) block=(512,1,1) lds={LDS_BYTES}"
    head = "\n".join(hdr[:15]) + "\n" + launch + "\n"
    asm = head + '.amdgcn_target "amdgcn-amd-amdhsa--gfx950"\n.text\n' + t + '.section .rodata,"a"\n' + d
    return asm, g

if __name__ == "__main__":
    asm, g = make(stamps=False)
    open(f"cdna_kernels/{NAME}.s", "w").write(asm)
    print(g.p.stats(), len(g.p.ins), len(asm))
```

```python
import sys, math, struct
sys.path.insert(0, "gen")
from fw import *

NAME = "parallel_sum__ssm_conv_h3__glu_gated_geglu__prompt"
def f2u(x): return struct.unpack("<I", struct.pack("<f", x))[0]
OOB = 0x80000000

WS_SIZE = 268435456
WS_BASE = 0xD000000
WS_P    = WS_BASE
WS_KVT  = WS_BASE + 0x2400000
WS_ZT   = WS_BASE + 0x2640000
WS_XN   = WS_BASE + 0x2950000
WS_ST   = WS_BASE + 0x2880000
WS_CSP  = WS_BASE + 0x2890000
WS_FLAG = WS_BASE + 0x2930000
WS_DUMP = WS_BASE + 0x2940000
FA, FB, FC, ZF, S1, S2 = 0, 4096, 8192, 12288, 16384, 20480

SLOT = 36864
L_X = 110592
L_H = 73728
L_CS = 147456
L_KVL = 149760
L_DUMMY = 159552
L_STG = 147456
LDS_BYTES = 163840
C_KP = 0
C_TCB = 13824
C_YRA = 47104
C_YRB = 79872
C_DUM = 112640
C_TCA = 114176
C_ZL = 33280
C_C8 = 0

S_X, S_WG, S_WU, S_WD, S_WS, S_W5 = 8, 12, 16, 20, 24, 28
S_OUT, S_T0, S_DBG = 32, 36, 40
sW, sM, sJ = 44, 45, 46
sW1024, sM5, sKoff, sT, sH = 47, 48, 49, 50, 51
sM5D = 52
sTmp, sTmp2, sTmp3 = 53, 54, 55
sPoff = 56
sPF = 3
sEX = 4
sKA = 60
sXoff = 4
sTmp4 = 5
sCS = 6
sCW = 7
sEP = 58
sPL = 59
sNonce = 57
sSite = 73
sMask = 74
def srd(n): return f"s[{n}:{n+3}]"

vLane, vN, vQ = 1, 2, 3
vAE, vAO, vAS = 4, 5, 6
vB, vB2 = 7, 8
vO0, vO1, vO5 = 9, 10, 11
vXA = 12
vPF1, vPF2 = 13, 14
vDum = 15
vD0, vD5, vA2, vP0 = 16, 17, 18, 19
vOOB = 20
vE = 21
vK0 = 24
TMP = 40
FR0 = 56; NFR = 6
BFR = [80, 96]
ACC = 112
def vr(a, n=4): return f"v[{a}:{a+n-1}]"
def acc_own(a, ten, i): return ACC + 4 * ((a * 2 + ten) * 4 + i)
def acc_sh(ten, k): return ACC + 4 * (32 + ten * 2 + k)
sE2 = 72

class Gen:
    def __init__(self, stamps=False, **kw):
        self.p = Prog()
        self.stamps = stamps
        self.opt = dict(pf=True, nostore=False, stop=None, dump=None, nofill=False, dma4=True, dmaslots=None, prio=False, pf64=False, pfd=6, g1read=None, barslot=28, frbuf=None, order=None, nocvin=False, g2bare=False, noepi=False, epimode=3, epislots=(2,11), stgslot=22, own=(12,15), prd=21, pst=(25,27), early=16, prio2=False, sitesM2=False, dropst=0, noe3=True, pfB=True, xsc1=True, stflags='sc1', g2nodma=False, stslots=(16,22), g2carry=(1,12), nodma=False, breadslot=(29,30), vmfirst=(30,35), vmcarry=(1,22))
        self.opt.update(kw)
        self.uid = 0

    def stamp(self, name):
        if self.stamps and name in self.stamps:
            idx = self.stamps.index(name)
            self.p(f"{self.opt.get('clk','s_memtime')} s[{86+2*idx}:{87+2*idx}]")
    def stamp_i(self, name):
        if self.stamps and name in self.stamps:
            idx = self.stamps.index(name)
            return [Inst(f"{self.opt.get('clk','s_memtime')} s[{86+2*idx}:{87+2*idx}]")]
        return []
    def label(self, base):
        self.uid += 1; return f"L_{base}_{self.uid}"
    def build_srd(self, dst, ka_off, nbytes):
        k = sKA + ka_off // 4
        self.p(f"s_mov_b32 s{dst}, s{k}\ns_and_b32 s{dst+1}, s{k+1}, 0xffff\ns_mov_b32 s{dst+2}, {nbytes}\ns_mov_b32 s{dst+3}, 0x20000")
    def build_xn_srd(self):
        k = sKA + 96 // 4
        self.p(f"s_add_u32 s{S_X}, s{k}, {WS_XN}\ns_addc_u32 s{S_X+1}, s{k+1}, 0\ns_and_b32 s{S_X+1}, s{S_X+1}, 0xffff\ns_mov_b32 s{S_X+2}, 2359296\ns_mov_b32 s{S_X+3}, 0x20000")
    def code_prefetch(self, nl, ra=40):
        L = self.label("pc")
        t = self.I(f"s_getpc_b64 s[4:5]") + [Inst(f"{L}:")]
        t += self.I(f"s_lshr_b32 s{sTmp}, s2, 3\ns_mul_i32 s{sTmp}, s{sTmp}, {nl*128}\nv_lshlrev_b32 v{ra}, 7, v{vLane}\nv_add_u32 v{ra}, s{sTmp}, v{ra}")
        t += self.I(f"v_min_u32 v{ra}, L_end-{L}-4, v{ra}\nv_and_b32 v{ra}, 0xfffffffc, v{ra}")
        t += self.I(f"v_mov_b32 v{ra+1}, s5\nv_add_co_u32 v{ra}, vcc, s4, v{ra}\nv_addc_co_u32 v{ra+1}, vcc, 0, v{ra+1}, vcc")
        t += self.I(f"s_mov_b64 exec, {(1 << nl) - 1}\nglobal_load_dword v{vDum}, v[{ra}:{ra+1}], off\ns_mov_b64 exec, -1")
        for x in t: x.opaque = True
        return t
    def add_units(self, units):
        for u in units:
            if isinstance(u, list):
                for i in u: self.p.add(i)
            else: self.p.add(u)
    def I(self, text, tag=None):
        return [Inst(l, tag) for l in text.split("\n") if l.strip()]
    def nodef(self, text, tag):
        i = Inst(text, tag); i.defs = set(); return i

    @property
    def PFD(self): return self.opt['pfd']
    def pf_tile(self, tile):
        if not self.opt["pf"] or tile > 26: return []
        if tile < 18:
            if self.opt["pfB"] and tile >= 3:
                return [Inst(f"s_mov_b32 s{sPF}, {tile * 32 * 9216}"),
                        self.nodef(f"buffer_load_dword v{vDum}, v{vPF1}, {srd(S_WG)}, s{sPF} offen", "pf"),
                        self.nodef(f"buffer_load_dword v{vDum}, v{vPF1}, {srd(S_WU)}, s{sPF} offen", "pf")]
            return [Inst(f"s_mov_b32 s{sPF}, {tile * 32 * 9216}"),
                    self.nodef(f"buffer_load_dword v{vDum}, v{vPF1}, {srd(S_W5)}, s{sPF} offen", "pf")]
        return [Inst(f"s_mov_b32 s{sPF}, {(tile - 18) * 128}"),
                self.nodef(f"buffer_load_dword v{vDum}, v{vPF2}, {srd(S_WD)}, s{sPF} offen", "pf")]
    def pf_x(self, line):
        if not self.opt["pf"] or line > 8: return []
        return [Inst(f"s_mov_b32 s{sPF}, {line * 128}"),
                self.nodef(f"buffer_load_dword v{vDum}, v{vE}, {srd(S_X)}, s{sPF} offen", "pf")]

    def onlyB(self, u):
        if not u: return u
        if self.cls == "A": return []
        if self.cls == "B": return u
        L = self.label("sk")
        r = [Inst(f"s_cmp_lt_u32 s{sW}, 4"), Inst(f"s_cbranch_scc1 {L}")] + u + [Inst(f"{L}:")]
        for x in r: x.opaque = True
        return r
    def dma_tile(self, tile):
        out = []
        if tile < 18 and self.opt["dma4"]: return self.dma_tile4(tile)
        base = (tile % 3) * SLOT
        tag = f"tile{tile}"
        if tile < 18:
            first = True
            for (srd_, vo, off) in ((S_WG, vO0, 0), (S_WG, vO1, 8192), (S_WU, vO0, 18432), (S_WU, vO1, 18432 + 8192)):
                u = []
                if first: u.append(Inst(f"s_mov_b32 s{sKoff}, {tile * 32 * 9216}")); first = False
                u.append(Inst(f"s_add_u32 m0, s{sW1024}, {base + off}"))
                u.append(Inst(f"buffer_load_dwordx4 v{vo}, {srd(srd_)}, s{sKoff} offen lds", tag=tag))
                out.append(u)
            out.append([Inst(f"s_add_u32 m0, s{sM5}, {base}"), Inst("s_mov_b32 exec_hi, 0"),
                        Inst(f"buffer_load_dwordx4 v{vO5}, {srd(S_W5)}, s{sKoff} offen lds", tag=tag),
                        Inst("s_mov_b32 exec_hi, -1")])
        else:
            c = tile - 18
            for a in range(4):
                out.append([Inst(f"s_mov_b32 s{sKoff}, {a * 73728 + c * 128}"),
                            Inst(f"s_add_u32 m0, s{sW1024}, {base + a * 8192}"),
                            Inst(f"buffer_load_dwordx4 v{vD0}, {srd(S_WD)}, s{sKoff} offen lds", tag=tag)])
            out.append([Inst(f"s_mov_b32 s{sKoff}, {c * 128}"),
                        Inst(f"s_add_u32 m0, s{sM5D}, {base}"), Inst("s_mov_b32 exec_hi, 0"),
                        Inst(f"buffer_load_dwordx4 v{vD5}, {srd(S_WD)}, s{sKoff} offen lds", tag=tag),
                        Inst("s_mov_b32 exec_hi, -1")])
        return out

    def dma_tile4(self, tile):
        out = []
        base = (tile % 3) * SLOT
        tag = f"tile{tile}"
        L = self.label("d4")
        first = True
        for ten, srd_ in ((0, S_WG), (1, S_WU)):
            for a in range(4):
                u = []
                u.append(Inst(f"s_add_u32 m0, s{sW1024}, {base + ten*18432 + a*4096}"))
                u.append(Inst(f"s_mov_b32 s{sKoff}, {tile * 32 * 9216}"))
                u.append(Inst(f"buffer_load_dwordx4 v{self.vO4[a]}, {srd(srd_)}, s{sKoff} offen lds", tag=tag))
                out.append(u)
        out.append([Inst(f"s_add_u32 m0, s{sM5}, {base}"), Inst(f"s_mov_b32 s{sKoff}, {tile * 32 * 9216}"), Inst(f"buffer_load_dwordx4 v{vO5}, {srd(S_W5)}, s{sKoff} offen lds", tag=tag)])
        return [self.skipB(u) for u in out]
    cls = None
    def skipB(self, u):
        if self.cls == "A": return u
        if self.cls == "B": return []
        L = self.label("sk")
        return [Inst(f"s_cmp_ge_u32 s{sW}, 4"), Inst(f"s_cbranch_scc1 {L}")] + u + [Inst(f"{L}:")]
    vO4 = [9, 10, 32, 33]
    def dma_x4(self, s):
        base = L_X + (s % 3) * 8192
        out = []
        for k in range(2):
            out.append(self.skipB([Inst(f"s_add_u32 m0, s{sW1024}, {base + k * 4096}"),
                 Inst(f"s_mov_b32 s{sXoff}, {s * 64 + k * 64 * 1152}"),
                 Inst(f"buffer_load_dwordx4 v{vXA}, {srd(S_X)}, s{sXoff} offen {'sc1 ' if self.opt['xsc1'] else ''}lds", tag=f"x{s}")]))
        return out

    def dma_x(self, s):
        if self.opt["dma4"]: return self.dma_x4(s)
        base = L_X + (s % 3) * 8192
        return [[Inst(f"s_mov_b32 s{sXoff}, {s * 64}"),
                 Inst(f"s_add_u32 m0, s{sW1024}, {base}"),
                 Inst(f"buffer_load_dwordx4 v{vXA}, {srd(S_X)}, s{sXoff} offen {'sc1 ' if self.opt['xsc1'] else ''}lds", tag=f"x{s}")]]

    def prologue(self):
        p = self.p
        p("s_cmp_ge_u32 s2, 256\ns_cbranch_scc1 L_end")
        p(f"s_load_dwordx16 s[{sKA}:{sKA+15}], s[0:1], 0")
        p(f"s_load_dwordx8 s[{sKA+16}:{sKA+23}], s[0:1], 64")
        p(f"s_load_dwordx2 s[{sKA+24}:{sKA+25}], s[0:1], 96")
        p(f"v_lshrrev_b32 v40, 6, v0\nv_and_b32 v{vLane}, 63, v0")
        p(f"v_readfirstlane_b32 s{sW}, v40")
        p(f"v_and_b32 v{vN}, 15, v{vLane}\nv_lshrrev_b32 v{vQ}, 4, v{vLane}\nv_mov_b32 v{vOOB}, {OOB:#x}")
        p(f"s_and_b32 s{sJ}, s2, 3\ns_lshl_b32 s{sJ}, s{sJ}, 2\ns_bfe_u32 s{sTmp}, s2, 0x20003\ns_add_u32 s{sJ}, s{sJ}, s{sTmp}")
        p(f"s_bfe_u32 s{sM}, s2, 0x10002\ns_lshl_b32 s{sM}, s{sM}, 3\ns_lshr_b32 s{sTmp}, s2, 5\ns_add_u32 s{sM}, s{sM}, s{sTmp}")
        p(f"s_lshr_b32 s{sT}, s{sW}, 2\ns_and_b32 s{sH}, s{sW}, 3\ns_lshl_b32 s{sW1024}, s{sW}, 10")
        if self.opt.get("cpf", True):
            blk = self.I(f"s_cmp_lg_u32 s{sW}, 7\ns_cbranch_scc1 L_cpf0") + self.code_prefetch(20) + [Inst("L_cpf0:")]
            for x in blk: x.opaque = True; p.add(x)
        p(f"s_lshl_b32 s{sTmp}, s{sM}, 7\ns_lshl_b32 s{sTmp2}, s{sJ}, 3\ns_add_u32 s{sTmp}, s{sTmp}, s{sTmp2}\ns_add_u32 s{sTmp}, s{sTmp}, s{sW}\ns_mul_i32 s{sPoff}, s{sTmp}, 1152")
        p(f"v_lshlrev_b32 v52, 4, v{vLane}\nv_add_u32 v53, 1024, v52\nv_cmp_gt_u32 vcc, 8, v{vLane}\nv_cndmask_b32 v53, v{vOOB}, v53, vcc")
        p(f"s_and_b32 s{sTmp}, s{sM}, 7\ns_lshl_b32 s{sTmp2}, s{sTmp}, 2\ns_add_u32 s{sTmp2}, s{sTmp2}, s{sH}\ns_mul_i32 s{sTmp2}, s{sTmp2}, 9216")
        p(f"s_mul_i32 s{sTmp3}, s{sJ}, 576\ns_and_b32 s{sTmp4}, s{sTmp3}, 0xffffff80\ns_add_u32 s{sTmp2}, s{sTmp2}, s{sTmp4}")
        p(f"v_lshlrev_b32 v40, 7, v{vLane}\nv_add_u32 v40, s{sTmp2}, v40\nv_cmp_gt_u32 vcc, 5, v{vLane}\nv_cndmask_b32 v{vPF1}, v{vOOB}, v40, vcc")
        p("s_waitcnt lgkmcnt(0)")
        self.stamp("karg")
        self.build_srd(S_T0, 0, 2359296)
        p(f"buffer_load_dwordx4 v[24:27], v52, {srd(S_T0)}, s{sPoff} offen\nbuffer_load_dwordx4 v[28:31], v53, {srd(S_T0)}, s{sPoff} offen", tag="xrow")
        self.build_srd(S_DBG, 88, 256)
        p("s_memrealtime s[72:73]")
        self.build_srd(S_WG, 56, 5308416)
        self.build_srd(S_WU, 64, 5308416)
        p(f"s_cmp_lt_u32 s{sW}, 4")
        for i in range(4): p(f"s_cselect_b32 s{S_W5+i}, s{S_WG+i}, s{S_WU+i}")
        p("s_waitcnt lgkmcnt(0)")
        p(f"s_or_b32 s72, s72, 1\ns_cmp_eq_u32 s2, 0\ns_cselect_b32 s73, 0, {OOB:#x}\nv_mov_b32 v40, s72\nv_mov_b32 v41, s73\nv_cmp_eq_u32 vcc, 0, v0\nv_cndmask_b32 v41, v{vOOB}, v41, vcc")
        p(f"buffer_store_dword v40, v41, {srd(S_DBG)}, 0 offen sc1", tag="nonce")
        for t in range(3):
            for i in self.pf_tile(t): p.add(i)
        p(f"s_cmp_lt_u32 s{sH}, 2")
        for i in range(4): p(f"s_cselect_b32 s{S_W5+i}, s{S_WG+i}, s{S_WU+i}")
        self.build_srd(S_WS, 96, WS_SIZE)
        self.build_xn_srd()
        p(f"s_lshl_b32 s{sTmp}, s{sM}, 7\ns_lshl_b32 s{sTmp2}, s{sH}, 4\ns_add_u32 s{sTmp}, s{sTmp}, s{sTmp2}")
        p(f"v_lshrrev_b32 v40, 2, v{vLane}\nv_add_u32 v40, s{sTmp}, v40\nv_mul_u32_u24 v40, 1152, v40")
        p(f"v_bfe_u32 v41, v{vLane}, 4, 1\nv_mul_u32_u24 v41, 3, v41\nv_and_b32 v42, 3, v{vLane}\nv_xor_b32 v41, v41, v42\nv_lshlrev_b32 v41, 4, v41\nv_add_u32 v{vXA}, v40, v41")
        def w_voff(dst, ireg):
            p(f"v_mul_u32_u24 v42, 1821, v{ireg}\nv_lshrrev_b32 v42, 16, v42")
            p(f"v_mul_u32_u24 v43, 36, v42\nv_sub_u32 v43, v{ireg}, v43")
            p(f"v_lshrrev_b32 v44, 2, v42\nv_and_b32 v44, 2, v44\nv_xor_b32 v43, v43, v44")
            p(f"v_lshlrev_b32 v43, 4, v43\nv_mul_u32_u24 v42, 9216, v42\nv_add_u32 v42, v42, v43\nv_add_u32 v{dst}, s{sTmp3}, v42")
        p(f"s_mul_i32 s{sTmp3}, s{sJ}, 576")
        p(f"s_lshl_b32 s{sTmp}, s{sH}, 6\nv_add_u32 v41, s{sTmp}, v{vLane}")
        for a_ in range(4):
            w_voff(self.vO4[a_], 41)
            p(f"v_add_u32 v41, 256, v41")
        p(f"s_and_b32 s{sTmp}, s{sH}, 1\ns_add_u32 s{sTmp}, s{sTmp}, 16\ns_lshl_b32 s{sTmp}, s{sTmp}, 6\nv_add_u32 v41, s{sTmp}, v{vLane}")
        w_voff(vO5, 41)
        p(f"s_lshl_b32 s{sM5}, s{sTmp}, 4\ns_lshr_b32 s{sTmp2}, s{sH}, 1\ns_mul_i32 s{sTmp2}, s{sTmp2}, 18432\ns_add_u32 s{sM5}, s{sM5}, s{sTmp2}")
        p(f"s_and_b32 s{sTmp2}, s{sJ}, 3\ns_lshl_b32 s{sTmp2}, s{sTmp2}, 5\ns_lshl_b32 s{sTmp4}, s{sH}, 3\ns_add_u32 s{sTmp2}, s{sTmp2}, s{sTmp4}\ns_lshl_b32 s{sTmp4}, s{sM}, 7\ns_add_u32 s{sTmp2}, s{sTmp2}, s{sTmp4}")
        p(f"v_add_u32 v40, s{sTmp2}, v{vLane}\nv_mul_u32_u24 v40, 1152, v40\nv_cmp_gt_u32 vcc, 8, v{vLane}\nv_cndmask_b32 v{vE}, v{vOOB}, v40, vcc")
        for i in self.nonce_issue(23): p.add(i)
        p("v_mov_b32 v40, 0x3f803f80\nv_mov_b32 v41, 0\nv_mov_b32 v42, 0")
        for r in range(8):
            p(f"v_dot2_f32_bf16 v41, v{24+r}, v40, v41\nv_dot2_f32_bf16 v42, v{24+r}, v{24+r}, v42")
        self.stamp("xrow")
        for reg in (41, 42):
            for d in ("quad_perm:[1,0,3,2]", "quad_perm:[2,3,0,1]", "row_half_mirror", "row_mirror"):
                p(f"v_add_f32_dpp v{reg}, v{reg}, v{reg} {d} row_mask:0xf bank_mask:0xf")
            for sw in ("v_permlane16_swap_b32", "v_permlane32_swap_b32"):
                p(f"v_mov_b32 v43, v{reg}\n{sw} v{reg}, v43\nv_add_f32 v{reg}, v{reg}, v43")
        p(f"v_mul_f32 v41, {f2u(1/576):#x}, v41\nv_mul_f32 v42, {f2u(1/576):#x}, v42")
        p("v_fma_f32 v42, -v41, v41, v42\nv_max_f32 v42, 0, v42")
        p("v_cvt_pk_bf16_f32 v43, v41, v42\nv_lshlrev_b32 v41, 16, v43\nv_and_b32 v42, 0xffff0000, v43")
        p(f"v_add_f32 v42, {f2u(1e-5):#x}, v42")
        p("v_cvt_pk_bf16_f32 v42, v42, v42\nv_lshlrev_b32 v42, 16, v42\nv_sqrt_f32 v42, v42")
        p("v_cvt_pk_bf16_f32 v42, v42, v42\nv_lshlrev_b32 v42, 16, v42\nv_rcp_f32 v43, v42")
        for r in range(8):
            p(f"v_lshlrev_b32 v44, 16, v{24+r}\nv_and_b32 v45, 0xffff0000, v{24+r}\nv_sub_f32 v44, v44, v41\nv_sub_f32 v45, v45, v41")
            p(f"v_cvt_pk_bf16_f32 v44, v44, v45\nv_and_b32 v45, 0xffff0000, v44\nv_lshlrev_b32 v44, 16, v44")
            p(f"v_mul_f32 v44, v44, v43\nv_mul_f32 v45, v45, v43\nv_cvt_pk_bf16_f32 v{24+r}, v44, v45")
        p(f"buffer_store_dwordx4 v[24:27], v52, {srd(S_X)}, s{sPoff} offen sc1\nbuffer_store_dwordx4 v[28:31], v53, {srd(S_X)}, s{sPoff} offen sc1", tag="xnst")
        for i in self.nonce_check(23): p.add(i)
        p.waitvm("xnst"); p("s_barrier")
        for i in self.signal(S1, 40, 41): p.add(i)
        self.stamp("s1set")
        self.add_units(self.dma_tile(0)); self.add_units(self.dma_tile(1)); self.add_units(self.dma_tile(2))
        self.build_srd(S_WD, 72, 5308416)
        self.build_srd(S_OUT, 80, 2359296)
        p(f"v_bfe_u32 v40, v{vLane}, 2, 2")
        p(f"v_lshlrev_b32 v41, 3, v{vQ}\nv_add_u32 v41, v41, v40\nv_mul_u32_u24 v41, 576, v41")
        p(f"v_and_b32 v42, 3, v{vLane}\nv_lshlrev_b32 v42, 3, v42\nv_add_u32 v41, v41, v42")
        p(f"v_and_b32 v43, 1, v{vQ}")
        p(f"s_lshl_b32 s{sTmp}, s{sH}, 2")
        p(f"v_add_u32 v44, s{sTmp}, v43\nv_lshlrev_b32 v44, 5, v44\nv_add_u32 v{vAE}, v41, v44")
        p(f"v_xor_b32 v44, 1, v43\nv_add_u32 v44, s{sTmp}, v44\nv_lshlrev_b32 v44, 5, v44\nv_add_u32 v{vAO}, v41, v44")
        p(f"s_lshr_b32 s{sTmp}, s{sH}, 1\ns_add_u32 s{sTmp}, s{sTmp}, 16")
        p(f"v_xor_b32 v44, s{sTmp}, v43\nv_lshlrev_b32 v44, 5, v44\nv_add_u32 v{vAS}, v41, v44")
        p(f"v_bfe_u32 v40, v{vN}, 2, 1\nv_mul_u32_u24 v40, 3, v40\nv_xor_b32 v40, v{vQ}, v40\nv_lshlrev_b32 v40, 4, v40")
        p(f"s_lshl_b32 s{sTmp}, s{sT}, 6\nv_add_u32 v41, s{sTmp}, v{vN}\nv_lshlrev_b32 v41, 6, v41\nv_add_u32 v41, v41, v40\nv_add_u32 v41, {L_X}, v41")
        p(f"s_and_b32 s{sE2}, s{sH}, 1\ns_lshl_b32 s{sTmp}, s{sE2}, 11")
        p(f"v_add_u32 v{vB}, s{sTmp}, v41\nv_subrev_u32 v{vB2}, s{sTmp}, v41")
        for i in self.fpoll_issue(f"s_lshl_b32 s{sTmp2}, s{sM}, 4\nv_add_u32 v22, s{sTmp2}, v{vN}\nv_lshlrev_b32 v22, 2, v22\nv_add_u32 v22, {S1}, v22", 22, 21): p.add(i)
        for i in self.fpoll_check(22, 21): p.add(i)
        self.stamp("s1ok")
        self.add_units(self.dma_x(0)); self.add_units(self.dma_x(1)); self.add_units(self.dma_x(2))

    def f3_addr(self):
        t = []
        A = lambda s: t.extend(self.I(s))
        A(f"s_and_b32 s{sTmp}, s2, 15\ns_lshl_b32 s{sTmp}, s{sTmp}, 7\ns_lshr_b32 s{sTmp2}, s2, 4\ns_lshl_b32 s{sTmp2}, s{sTmp2}, 7")
        A(f"v_bfe_u32 v22, v0, 5, 3\nv_lshlrev_b32 v22, 2, v22\nv_add_u32 v22, s{sTmp}, v22\nv_mul_u32_u24 v22, 1152, v22")
        A(f"v_and_b32 v35, 31, v0\nv_lshlrev_b32 v35, 2, v35\nv_add_u32 v35, s{sTmp2}, v35\nv_add_u32 v22, v22, v35")
        A(f"s_cmp_lt_u32 s2, 144\ns_cselect_b32 s{sTmp}, 0, {OOB:#x}\nv_add_u32 v22, s{sTmp}, v22")
        u = self.t0srd(24, 4608) + self.I(f"s_lshr_b32 s{sTmp2}, s2, 4\ns_lshl_b32 s{sTmp2}, s{sTmp2}, 9\nv_and_b32 v35, 31, v0\nv_lshlrev_b32 v35, 4, v35\nv_add_u32 v35, s{sTmp2}, v35")
        u.append(Inst(f"buffer_load_dwordx4 v[36:39], v35, {srd(S_T0)}, 0 offen", tag="e3"))
        t.append(u)
        return t
    def f3_taps(self):
        t = []
        for c in range(2):
            t += self.I(f"v_lshlrev_b32 v{40+4*c}, 16, v{36+2*c}\nv_and_b32 v{41+4*c}, 0xffff0000, v{36+2*c}\nv_lshlrev_b32 v{42+4*c}, 16, v{37+2*c}\nv_and_b32 v{43+4*c}, 0xffff0000, v{37+2*c}")
        return t
    def f3_loads(self, r):
        t = []
        if r > 0: t += self.I(f"v_add_u32 v22, {32*1152}, v22")
        t += [self.t0srd(8, 2359296)]
        for rr in range(3):
            t.append(self.I(f"v_subrev_u32 v35, {(3-rr)*1152}, v22") + [Inst(f"buffer_load_dword v{24+rr}, v35, {srd(S_T0)}, 0 offen", tag="e3")])
        for rr in range(3, 7):
            t.append(Inst(f"buffer_load_dword v{24+rr}, v22, {srd(S_T0)}, 0 offen offset:{(rr-3)*1152}", tag="e3"))
        t += [self.t0srd(16, 2359296)]
        for i in range(4):
            t.append(Inst(f"buffer_load_dword v{31+i}, v22, {srd(S_T0)}, 0 offen offset:{i*1152}", tag="e3"))
        return t
    def f3_compute(self, r):
        t = []
        A = lambda s: t.extend(self.I(s))
        A(f"v_bfe_u32 v23, v0, 6, 2\nv_add_u32 v23, {4*r}, v23\nv_and_b32 v35, 15, v0\nv_xor_b32 v23, v23, v35\nv_lshlrev_b32 v23, 4, v23")
        A(f"v_and_b32 v35, 31, v0\nv_lshlrev_b32 v35, 9, v35\nv_add_u32 v23, v23, v35\nv_bfe_u32 v35, v0, 5, 1\nv_lshlrev_b32 v35, 3, v35\nv_add_u32 v23, v23, v35\nv_add_u32 v23, {L_STG}, v23")
        for rr in range(7): A(f"v_lshlrev_b32 v{48+rr}, 16, v{24+rr}\nv_and_b32 v{24+rr}, 0xffff0000, v{24+rr}")
        for c in range(2):
            K = 48 if c == 0 else 24
            for i in range(4):
                d = 36 + i
                A(f"v_mul_f32 v{d}, v{K+3+i}, v{40+4*c}")
                for jj in range(1, 4): A(f"v_fmac_f32 v{d}, v{K+3+i-jj}, v{40+4*c+jj}")
                if c == 0: A(f"v_lshlrev_b32 v35, 16, v{31+i}")
                else: A(f"v_and_b32 v35, 0xffff0000, v{31+i}")
                A(f"v_mul_f32 v{d}, v{d}, v35")
            A(f"v_cvt_pk_bf16_f32 v36, v36, v37\nv_cvt_pk_bf16_f32 v37, v38, v39")
            A(f"ds_write_b64 v23, v[36:37] offset:{c*256}")
        return t
    def kv_store(self):
        t = []
        A = lambda s: t.extend(self.I(s))
        A(f"v_and_b32 v44, 15, v0\nv_bfe_u32 v45, v0, 4, 4")
        A(f"v_lshlrev_b32 v46, 12, v45\nv_lshlrev_b32 v47, 4, v44\nv_add_u32 v46, v46, v47")
        A(f"s_cmp_lt_u32 s2, 144\ns_cselect_b32 s{sTmp}, 0, {OOB:#x}\nv_add_u32 v46, s{sTmp}, v46")
        for r in range(4):
            A(f"v_lshrrev_b32 v47, 1, v45\nv_add_u32 v47, {8*r}, v47\nv_xor_b32 v47, v47, v44\nv_and_b32 v47, 15, v47\nv_lshlrev_b32 v47, 4, v47\nv_lshlrev_b32 v48, 8, v45\nv_add_u32 v47, v47, v48\nv_add_u32 v47, {L_STG}, v47")
            A(f"ds_read_b128 {vr(24+4*r)}, v47 offset:{r*4096}")
        A(f"s_lshr_b32 s{sTmp}, s2, 4\ns_mul_i32 s{sTmp}, s{sTmp}, {64*4096}\ns_and_b32 s{sTmp2}, s2, 15\ns_lshl_b32 s{sTmp2}, s{sTmp2}, 8\ns_add_u32 s{sTmp}, s{sTmp}, s{sTmp2}\ns_add_u32 s{sTmp}, s{sTmp}, {WS_KVT}")
        for r in range(4):
            u = [Inst(f"buffer_store_dwordx4 {vr(24+4*r)}, v46, {srd(S_WS)}, s{sTmp} offen sc1", tag="est2")]
            if r < 3: u += self.I(f"s_add_u32 s{sTmp}, s{sTmp}, {16*4096}")
            t.append(u)
        return t

    def g2_setup(self):
        t = []
        A = lambda s: t.extend(self.I(s))
        A(f"s_and_b32 s{sTmp}, s{sM}, 7\ns_lshl_b32 s{sTmp2}, s{sTmp}, 2\ns_add_u32 s{sTmp2}, s{sTmp2}, s{sH}\ns_mul_i32 s{sTmp2}, s{sTmp2}, 9")
        A(f"v_add_u32 v52, s{sTmp2}, v{vLane}\ns_mul_i32 s{sTmp3}, s{sJ}, 288\nv_add_u32 v53, s{sTmp3}, v52\nv_mul_u32_u24 v53, 1152, v53")
        A(f"v_cmp_gt_u32 vcc, 9, v{vLane}\nv_cndmask_b32 v53, v{vOOB}, v53, vcc\nv_cmp_gt_u32 vcc, 288, v52\nv_cndmask_b32 v{vPF2}, v{vOOB}, v53, vcc")
        A(f"s_mul_i32 s{sTmp}, s{sJ}, 288\ns_lshl_b32 s{sTmp2}, s{sW}, 3\ns_add_u32 s{sTmp}, s{sTmp}, s{sTmp2}")
        A(f"v_lshrrev_b32 v52, 3, v{vLane}\nv_add_u32 v53, s{sTmp}, v52\nv_mul_u32_u24 v53, 1152, v53")
        A(f"v_bfe_u32 v54, v{vLane}, 1, 2\nv_bfe_u32 v55, v{vLane}, 4, 1")
        A(f"s_and_b32 s{sTmp2}, s{sW}, 1\ns_lshl_b32 s{sTmp2}, s{sTmp2}, 1")
        A(f"v_or_b32 v{vD0}, s{sTmp2}, v55\nv_xor_b32 v{vD0}, v54, v{vD0}\nv_lshlrev_b32 v{vD0}, 5, v{vD0}")
        A(f"v_and_b32 v{vD5}, 1, v{vLane}\nv_lshlrev_b32 v{vD5}, 4, v{vD5}\nv_add_u32 v{vD0}, v{vD0}, v{vD5}\nv_add_u32 v{vD0}, v53, v{vD0}")
        A(f"s_lshr_b32 s{sTmp}, s{sW}, 1\ns_add_u32 s{sTmp}, s{sTmp}, 32\ns_and_b32 s{sTmp2}, s{sW}, 1")
        A(f"s_lshl_b32 s{sM5D}, s{sTmp}, 10\ns_lshl_b32 s{sTmp3}, s{sTmp2}, 9\ns_add_u32 s{sM5D}, s{sM5D}, s{sTmp3}")
        A(f"s_lshl_b32 s{sTmp3}, s{sTmp}, 3\ns_lshl_b32 s{sTmp2}, s{sTmp2}, 2\ns_add_u32 s{sTmp3}, s{sTmp3}, s{sTmp2}")
        A(f"s_mul_i32 s{sTmp2}, s{sJ}, 288\ns_add_u32 s{sTmp3}, s{sTmp3}, s{sTmp2}")
        A(f"v_add_u32 v53, s{sTmp3}, v52\nv_mul_u32_u24 v53, 1152, v53")
        A(f"s_and_b32 s{sTmp}, s{sTmp}, 1\ns_lshl_b32 s{sTmp}, s{sTmp}, 1")
        A(f"v_or_b32 v52, s{sTmp}, v55\nv_xor_b32 v52, v54, v52\nv_lshlrev_b32 v52, 5, v52\nv_add_u32 v52, v52, v{vD5}\nv_add_u32 v{vD5}, v53, v52")
        self.seg2 = len(t)
        A(f"v_bfe_u32 v52, v{vLane}, 2, 2\nv_lshlrev_b32 v53, 3, v{vQ}\nv_add_u32 v53, v53, v52\nv_lshlrev_b32 v53, 7, v53")
        A(f"v_lshrrev_b32 v54, 1, v52\nv_and_b32 v55, 1, v{vQ}\nv_lshlrev_b32 v55, 1, v55\nv_or_b32 v54, v54, v55")
        A(f"v_xor_b32 v54, s{sH}, v54\nv_lshlrev_b32 v54, 5, v54\nv_add_u32 v53, v53, v54")
        A(f"v_and_b32 v54, 3, v{vLane}\nv_lshlrev_b32 v54, 3, v54\nv_add_u32 v{vA2}, v53, v54")
        A(f"v_and_b32 v52, 1, v{vQ}\nv_lshlrev_b32 v52, 1, v52\nv_lshrrev_b32 v53, 3, v{vN}\nv_add_u32 v52, v52, v53")
        A(f"s_lshl_b32 s{sTmp}, s{sT}, 3\nv_add_u32 v52, s{sTmp}, v52\nv_lshlrev_b32 v52, 10, v52")
        A(f"v_lshrrev_b32 v53, 1, v{vQ}\nv_lshlrev_b32 v53, 7, v53\nv_and_b32 v54, 7, v{vN}\nv_lshlrev_b32 v54, 4, v54\nv_add_u32 v53, v53, v54")
        A(f"s_lshl_b32 s{sTmp}, s{sH}, 8\nv_add_u32 v53, s{sTmp}, v53\nv_add_u32 v{vP0}, v52, v53")
        A(f"s_lshl_b32 s{sPoff}, s{sM}, 4\ns_add_u32 s{sPoff}, s{sPoff}, s{sJ}\ns_mul_i32 s{sPoff}, s{sPoff}, 147456\ns_add_u32 s{sPoff}, s{sPoff}, {WS_P}")
        return t

    def e1_loads(self):
        t = []
        t += self.I(f"s_lshl_b32 s{sTmp}, s{sM}, 7\ns_lshl_b32 s{sTmp2}, s{sJ}, 3\ns_add_u32 s{sTmp}, s{sTmp}, s{sTmp2}\ns_add_u32 s{sTmp}, s{sTmp}, s{sW}\ns_mul_i32 s{sTmp}, s{sTmp}, 1152")
        t += self.I(f"v_lshlrev_b32 v52, 4, v{vLane}\nv_add_u32 v53, 1024, v52\nv_cmp_gt_u32 vcc, 8, v{vLane}\nv_cndmask_b32 v53, v{vOOB}, v53, vcc")
        t.append(Inst(f"buffer_load_dwordx4 v[24:27], v52, {srd(S_X)}, s{sTmp} offen", tag="e1"))
        t.append(Inst(f"buffer_load_dwordx4 v[28:31], v53, {srd(S_X)}, s{sTmp} offen", tag="e1"))
        return t
    def e1_compute(self):
        t = []
        A = lambda s: t.extend(self.I(s))
        A("v_mov_b32 v52, 0\nv_mov_b32 v53, 0")
        for r in range(8):
            A(f"v_lshlrev_b32 v54, 16, v{24+r}\nv_and_b32 v55, 0xffff0000, v{24+r}\nv_add_f32 v52, v52, v54\nv_fmac_f32 v53, v54, v54\nv_add_f32 v52, v52, v55\nv_fmac_f32 v53, v55, v55")
        for reg in (52, 53):
            for d in ("quad_perm:[1,0,3,2]", "quad_perm:[2,3,0,1]", "row_half_mirror", "row_mirror"):
                A(f"v_add_f32_dpp v{reg}, v{reg}, v{reg} {d} row_mask:0xf bank_mask:0xf")
            for sw in ("v_permlane16_swap_b32", "v_permlane32_swap_b32"):
                A(f"v_mov_b32 v54, v{reg}\n{sw} v{reg}, v54\nv_add_f32 v{reg}, v{reg}, v54")
        A(f"v_mul_f32 v52, {f2u(1/576):#x}, v52\nv_mul_f32 v53, {f2u(1/576):#x}, v53")
        A("v_fma_f32 v53, -v52, v52, v53\nv_max_f32 v53, 0, v53")
        A("v_cvt_pk_bf16_f32 v54, v52, v53\nv_lshlrev_b32 v52, 16, v54\nv_and_b32 v53, 0xffff0000, v54")
        A(f"v_add_f32 v53, {f2u(1e-5):#x}, v53")
        A("v_cvt_pk_bf16_f32 v53, v53, v53\nv_lshlrev_b32 v53, 16, v53\nv_sqrt_f32 v53, v53")
        A("v_cvt_pk_bf16_f32 v53, v53, v53\nv_lshlrev_b32 v53, 16, v53\nv_rcp_f32 v54, v53")
        c1 = -2.0 * math.sqrt(2.0 / math.pi) * math.log2(math.e)
        A(f"v_sub_f32 v24, 0, v52\nv_mul_f32 v25, {f2u(c1):#x}, v54")
        A(f"v_mul_f32 v26, v54, v54\nv_mul_f32 v26, v26, v54\nv_mul_f32 v26, {f2u(c1*0.044715):#x}, v26\nv_mul_f32 v27, v53, v53")
        A(f"s_lshl_b32 s{sTmp}, s{sM}, 7\ns_lshl_b32 s{sTmp2}, s{sJ}, 3\ns_add_u32 s{sTmp}, s{sTmp}, s{sTmp2}\ns_add_u32 s{sTmp}, s{sTmp}, s{sW}\ns_lshl_b32 s{sTmp}, s{sTmp}, 4\ns_add_u32 s{sTmp}, s{sTmp}, {WS_ST}")
        A(f"v_cmp_eq_u32 vcc, 0, v{vLane}\nv_cndmask_b32 v54, v{vOOB}, v{vLane}, vcc")
        t.append(Inst(f"buffer_store_dwordx4 v[24:27], v54, {srd(S_WS)}, s{sTmp} offen sc1", tag="est"))
        return t
    def e2_loads(self, r):
        t = []
        if r == 0:
            t += self.I(f"v_lshlrev_b32 v22, 4, v{vLane}\nv_cmp_gt_u32 vcc, 36, v{vLane}\nv_cndmask_b32 v22, v{vOOB}, v22, vcc")
        t += self.I(f"s_mul_i32 s{sTmp}, s{sM}, 36\ns_add_u32 s{sTmp}, s{sTmp}, s{sH}\ns_add_u32 s{sTmp}, s{sTmp}, {20*r}\ns_mul_i32 s{sTmp}, s{sTmp}, 9216\ns_mul_i32 s{sTmp2}, s{sJ}, 576\ns_add_u32 s{sTmp}, s{sTmp}, s{sTmp2}")
        n = 5 if r == 0 else 4
        for a in range(n):
            t.append(Inst(f"buffer_load_dwordx4 {vr(32+4*a)}, v22, {srd(S_W5)}, s{sTmp} offen", tag="e2"))
            if a < n - 1: t += self.I(f"s_add_u32 s{sTmp}, s{sTmp}, {4*9216}")
        return t
    def e2_compute(self, r):
        t = []
        n = 5 if r == 0 else 4
        for a in range(n):
            for q in range(4):
                s = 32 + 4 * a + q
                if r == 0 and a == 0:
                    t += self.I(f"v_lshlrev_b32 v{24+2*q}, 16, v{s}\nv_and_b32 v{25+2*q}, 0xffff0000, v{s}")
                else:
                    t += self.I(f"v_lshlrev_b32 v54, 16, v{s}\nv_and_b32 v55, 0xffff0000, v{s}\nv_add_f32 v{24+2*q}, v{24+2*q}, v54\nv_add_f32 v{25+2*q}, v{25+2*q}, v55")
        return t
    def e2_add(self):
        t = self.I(f"s_mul_i32 s{sTmp}, s{sW}, 1152\ns_add_u32 s{sTmp}, s{sTmp}, {L_KVL}\nv_lshlrev_b32 v54, 5, v{vLane}\nv_add_u32 v54, s{sTmp}, v54")
        t += self.I(f"v_lshlrev_b32 v55, 5, v{vLane}\nv_and_b32 v55, 0x3ff, v55\nv_add_u32 v55, {L_DUMMY}, v55\nv_cmp_gt_u32 vcc, 36, v{vLane}\nv_cndmask_b32 v54, v55, v54, vcc")
        t += self.I(f"ds_write_b128 v54, v[24:27]\nds_write_b128 v54, v[28:31] offset:16")
        return t
    def e2_store(self):
        t = self.I(f"v_cmp_lt_u32 vcc, 71, v0\nv_cndmask_b32 v52, 0, 1, vcc\nv_mul_u32_u24 v53, 72, v52\nv_sub_u32 v53, v0, v53")
        t += self.I(f"v_mul_u32_u24 v52, {4*1152}, v52\nv_lshlrev_b32 v53, 4, v53\nv_add_u32 v53, v53, v52\nv_add_u32 v53, {L_KVL}, v53")
        t += self.I(f"v_lshlrev_b32 v54, 2, v{vLane}\nv_and_b32 v54, 0xf0, v54\nv_add_u32 v54, {L_DUMMY}, v54\nv_cmp_gt_u32 vcc, 144, v0\nv_cndmask_b32 v53, v{vDum}, v53, vcc" if False else f"v_mov_b32 v54, {L_KVL}\nv_cmp_gt_u32 vcc, 144, v0\nv_cndmask_b32 v53, v54, v53, vcc")
        for k in range(4):
            t += self.I(f"ds_read_b128 {vr(32+4*k)}, v53 offset:{k*1152}")
        for k in range(1, 4):
            for e in range(4): t += self.I(f"v_add_f32 v{32+e}, v{32+e}, v{32+4*k+e}")
        t += self.I(f"v_lshlrev_b32 v52, 4, v0\nv_cndmask_b32 v52, v{vOOB}, v52, vcc")
        t += self.I(f"s_lshl_b32 s{sTmp}, s{sJ}, 4\ns_add_u32 s{sTmp}, s{sTmp}, s{sM}\ns_mul_i32 s{sTmp}, s{sTmp}, 2304\ns_add_u32 s{sTmp}, s{sTmp}, {WS_CSP}")
        t.append(Inst(f"buffer_store_dwordx4 v[32:35], v52, {srd(S_WS)}, s{sTmp} offen sc1", tag="est"))
        return t
    E3K, E3V, E3W = 80, 94, 102
    def e3_base(self, dst, t):
        A = lambda s: t.extend(self.I(s))
        A(f"s_and_b32 s{sTmp}, s2, 15\ns_lshl_b32 s{sTmp}, s{sTmp}, 7\ns_lshr_b32 s{sTmp2}, s2, 4\ns_lshl_b32 s{sTmp2}, s{sTmp2}, 7")
        A(f"v_lshrrev_b32 v{dst}, 4, v0\nv_lshlrev_b32 v{dst}, 2, v{dst}\nv_add_u32 v{dst}, s{sTmp}, v{dst}\nv_mul_u32_u24 v{dst}, 1152, v{dst}")
        A(f"v_and_b32 v{dst+1}, 15, v0\nv_lshlrev_b32 v{dst+1}, 3, v{dst+1}\nv_add_u32 v{dst+1}, s{sTmp2}, v{dst+1}\nv_add_u32 v{dst}, v{dst}, v{dst+1}")
        A(f"s_cmp_lt_u32 s2, 144\ns_cselect_b32 s{sTmp}, 0, {OOB:#x}\nv_add_u32 v{dst}, s{sTmp}, v{dst}")
    def t0srd(self, ka, n):
        k = sKA + ka // 4
        return self.I(f"s_mov_b32 s{S_T0}, s{k}\ns_and_b32 s{S_T0+1}, s{k+1}, 0xffff\ns_mov_b32 s{S_T0+2}, {n}\ns_mov_b32 s{S_T0+3}, 0x20000")
    def e3_prefetch(self):
        t = []
        A = lambda s: t.extend(self.I(s))
        A(f"s_and_b32 s{sTmp}, s2, 15\ns_lshl_b32 s{sTmp}, s{sTmp}, 7\ns_lshl_b32 s{sTmp2}, s{sH}, 5\ns_add_u32 s{sTmp}, s{sTmp}, s{sTmp2}\ns_lshr_b32 s{sTmp2}, s2, 4\ns_lshl_b32 s{sTmp2}, s{sTmp2}, 7")
        A(f"v_add_u32 v34, s{sTmp}, v{vLane}\nv_subrev_u32 v34, 3, v34\ns_movk_i32 s{sTmp3}, 1152\nv_mul_lo_u32 v34, v34, s{sTmp3}\nv_add_u32 v34, s{sTmp2}, v34")
        A(f"v_cmp_gt_u32 vcc, 9, v{vLane}\nv_cndmask_b32 v34, v{vOOB}, v34, vcc\ns_cmp_lt_u32 s2, 144\ns_cselect_b32 s{sTmp}, 0, {OOB:#x}\nv_or_b32 v34, s{sTmp}, v34")
        units = []
        for part in range(4):
            for ka in (8, 16):
                u = self.t0srd(ka, 2359296) + [self.nodef(f"buffer_load_dword v{vDum}, v34, {srd(S_T0)}, 0 offen", "pf")]
                if ka == 16 and part < 3: u += self.I(f"v_add_u32 v34, {9*1152}, v34")
                units.append(u)
        return t, units
    def e3_loads(self):
        t = []
        K0, V0, W0 = self.E3K, self.E3V, self.E3W
        self.e3_base(52, t)
        t += self.t0srd(8, 2359296)
        for r in range(3):
            t += self.I(f"v_subrev_u32 v54, {(3-r)*1152}, v52")
            t.append(Inst(f"buffer_load_dwordx2 {vr(K0+2*r,2)}, v54, {srd(S_T0)}, 0 offen", tag="e3"))
        for r in range(3, 7):
            t.append(Inst(f"buffer_load_dwordx2 {vr(K0+2*r,2)}, v52, {srd(S_T0)}, 0 offen offset:{(r-3)*1152}", tag="e3"))
        t += self.t0srd(16, 2359296)
        for i in range(4):
            t.append(Inst(f"buffer_load_dwordx2 {vr(V0+2*i,2)}, v52, {srd(S_T0)}, 0 offen offset:{1152*i}", tag="e3"))
        t += self.t0srd(24, 4608)
        t += self.I(f"s_lshr_b32 s{sTmp2}, s2, 4\ns_lshl_b32 s{sTmp2}, s{sTmp2}, 9\nv_and_b32 v54, 15, v0\nv_lshlrev_b32 v54, 5, v54\nv_add_u32 v54, s{sTmp2}, v54")
        t.append(Inst(f"buffer_load_dwordx4 {vr(W0)}, v54, {srd(S_T0)}, 0 offen", tag="e3"))
        t.append(Inst(f"buffer_load_dwordx4 {vr(W0+4)}, v54, {srd(S_T0)}, 0 offen offset:16", tag="e3"))
        return t
    def e3_compute(self):
        p = self.p
        K0, V0, W0 = self.E3K, self.E3V, self.E3W
        for c in range(4):
            p(f"v_lshlrev_b32 v{136+4*c}, 16, v{W0+2*c}\nv_and_b32 v{137+4*c}, 0xffff0000, v{W0+2*c}")
            p(f"v_lshlrev_b32 v{138+4*c}, 16, v{W0+2*c+1}\nv_and_b32 v{139+4*c}, 0xffff0000, v{W0+2*c+1}")
        for r in range(7):
            p(f"v_lshlrev_b32 v{152+4*r}, 16, v{K0+2*r}\nv_and_b32 v{153+4*r}, 0xffff0000, v{K0+2*r}")
            p(f"v_lshlrev_b32 v{154+4*r}, 16, v{K0+2*r+1}\nv_and_b32 v{155+4*r}, 0xffff0000, v{K0+2*r+1}")
        for i in range(4):
            p(f"v_lshlrev_b32 v{180+4*i}, 16, v{V0+2*i}\nv_and_b32 v{181+4*i}, 0xffff0000, v{V0+2*i}")
            p(f"v_lshlrev_b32 v{182+4*i}, 16, v{V0+2*i+1}\nv_and_b32 v{183+4*i}, 0xffff0000, v{V0+2*i+1}")
        for c in range(4):
            for i in range(4): p(f"v_mul_f32 v{200+4*c+i}, v{152+4*(3+i)+c}, v{136+4*c}")
        for jj in range(1, 4):
            for c in range(4):
                for i in range(4): p(f"v_fmac_f32 v{200+4*c+i}, v{152+4*(3+i-jj)+c}, v{136+4*c+jj}")
        for c in range(4):
            for i in range(4): p(f"v_mul_f32 v{200+4*c+i}, v{200+4*c+i}, v{180+4*i+c}")
        for c in range(4):
            p(f"v_cvt_pk_bf16_f32 v{216+2*c}, v{200+4*c}, v{201+4*c}\nv_cvt_pk_bf16_f32 v{217+2*c}, v{202+4*c}, v{203+4*c}")
    def e3_kvl_write(self):
        p = self.p
        p(f"v_and_b32 v224, 15, v0\nv_lshrrev_b32 v225, 5, v0\nv_xor_b32 v225, v225, v224\nv_lshlrev_b32 v225, 4, v225\nv_lshlrev_b32 v224, 10, v224\nv_add_u32 v224, v224, v225")
        p(f"v_bfe_u32 v225, v0, 4, 1\nv_lshlrev_b32 v225, 3, v225\nv_add_u32 v224, v224, v225\nv_add_u32 v224, {L_STG}, v224")
        for c in range(4): p(f"ds_write_b64 v224, {vr(216+2*c,2)} offset:{c*256}")
    def e3_store(self):
        t = []
        A = lambda s: t.extend(self.I(s))
        A(f"v_and_b32 v5, 255, v0\nv_and_b32 v6, 15, v5\nv_lshrrev_b32 v8, 4, v5")
        A(f"v_lshlrev_b32 v9, 12, v8\nv_lshlrev_b32 v10, 4, v6\nv_add_u32 v9, v9, v10")
        A(f"s_cmp_lt_u32 s2, 144\ns_cselect_b32 s{sTmp}, 0, {OOB:#x}\nv_add_u32 v9, s{sTmp}, v9")
        A(f"v_lshrrev_b32 v10, 6, v5\nv_lshlrev_b32 v8, 8, v8\nv_add_u32 v8, {L_STG}, v8")
        A(f"s_lshr_b32 s{sTmp}, s2, 4\ns_mul_i32 s{sTmp}, s{sTmp}, {64*4096}\ns_and_b32 s{sTmp2}, s2, 15\ns_lshl_b32 s{sTmp2}, s{sTmp2}, 8\ns_add_u32 s{sTmp}, s{sTmp}, s{sTmp2}\ns_add_u32 s{sTmp}, s{sTmp}, {WS_KVT}")
        for r in range(4):
            A(f"v_add_u32 v11, {4*r}, v10\nv_xor_b32 v11, v11, v6\nv_and_b32 v11, 15, v11\nv_lshlrev_b32 v11, 4, v11\nv_add_u32 v11, v11, v8")
            A(f"ds_read_b128 {vr(40+4*(r%2))}, v11 offset:{r*4096}")
            u = [Inst(f"buffer_store_dwordx4 {vr(40+4*(r%2))}, v9, {srd(S_WS)}, s{sTmp} offen sc1", tag="est2")]
            if r < 3: u += self.I(f"s_add_u32 s{sTmp}, s{sTmp}, {16*4096}")
            t.append(u)
        return t

    def signal(self, which, ra=52, rb=53):
        if which == S1: idx = f"s_lshl_b32 s{sTmp2}, s{sM}, 4\ns_add_u32 s{sTmp2}, s{sTmp2}, s{sJ}\ns_lshl_b32 s{sTmp2}, s{sTmp2}, 2"
        else: idx = f"s_lshl_b32 s{sTmp2}, s2, 2"
        return self.set_flag(idx + f"\ns_add_u32 s{sTmp2}, s{sTmp2}, {WS_FLAG + which}", "sig", ra, rb)
    def nonce_issue(self, reg):
        return self.I(f"v_mov_b32 v{reg}, 0") + [Inst(f"buffer_load_dword v{reg}, v{reg}, {srd(S_DBG)}, 0 offen sc1", tag="poll")]
    def nonce_check(self, reg):
        L = self.label("spin"); D = self.label("spind")
        out = self.I(f"v_readfirstlane_b32 s{sNonce}, v{reg}\ns_cmp_lg_u32 s{sNonce}, 0\ns_cbranch_scc1 {D}")
        out += self.I(f"s_mov_b32 s{sTmp2}, 0x20000")
        sp = [Inst(f"{L}:")]
        sp += self.I(f"s_sleep 4\nv_mov_b32 v{reg}, 0\nbuffer_load_dword v{reg}, v{reg}, {srd(S_DBG)}, 0 offen sc1\ns_waitcnt vmcnt(0)\nv_readfirstlane_b32 s{sNonce}, v{reg}\ns_sub_u32 s{sTmp2}, s{sTmp2}, 1\ns_cmp_eq_u32 s{sTmp2}, 0\ns_cbranch_scc1 {D}\ns_cmp_eq_u32 s{sNonce}, 0\ns_cbranch_scc1 {L}")
        for x in sp: x.opaque = True
        out += sp + [Inst(f"{D}:")]
        return out
    def fpoll_issue(self, addr_insts, ra, rv, tag="poll"):
        return self.I(addr_insts) + self.I(f"s_mov_b32 s{sTmp}, {WS_FLAG}") + [Inst(f"buffer_load_dword v{rv}, v{ra}, {srd(S_WS)}, s{sTmp} offen sc1", tag=tag)]
    def fpoll_check(self, ra, rv):
        L = self.label("spin"); D = self.label("spind")
        out = self.I(f"v_readfirstlane_b32 s{sTmp}, v{rv}\nv_cmp_ne_u32 vcc, s{sNonce}, v{rv}\ns_cmp_eq_u64 vcc, 0\ns_cbranch_scc1 {D}")
        out += self.I(f"s_mov_b32 s{sTmp2}, 0x20000\ns_mov_b32 s{sTmp}, {WS_FLAG}")
        sp = [Inst(f"{L}:")]
        sp += self.I(f"s_sleep 4\nbuffer_load_dword v{rv}, v{ra}, {srd(S_WS)}, s{sTmp} offen sc1\ns_waitcnt vmcnt(0)\nv_cmp_ne_u32 vcc, s{sNonce}, v{rv}\ns_nop 4\ns_sub_u32 s{sTmp2}, s{sTmp2}, 1\ns_cmp_eq_u32 s{sTmp2}, 0\ns_cbranch_scc1 {D}\ns_cmp_lg_u64 vcc, 0\ns_cbranch_scc1 {L}")
        for x in sp: x.opaque = True
        out += sp + [Inst(f"{D}:")]
        return out
    def s1_addr(self, ra):
        return (f"s_lshl_b32 s{sTmp2}, s{sM}, 4\nv_add_u32 v{ra}, s{sTmp2}, v{vN}\nv_lshlrev_b32 v{ra+1}, 4, v{vN}\nv_add_u32 v{ra+1}, s{sJ}, v{ra+1}\n"
                f"v_cmp_gt_u32 vcc, 16, v{vLane}\nv_cndmask_b32 v{ra}, v{ra+1}, v{ra}, vcc\nv_lshlrev_b32 v{ra}, 2, v{ra}\nv_add_u32 v{ra}, {S1}, v{ra}")
    def s2_addr(self, ra):
        return (f"s_mul_i32 s{sTmp2}, s{sCW}, 3\ns_add_u32 s{sTmp3}, s{sTmp2}, 2\ns_lshr_b32 s{sTmp2}, s{sTmp2}, 6\ns_lshr_b32 s{sTmp3}, s{sTmp3}, 6\n"
                f"s_lshl_b32 s{sTmp2}, s{sTmp2}, 4\ns_lshl_b32 s{sTmp3}, s{sTmp3}, 4\nv_add_u32 v{ra}, s{sTmp2}, v{vN}\nv_add_u32 v{ra+1}, s{sTmp3}, v{vN}\n"
                f"v_cmp_gt_u32 vcc, 16, v{vLane}\nv_cndmask_b32 v{ra}, v{ra+1}, v{ra}, vcc\nv_lshlrev_b32 v{ra}, 2, v{ra}\nv_add_u32 v{ra}, {S2}, v{ra}")

    def emit_step(self, mf, pre):
        p = self.p
        for i, m in enumerate(mf):
            for x in pre.get(i, []): p.add(x)
            p.add(m)
        for x in pre.get(len(mf), []): p.add(x)

    def slot_advance(self, regs, frm, to):
        d = ((to % 3) - (frm % 3)) * SLOT
        if d > 0: return [Inst(f"v_add_u32 v{r}, {d}, v{r}") for r in regs]
        return [Inst(f"v_subrev_u32 v{r}, {-d}, v{r}") for r in regs]

    G1_START = [0, 2, 4, 8, 12, 16, 20, 24, 28, 32]
    G1_READ = [-6, -4, -2, 2, 6, 10, 13, 16, 18, 20]
    BARSLOT = 28
    def frbuf(self, idx):
        fb = self.opt["frbuf"] or [FR0 + 4 * i for i in range(NFR)]
        return fb[idx % len(fb)]
    def g1_frag_reads(self, s, fi):
        buf = self.frbuf(s * 10 + fi)
        if fi < 2: base, off = vAS, fi * 18432
        else:
            a = (fi - 2) // 2; ten = (fi - 2) % 2
            base = vAE if a % 2 == 0 else vAO
            off = ten * 18432 + (a >> 1) * 64
        return [Inst(f"ds_read_b64_tr_b16 {vr(buf,2)}, v{base} offset:{off}"),
                Inst(f"ds_read_b64_tr_b16 {vr(buf+2,2)}, v{base} offset:{off + 2304}")]
    def g1_b_reads(self, s):
        return [Inst(f"ds_read_b128 {vr(BFR[s % 2] + 4*i)}, v{vB if i < 2 else vB2} offset:{(s % 3) * 8192 + i * 1024}") for i in range(4)]
    def g1_mfmas(self, s):
        out = []
        B = BFR[s % 2]
        for fi in range(10):
            buf = self.frbuf(s * 10 + fi)
            if fi < 2: lst = [(k, acc_sh(fi, k)) for k in range(2)]
            else:
                a = (fi - 2) // 2; ten = (fi - 2) % 2
                lst = [(i, acc_own(a, ten, i)) for i in range(4)]
            for (i, acc) in lst:
                c = "0" if s == 0 else vr(acc)
                out.append(Inst(f"v_mfma_f32_16x16x32_bf16 {vr(acc)}, {vr(buf)}, {vr(B + 4*i)}, {c}"))
        return out

    vC1, vC2 = 52, 53
    def gelu_pair(self, G, U, T):
        o = []
        for i in range(4): o.append(f"v_mul_f32 v{T+i}, v{G+i}, v{G+i}")
        for i in range(4): o.append(f"v_fma_f32 v{T+i}, v{T+i}, v{self.vC2}, v{self.vC1}")
        for i in range(4): o.append(f"v_mul_f32 v{T+i}, v{T+i}, v{G+i}")
        for i in range(4): o.append(f"v_exp_f32 v{T+i}, v{T+i}")
        for i in range(4): o.append(f"v_mul_f32 v{U+i}, v{G+i}, v{U+i}")
        for i in range(4): o.append(f"v_add_f32 v{T+i}, 1.0, v{T+i}")
        for i in range(4): o.append(f"v_rcp_f32 v{T+i}, v{T+i}")
        for i in range(4): o.append(f"v_mul_f32 v{U+i}, v{U+i}, v{T+i}")
        o.append(f"v_cvt_pk_bf16_f32 v{G}, v{U}, v{U+1}")
        o.append(f"v_cvt_pk_bf16_f32 v{G+1}, v{U+2}, v{U+3}")
        return [Inst(x) for x in o]

    def consts_loads(self):
        ld = []
        ld += self.I(f"s_lshl_b32 s{sTmp}, s{sM}, 7\ns_lshl_b32 s{sTmp2}, s{sT}, 6\ns_add_u32 s{sTmp}, s{sTmp}, s{sTmp2}\ns_lshl_b32 s{sTmp}, s{sTmp}, 4\ns_add_u32 s{sTmp}, s{sTmp}, {WS_ST}")
        ld += self.I(f"v_lshlrev_b32 v22, 4, v{vN}\ns_lshl_b32 s{sTmp3}, s{sE2}, 1")
        for i in range(4):
            ld += self.I(f"s_xor_b32 s{sTmp2}, s{sTmp3}, {i}\ns_lshl_b32 s{sTmp2}, s{sTmp2}, 8\ns_add_u32 s{sTmp2}, s{sTmp2}, s{sTmp}")
            ld.append(Inst(f"buffer_load_dwordx4 {vr(vK0+4*i)}, v22, {srd(S_WS)}, s{sTmp2} offen sc1", tag="kc"))
        return ld
    def g1(self):
        p = self.p
        p.waitvm("tile0"); p.waitvm("x0"); p.waitlg(); p("s_barrier")
        for i in self.g1_b_reads(0): p.add(i)
        G1R = self.opt["g1read"] or self.G1_READ
        npre = sum(1 for r in G1R if r < 0)
        for fi in range(npre):
            for i in self.g1_frag_reads(0, fi): p.add(i)
        self.stamp("g1start")
        p(f"s_cmp_ge_u32 s{sW}, 4\ns_cbranch_scc1 L_g1B")
        p.save()
        self.cls = "A"; self.g1_version("A")
        p("s_branch L_g1end")
        p("L_g1B:")
        p.restore()
        self.cls = "B"; self.g1_version("B")
        p("L_g1end:")
        self.cls = None

    def g1_version(self, cls):
        p = self.p
        G1R = self.opt["g1read"] or self.G1_READ
        BAR = self.opt["barslot"]
        npre = sum(1 for r in G1R if r < 0)
        plan = {s: [] for s in range(18)}
        g2s = self.g2_setup()
        if cls == "B":
            plan[0] += [u for u in ([self.pf_x(1), self.pf_x(2)] + [self.pf_tile(t) for t in range(3, self.PFD)]) if u]
        if cls == "A":
            plan[1] += g2s[:12]
            plan[2] += g2s[12:self.seg2]
            plan[3] += g2s[self.seg2:]
        else:
            plan[1] += g2s[:12]
            plan[2] += g2s[12:self.seg2]
            plan[3] += g2s[self.seg2:]
        if self.opt["prio"] and cls == "A": p("s_setprio 1")
        carry = []
        for s in range(18):
            pre = {}
            def put(slot, insts): pre.setdefault(slot, []).extend(insts)
            def spread(insts, lo, hi):
                insts = [x for x in insts if not (isinstance(x, list) and not x)]
                n = len(insts)
                for k, x in enumerate(insts): put(lo + (k * (hi - lo + 1)) // n, x if isinstance(x, list) else [x])
            for fi in range(npre, 10): put(G1R[fi], self.g1_frag_reads(s, fi))
            if carry: spread(carry, *self.opt["vmcarry"]); carry = []
            if plan[s]: spread(self.atomize(plan[s]), 1, 26)
            w = [Inst("WAITLG")]
            if s + 1 < 18 and cls == "A":
                for tg in (f"tile{s+1}", f"x{s+1}"):
                    wv = Inst("WAITVM"); wv.tag = tg; w.append(wv)
            w.append(Inst("s_barrier"))
            put(BAR, w)
            if s + 1 < 18:
                put(BAR, self.slot_advance([vAS, vAE, vAO], s, s + 1))
                br = self.g1_b_reads(s + 1)
                put(self.opt["breadslot"][0], br[:2]); put(self.opt["breadslot"][1], br[2:])
                for fi in range(npre): put(36 + G1R[fi], self.g1_frag_reads(s + 1, fi))
            vm = []
            if cls == "A":
                if s + 3 < 18: vm += self.dma_x(s + 3) + self.dma_tile(s + 3)
                elif s + 3 < 20: vm += self.dma_tileA(s + 3)
            else:
                if s + self.PFD < 18: vm.append(self.pf_tile(s + self.PFD))
                if s in (9, 10): vm.append(self.pf_tile(s + 9))
                if s % 2 == 0 and self.pf_x(s // 2 + 3): vm.append(self.pf_x(s // 2 + 3))
                vm = [u for u in vm if u]
            if vm:
                nfirst = min(3, len(vm))
                spread(vm[:nfirst], *self.opt["vmfirst"]); carry = vm[nfirst:]
            put(0, self.stamp_i(f"st{s}"))
            self.emit_step(self.g1_mfmas(s), pre)
        self.add_units(carry)
        if self.opt["prio"] and cls == "A": p("s_setprio 0")

    def atomize(self, insts):
        out = []; i = 0
        while i < len(insts):
            x = insts[i]
            if isinstance(x, list):
                out.append(x); i += 1; continue
            if x.op.startswith("v_readfirstlane") and any((not isinstance(y, list)) and y.kind == "branch" for y in insts[i+1:i+5]):
                j = i
                while not (insts[j].kind == "label" and insts[j].text.startswith("L_spind")): j += 1
                out.append(insts[i:j+1]); i = j + 1; continue
            if x.op.startswith("s_cmp") or (x.op == "s_add_u32" and i + 1 < len(insts) and not isinstance(insts[i+1], list) and insts[i+1].op == "s_addc_u32"):
                j = i + 1
                while j < len(insts) and not isinstance(insts[j], list) and (insts[j].op.startswith("s_cselect") or insts[j].op.startswith("s_addc") or insts[j].kind == "branch"): j += 1
                out.append(insts[i:j]); i = j; continue
            out.append(x); i += 1
        return out

    def cs_ld0(self):
        ld = self.I(f"v_lshlrev_b32 v23, 3, v0\nv_cmp_gt_u32 vcc, 288, v0\nv_cndmask_b32 v23, v{vOOB}, v23, vcc")
        ld += self.I(f"s_mul_i32 s{sCS}, s{sJ}, {16*2304}\ns_add_u32 s{sCS}, s{sCS}, {WS_CSP}")
        for mm in range(8):
            ld.append(Inst(f"buffer_load_dwordx2 {vr(40+2*mm,2)}, v23, {srd(S_WS)}, s{sCS} offen sc1", tag="cs"))
            ld += self.I(f"s_add_u32 s{sCS}, s{sCS}, 2304")
        return ld
    def cs_ld1(self):
        t = []
        for mm in range(1, 8): t += self.I(f"v_add_f32 v40, v40, v{40+2*mm}\nv_add_f32 v41, v41, v{41+2*mm}")
        for mm in range(7):
            t.append(Inst(f"buffer_load_dwordx2 {vr(42+2*mm,2)}, v23, {srd(S_WS)}, s{sCS} offen sc1", tag="cs"))
            t += self.I(f"s_add_u32 s{sCS}, s{sCS}, 2304")
        t.append(Inst(f"buffer_load_dword v21, v23, {srd(S_WS)}, s{sCS} offen sc1", tag="cs"))
        t.append(Inst(f"buffer_load_dword v22, v23, {srd(S_WS)}, s{sCS} offen offset:4 sc1", tag="cs"))
        return t
    vCSa, vCSs = 22, 23
    def cs_sum(self):
        t = []
        for mm in range(7): t += self.I(f"v_add_f32 v40, v40, v{42+2*mm}\nv_add_f32 v41, v41, v{43+2*mm}")
        t += self.I(f"v_add_f32 v40, v40, v21\nv_add_f32 v41, v41, v22")
        t += self.I(f"v_lshlrev_b32 v42, 3, v0\nv_add_u32 v42, {L_CS}, v42\nv_lshlrev_b32 v43, 3, v{vLane}\nv_add_u32 v43, {L_DUMMY}, v43\nv_cmp_gt_u32 vcc, 288, v0\nv_cndmask_b32 v42, v43, v42, vcc")
        t += self.I(f"ds_write_b64 v42, v[40:41]")
        t += self.I(f"v_lshlrev_b32 v43, 4, v{vQ}\ns_lshl_b32 s{sTmp}, s{sH}, 8\ns_add_u32 s{sTmp}, s{sTmp}, {L_CS}\nv_add_u32 v{self.vCSa}, s{sTmp}, v43")
        t += self.I(f"s_lshr_b32 s{sTmp}, s{sH}, 1\ns_lshl_b32 s{sTmp}, s{sTmp}, 6\ns_add_u32 s{sTmp}, s{sTmp}, {L_CS + 1024}\nv_add_u32 v{self.vCSs}, s{sTmp}, v43")
        return t

    def gelu_tail(self):
        p = self.p
        self.add_units(self.e3_loads())
        self.add_units(self.atomize(self.conv_h_loads()))
        tl = []
        for t_ in range(20, 27): tl += self.pf_tile(t_)
        for x in self.onlyB(tl): p.add(x)
        if self.opt.get("cpf", True):
            blk = self.I(f"s_cmp_lg_u32 s{sW}, 5\ns_cbranch_scc1 L_cpf1") + self.code_prefetch(12, 40) + [Inst("L_cpf1:")]
            for x in blk: x.opaque = True; p.add(x)
        HR = 54
        HW = [56, 57, 58, 59]
        HWS = 60
        p(f"v_bfe_u32 v40, v{vN}, 1, 2")
        p(f"s_lshl_b32 s{sTmp}, s{sT}, 6\nv_add_u32 v41, s{sTmp}, v{vN}\nv_mul_u32_u24 v41, 576, v41")
        p(f"v_xor_b32 v42, v{vQ}, v40\nv_lshlrev_b32 v42, 4, v42\nv_add_u32 v{HR}, v41, v42\nv_add_u32 v{HR}, {L_H}, v{HR}")
        p(f"v_and_b32 v42, 1, v{vQ}\nv_lshlrev_b32 v42, 3, v42\nv_add_u32 v41, v41, v42\nv_add_u32 v41, {L_H}, v41")
        p(f"v_lshrrev_b32 v42, 1, v{vQ}")
        p(f"s_lshl_b32 s{sTmp}, s{sH}, 7\ns_mul_i32 s{sTmp2}, s{sE2}, {2*9216}")
        p(f"v_xor_b32 v43, v42, v40\nv_lshlrev_b32 v43, 4, v43\nv_add_u32 v43, v41, v43\nv_add_u32 v43, s{sTmp}, v43")
        p(f"v_add_u32 v{HW[0]}, s{sTmp2}, v43\nv_subrev_u32 v{HW[1]}, s{sTmp2}, v43")
        p(f"v_add_u32 v43, 2, v42\nv_xor_b32 v43, v43, v40\nv_lshlrev_b32 v43, 4, v43\nv_add_u32 v43, v41, v43\nv_add_u32 v43, s{sTmp}, v43")
        p(f"v_add_u32 v{HW[2]}, s{sTmp2}, v43\nv_subrev_u32 v{HW[3]}, s{sTmp2}, v43")
        p(f"s_lshr_b32 s{sTmp}, s{sH}, 1\ns_lshl_b32 s{sTmp}, s{sTmp}, 1")
        p(f"v_add_u32 v43, s{sTmp}, v42\nv_xor_b32 v43, v43, v40\nv_lshlrev_b32 v43, 4, v43\nv_add_u32 v43, v41, v43")
        p(f"s_add_u32 s{sTmp2}, s{sTmp2}, 512\nv_add_u32 v{HWS}, s{sTmp2}, v43")
        c1 = -2.0 * math.sqrt(2.0 / math.pi) * math.log2(math.e)
        p(f"v_mov_b32 v{self.vC1}, {f2u(c1):#x}\nv_mov_b32 v{self.vC2}, {f2u(c1 * 0.044715):#x}")
        Ts = [44, 48, 64, 68]
        k = 0
        for kk in range(2):
            G, U = acc_sh(0, kk), acc_sh(1, kk)
            for i in self.gelu_pair(G, U, Ts[k % 4]): p.add(i)
            p(f"ds_write_b64 v{HWS}, {vr(G,2)} offset:{kk * 9216}"); k += 1
        for a in range(4):
            for i in range(4):
                G, U = acc_own(a, 0, i), acc_own(a, 1, i)
                for x in self.gelu_pair(G, U, Ts[k % 4]): p.add(x)
                base = (HW[0] if i < 2 else HW[1]) if a % 2 == 0 else (HW[2] if i < 2 else HW[3])
                p(f"ds_write_b64 v{base}, {vr(G,2)} offset:{i * 9216 + (a >> 1) * 64}"); k += 1
        self.stamp("gelu")
        self.e3_compute()
        self.e3_kvl_write()
        p.waitlg(); p.waitvm("tile18"); p.waitvm("tile19"); p("s_barrier")
        self.HR = HR

    G2_READ = [-6, -2, 2, 6, 10, 13, 16, 18, 20]
    def g2_frag_reads(self, c, s):
        buf = FR0 + 4 * ((c * 9 + s) % NFR)
        return [Inst(f"ds_read_b64_tr_b16 {vr(buf,2)}, v{vA2} offset:{s * 4096}"),
                Inst(f"ds_read_b64_tr_b16 {vr(buf+2,2)}, v{vA2} offset:{s * 4096 + 512}")]
    def h_reads(self, s):
        return [Inst(f"ds_read_b128 {vr(ACC + 4*(tt*9+s))}, v{self.HR} offset:{tt * 9216 + s * 64}") for tt in range(4)]
    def g2_mfmas(self, c):
        out = []
        A2 = BFR[c % 2]
        for s in range(9):
            buf = FR0 + 4 * ((c * 9 + s) % NFR)
            for tt in range(4):
                acc = A2 + 4 * tt
                cc = "0" if s == 0 else vr(acc)
                out.append(Inst(f"v_mfma_f32_16x16x32_bf16 {vr(acc)}, {vr(buf)}, {vr(ACC + 4*(tt*9+s))}, {cc}"))
        return out
    def g2_epilogue(self, c):
        A2 = BFR[c % 2]; T = TMP
        o = []
        for tt in range(4):
            o.append(Inst(f"v_cvt_pk_bf16_f32 v{T+2*tt}, v{A2+4*tt}, v{A2+4*tt+1}"))
            o.append(Inst(f"v_cvt_pk_bf16_f32 v{T+2*tt+1}, v{A2+4*tt+2}, v{A2+4*tt+3}"))
        for pr in range(2):
            o.append(Inst(f"v_permlane16_swap_b32 v{T+4*pr}, v{T+4*pr+2}"))
            o.append(Inst(f"v_permlane16_swap_b32 v{T+4*pr+1}, v{T+4*pr+3}"))
        st = []
        for pr in range(2):
            u = [Inst(f"s_add_u32 s{sEP}, s{sPoff}, {c * 16384 + pr * 4096}")]
            if not self.opt["nostore"]:
                u.append(Inst(f"buffer_store_dwordx4 {vr(T+4*pr)}, v{vP0}, {srd(S_WS)}, s{sEP} offen {self.opt['stflags']}", tag=f"pst{c}"))
            st.append(u)
        return o, st
    def set_flag(self, addr_insts, tag, ra=48, rb=49):
        return self.I(addr_insts) + self.I(f"v_cmp_eq_u32 vcc, 0, v0\nv_cndmask_b32 v{ra}, v{vOOB}, v0, vcc\nv_mov_b32 v{rb}, s{sNonce}") + \
               [Inst(f"buffer_store_dword v{rb}, v{ra}, {srd(S_WS)}, s{sTmp2} offen sc1", tag=tag)]
    def flag_addr(self, which):
        return f"s_lshl_b32 s{sTmp2}, s{sM}, 7\ns_lshl_b32 s{sTmp3}, s{sJ}, 2\ns_add_u32 s{sTmp2}, s{sTmp2}, s{sTmp3}\ns_add_u32 s{sTmp2}, s{sTmp2}, {WS_FLAG + which}"

    def conv_h_loads(self):
        t = []
        A = lambda s: t.extend(self.I(s))
        A(f"s_min_u32 s{sCW}, s2, 191")
        A(f"v_and_b32 v21, 255, v0\nv_lshlrev_b32 v21, 4, v21\nv_subrev_u32 v22, 16, v21")
        k = sKA + 32 // 4
        for (r, chx) in ((0, f"s_mul_i32 s{sTmp}, s{sCW}, 3\ns_add_u32 s{sTmp}, s{sTmp}, s{sT}"), (1, f"s_mul_i32 s{sTmp}, s{sCW}, 3\ns_add_u32 s{sTmp}, s{sTmp}, 2")):
            u = self.I(chx) + self.I(f"s_lshl_b32 s{sTmp}, s{sTmp}, 12\ns_add_u32 s{S_T0}, s{k}, s{sTmp}\ns_addc_u32 s{S_T0+1}, s{k+1}, 0\ns_and_b32 s{S_T0+1}, s{S_T0+1}, 0xffff\ns_mov_b32 s{S_T0+2}, 4096\ns_mov_b32 s{S_T0+3}, 0x20000")
            u.append(Inst(f"buffer_load_dwordx4 {vr(24+8*r)}, v22, {srd(S_T0)}, 0 offen", tag="cvin"))
            u.append(Inst(f"buffer_load_dwordx4 {vr(28+8*r)}, v21, {srd(S_T0)}, 0 offen", tag="cvin"))
            t.append(u)
        k = sKA + 40 // 4
        u = self.I(f"s_mov_b32 s{S_T0}, s{k}\ns_and_b32 s{S_T0+1}, s{k+1}, 0xffff\ns_mov_b32 s{S_T0+2}, 1152\ns_mov_b32 s{S_T0+3}, 0x20000\ns_mul_i32 s{sTmp}, s{sCW}, 6\nv_mov_b32 v21, 0")
        u.append(Inst(f"buffer_load_ushort v22, v21, {srd(S_T0)}, s{sTmp} offen offset:2", tag="cvin"))
        u.append(Inst(f"buffer_load_ushort v23, v21, {srd(S_T0)}, s{sTmp} offen offset:4", tag="cvin"))
        u.append(Inst(f"buffer_load_ushort v21, v21, {srd(S_T0)}, s{sTmp} offen", tag="cvin"))
        t.append(u)
        return t
    def conv_kv_loads(self):
        t = []
        A = lambda s: t.extend(self.I(s))
        A(f"s_mul_i32 s{sTmp}, s{sCW}, {3*4096}\ns_add_u32 s{sTmp}, s{sTmp}, {WS_KVT}")
        A(f"v_lshlrev_b32 v5, 4, v0\nv_add_u32 v6, 8192, v5\nv_cmp_gt_u32 vcc, 256, v0\nv_cndmask_b32 v6, v{vOOB}, v6, vcc")
        t.append(Inst(f"buffer_load_dwordx4 v[48:51], v5, {srd(S_WS)}, s{sTmp} offen sc1", tag="cvin"))
        t.append(Inst(f"buffer_load_dwordx4 v[52:55], v6, {srd(S_WS)}, s{sTmp} offen sc1", tag="cvin"))
        return t
    def conv_build(self, S, dst, R0=6, R1=None):
        t = []
        bufs = [R0, R1 if R1 is not None else R0]
        k = 0
        for kind in range(4):
            R = bufs[k % 2]; k += 1
            for i in range(6):
                if kind == 0: t += self.I(f"v_alignbit_b32 v{R+i}, v{S+7-i}, v{S+7-i}, 16")
                elif kind == 1: t += self.I(f"v_alignbit_b32 v{R+i}, v{S+6-i}, v{S+6-i}, 16")
                elif kind == 2: t += self.I(f"v_bfi_b32 v{R+i}, s{sMask}, v{S+7-i}, v{S+6-i}")
                else: t += self.I(f"v_bfi_b32 v{R+i}, s{sMask}, v{S+6-i}, v{S+5-i}")
            sgs = [(0, 4), (2, 6), (1, 5), (3, 7)][kind]
            t += self.I(f"ds_write_b128 v{dst}, {vr(R)} offset:{sgs[0]*4160}\nds_write_b128 v{dst}, {vr(R+2)} offset:{sgs[1]*4160}")
        return t
    vMASK, vTCW, vU16 = 18 + 0, 5, 19 + 0
    def conv_setup_tc(self, S=24, region=None):
        region = C_TCA if region is None else region
        t = self.I(f"s_mov_b32 s{sMask}, 0xffff\nv_and_b32 v6, 255, v0\nv_lshlrev_b32 v6, 4, v6\ns_mov_b32 s{sTmp}, {region + 16*257}\nv_sub_u32 v5, s{sTmp}, v6")
        t += self.conv_build(S, 5, 6, None)
        return t
    def conv_setup_kp(self):
        t = []
        A = lambda s: t.extend(self.I(s))
        A(f"v_mov_b32 v6, 0\nv_mov_b32 v7, 0\nv_mov_b32 v8, 0\nv_mov_b32 v9, 0")
        A(f"v_lshlrev_b32 v12, 4, v{vLane}\nv_add_u32 v12, {C_DUM}, v12")
        A(f"v_lshrrev_b32 v10, 5, v0\nv_mul_u32_u24 v10, 4608, v10\nv_and_b32 v11, 31, v0\nv_lshlrev_b32 v11, 4, v11\nv_add_u32 v10, v10, v11\nv_add_u32 v10, {C_KP}, v10")
        A(f"v_cmp_gt_u32 vcc, 96, v0\nv_cndmask_b32 v10, v12, v10, vcc\nds_write_b128 v10, v[6:9]")
        A(f"v_and_b32 v10, 7, v0\nv_mul_u32_u24 v10, 4160, v10\nv_add_u32 v10, {16*258 + C_TCA}, v10\nv_cmp_gt_u32 vcc, 8, v0\nv_cndmask_b32 v10, v12, v10, vcc\nds_write_b128 v10, v[6:9]")
        A(f"v_lshlrev_b32 v11, 4, v0\nv_lshrrev_b32 v10, 8, v0\nv_lshlrev_b32 v10, 9, v10\nv_add_u32 v10, v10, v11\nv_add_u32 v10, {C_KP + 512}, v10\nds_write_b128 v10, v[48:51]")
        A(f"v_add_u32 v10, {C_KP + 512 + 8192 + 1024}, v11\nv_cmp_gt_u32 vcc, 256, v0\nv_cndmask_b32 v10, v12, v10, vcc\nds_write_b128 v10, v[52:55]")
        return t
    def conv_addrs(self):
        vT, vK, vYW, vYR, vZ, vKV = 50, 51, 52, 53, 54, 55
        t = []
        A = lambda s: t.extend(self.I(s))
        A(f"v_and_b32 v10, 7, v{vN}\nv_sub_u32 v10, 7, v10\nv_mul_u32_u24 v10, 4160, v10\nv_lshrrev_b32 v11, 3, v{vN}\nv_sub_u32 v11, v{vQ}, v11\nv_add_u32 v11, 255, v11\nv_lshlrev_b32 v11, 4, v11\nv_add_u32 v10, v10, v11")
        A(f"s_lshl_b32 s{sTmp}, s{sW}, 6\ns_add_u32 s{sTmp}, s{sTmp}, 3584\nv_subrev_u32 v10, s{sTmp}, v10\nv_add_u32 v{vT}, {C_TCA}, v10\nv_add_u32 v49, {C_TCB}, v10")
        A(f"v_lshlrev_b32 v10, 5, v{vN}\nv_lshlrev_b32 v11, 4, v{vQ}\nv_add_u32 v10, v10, v11\nv_add_u32 v10, {480 + C_KP}, v10\ns_lshl_b32 s{sTmp}, s{sW}, 6\nv_subrev_u32 v{vK}, s{sTmp}, v10")
        A(f"v_lshlrev_b32 v{vYW}, 3, v{vLane}\ns_lshl_b32 s{sTmp}, s{sW}, 9\nv_add_u32 v{vYW}, s{sTmp}, v{vYW}\nv_add_u32 v{vYW}, {C_YRA}, v{vYW}")
        A(f"v_lshlrev_b32 v{vYR}, 3, v{vLane}\ns_lshl_b32 s{sTmp}, s{sH}, 12\nv_add_u32 v{vYR}, s{sTmp}, v{vYR}\nv_add_u32 v{vYR}, {C_YRA}, v{vYR}")
        A(f"v_lshlrev_b32 v{vZ}, 5, v{vN}\nv_lshlrev_b32 v{vKV}, 3, v{vQ}\nv_add_u32 v{vZ}, v{vZ}, v{vKV}\ns_lshl_b32 s{sTmp}, s{sH}, 9\nv_add_u32 v{vZ}, s{sTmp}, v{vZ}")
        A(f"v_add_u32 v{vKV}, {C_KP + 512}, v{vZ}")
        return t

    def dma_tileA(self, tile):
        base = ((tile - 18) % 3) * SLOT
        c = tile - 18
        out = []
        for a in range(9):
            out.append([Inst(f"s_add_u32 m0, s{sW1024}, {base + a * 4096}"),
                        Inst(f"s_mov_b32 s{sKoff}, {a * 36864 + c * 128}"),
                        Inst(f"buffer_load_dwordx4 v{vD0}, {srd(S_WD)}, s{sKoff} offen lds", tag=f"tile{tile}")])
        return out

    def partner_stores(self, c):
        vST = 4
        rd = [Inst(f"ds_read_b128 {vr(TMP)}, v{vST} offset:{(c % 2) * 8192}"), Inst(f"ds_read_b128 {vr(TMP+4)}, v{vST} offset:{(c % 2) * 8192 + 1024}")]
        st = []
        for pr in range(2):
            u = [Inst(f"s_add_u32 s{sEP}, s{sPoff}, {c * 16384 + pr * 4096 - 8192}")]
            if not self.opt["nostore"]:
                u.append(Inst(f"buffer_store_dwordx4 {vr(TMP+4*pr)}, v{vP0}, {srd(S_WS)}, s{sEP} offen {self.opt['stflags']}", tag=f"pst{c}"))
            st.append(u)
        return rd, st
    def g2_version(self, cls):
        p = self.p
        carry = []
        if self.opt["prio2"] == cls: p("s_setprio 1")
        vST = 4
        p(f"v_lshlrev_b32 v{vST}, 4, v{vLane}\ns_lshl_b32 s{sTmp}, s{sH}, 11\ns_add_u32 s{sTmp}, s{sTmp}, {L_STG}\nv_add_u32 v{vST}, s{sTmp}, v{vST}")
        def partner_stores(c):
            return self.partner_stores(c)
        def _unused(c):
            rd = [Inst(f"ds_read_b128 {vr(TMP)}, v{vST} offset:{(c % 2) * 8192}"), Inst(f"ds_read_b128 {vr(TMP+4)}, v{vST} offset:{(c % 2) * 8192 + 1024}")]
            st = []
            for pr in range(2):
                u = [Inst(f"s_add_u32 s{sEP}, s{sPoff}, {c * 16384 + pr * 4096 - 8192}")]
                if not self.opt["nostore"]:
                    u.append(Inst(f"buffer_store_dwordx4 {vr(TMP+4*pr)}, v{vP0}, {srd(S_WS)}, s{sEP} offen {self.opt['stflags']}", tag=f"pst{c}"))
                st.append(u)
            return rd, st
        for c in range(9):
            T = 18 + c
            pre = {}
            def put(slot, insts): pre.setdefault(slot, []).extend(insts)
            def spread(insts, lo, hi):
                n = len(insts)
                for k, x in enumerate(insts): put(lo + (k * (hi - lo + 1)) // n, x if isinstance(x, list) else [x])
            for s in range(2, 9):
                if c == 0: put(max(self.G2_READ[s] - 2, 0), self.h_reads(s))
                put(self.G2_READ[s], self.g2_frag_reads(c, s))
            if carry: spread(carry, 1, 26); carry = []
            if c > 0 and not self.opt["noepi"]:
                ev, st = self.g2_epilogue(c - 1)
                if self.opt["epimode"] == 1: ev = ev[:8]
                spread(ev, *self.opt["epislots"])
                if self.opt["epimode"] < 3: pass
                elif cls == "A":
                    put(self.opt["stgslot"], [Inst(f"ds_write_b128 v{vST}, {vr(TMP)} offset:{((c-1) % 2) * 8192}"), Inst(f"ds_write_b128 v{vST}, {vr(TMP+4)} offset:{((c-1) % 2) * 8192 + 1024}")])
                else:
                    put(self.opt['own'][0], st[0]); put(self.opt['own'][1], st[1])
            if cls == "B" and c > 1 and not self.opt["noepi"] and self.opt["epimode"] == 3:
                rd, st2 = partner_stores(c - 2)
                put(self.opt["prd"], rd)
                if self.opt["dropst"] < 2: put(self.opt["pst"][0], st2[0])
                if self.opt["dropst"] < 1: put(self.opt["pst"][1], st2[1])
            if not self.opt["g2bare"]:
                if cls == "B" and c == 0: spread(self.atomize(self.e3_store()), 1, 26)
                if c == 3 and cls == "B": put(2, self.signal(S2, 7, 8) if False else [])
                if c == 2: put(29, self.signal(S2, 7, 8))
                if c == 5: put(27, self.fpoll_issue(self.s2_addr(12), 12, 14))
                if c == 6: spread([self.fpoll_check(12, 14)] + self.atomize(self.conv_kv_loads()), 1, 26)
                if cls == "A" and c == 3: spread(self.atomize(self.conv_setup_tc()), 1, 26)
                if c == 8: spread(self.atomize(self.conv_setup_kp() + self.conv_addrs()), 1, 35)
            w = [Inst("WAITLG")]
            if cls == "A" and c + 1 < 9:
                wv = Inst("WAITVM"); wv.tag = f"tile{T+1}"; w.append(wv)
            if cls == "B" and c == 7:
                wv = Inst("WAITVM"); wv.tag = "pst3"; w.append(wv)
            if cls == "B" and c == 2:
                wv = Inst("WAITVM"); wv.tag = "est2"; w.append(wv)
            w.append(Inst("s_barrier"))
            put(self.BARSLOT, w)
            if c == 7: put(29, self.set_flag(self.flag_addr(FA), "fa", 7, 8))
            if c + 1 < 9:
                put(self.BARSLOT, self.slot_advance([vA2], T, T + 1))
                put(30, self.g2_frag_reads(c + 1, 0)); put(34, self.g2_frag_reads(c + 1, 1))
                vm = []
                if cls == "A" and not self.opt["g2nodma"]:
                    if c == 0: vm += self.dma_tileA(20)
                    if c + 3 < 9: vm += self.dma_tileA(T + 3)
                if vm:
                    nf = 3 if c == 0 else 2
                    spread(vm[:nf], 30, 35); carry = vm[nf:]
            put(0, self.stamp_i(f"c{c}"))
            self.emit_step(self.g2_mfmas(c), pre)
        ev, st = self.g2_epilogue(8)
        if cls == "B":
            rd, st2 = partner_stores(7)
            for i in rd: p.add(i)
            self.add_units(st2)
        for i in ev: p.add(i)
        if cls == "A":
            p(f"ds_write_b128 v{vST}, {vr(TMP)} offset:0\nds_write_b128 v{vST}, {vr(TMP+4)} offset:1024")
        else:
            self.add_units(st)
        p.waitlg()
        if self.opt["prio2"] == cls: p("s_setprio 0")

    def g2(self):
        p = self.p
        for s in range(2):
            for i in self.h_reads(s): p.add(i)
        for s in range(2):
            for i in self.g2_frag_reads(0, s): p.add(i)
        self.stamp("g2start")
        p.drain()
        p(f"s_cmp_ge_u32 s{sW}, 4\ns_cbranch_scc1 L_g2B")
        p.save()
        self.g2_version("A")
        p("s_branch L_g2end")
        p("L_g2B:")
        p.restore()
        self.g2_version("B")
        p("L_g2end:")
        self.stamp("g2end")

    def spin_flags(self, voffs, soff_sreg, vals, opaque=False):
        L = self.label("fl"); D = self.label("fld")
        t = self.I(f"s_mov_b32 s{sTmp4}, 0x20000") + [Inst(f"{L}:")]
        for (vo, r) in zip(voffs, vals):
            t += self.I(f"buffer_load_dword v{r}, v{vo}, {srd(S_WS)}, s{soff_sreg} offen sc1")
        t += self.I("s_waitcnt vmcnt(0)")
        t += self.I(f"v_xor_b32 v{vals[0]}, s{sNonce}, v{vals[0]}")
        for r in vals[1:]: t += self.I(f"v_xor_b32 v{r}, s{sNonce}, v{r}\nv_or_b32 v{vals[0]}, v{vals[0]}, v{r}")
        t += self.I(f"v_cmp_ne_u32 vcc, 0, v{vals[0]}\ns_nop 4\ns_sub_u32 s{sTmp4}, s{sTmp4}, 1\ns_cmp_eq_u32 s{sTmp4}, 0\ns_cbranch_scc1 {D}")
        t += self.I(f"s_cmp_eq_u64 vcc, 0\ns_cbranch_scc1 {D}\ns_sleep 2\ns_branch {L}") + [Inst(f"{D}:")]
        return t

    PL = 112
    def pl_setup(self):
        return self.I(f"s_mul_i32 s{sPL}, s{sM}, {16*147456}\ns_lshl_b32 s{sTmp2}, s{sJ}, 10\ns_add_u32 s{sPL}, s{sPL}, s{sTmp2}\ns_lshl_b32 s{sTmp3}, s{sW}, 14\ns_add_u32 s{sPL}, s{sPL}, s{sTmp3}\ns_add_u32 s{sPL}, s{sPL}, {WS_P}\nv_lshlrev_b32 v18, 4, v{vLane}")
    def pl_site(self, b, cls):
        L = self.label("pl")
        t = self.I(f"s_cmp_eq_u32 s{sSite}, {1 if cls == 'A' else 2}\ns_cbranch_scc0 {L}\nbuffer_load_dwordx4 {vr(self.PL+4*b)}, v18, {srd(S_WS)}, s{sPL} offen sc1\ns_add_u32 s{sPL}, s{sPL}, 147456") + [Inst(f"{L}:")]
        for x in t: x.opaque = True
        return t
    def interleave(self, base, sites):
        out = []; n = len(base); m = len(sites); k = 0
        for i, x in enumerate(base):
            out.append(x)
            while k < m and (i + 1) * (m + 1) >= (k + 1) * n and not x.op.startswith("v_cmp") and not x.op.startswith("s_cmp"):
                out += sites[k]; k += 1
        while k < m: out += sites[k]; k += 1
        return out

    def conv(self):
        p = self.p
        for i in self.pl_setup(): p.add(i)
        p("s_cmp_ge_u32 s2, 192\ns_cbranch_scc1 L_noconv")
        p(f"s_cmp_ge_u32 s{sW}, 4\ns_cbranch_scc1 L_cvB")
        p.save()
        self.conv_version("A")
        p("s_branch L_convdone")
        p("L_cvB:")
        p.restore()
        self.conv_version("B")
        p("s_branch L_convdone")
        p("L_noconv:")
        p.restore()
        p(f"s_mov_b32 s{sSite}, 0")
        p.waitlg(); p("s_barrier")
        rd_, st2 = self.partner_stores(8)
        blk = self.I(f"s_cmp_lt_u32 s{sW}, 4\ns_cbranch_scc1 L_ncA") + rd_ + self.I("s_waitcnt lgkmcnt(0)")
        for u in st2: blk += u
        blk += [Inst("L_ncA:")]
        for x in blk: x.opaque = True; p.add(x)
        self.xload()
        p("s_waitcnt vmcnt(0)"); p.waitlg(); p("s_barrier")
        for i in self.set_flag(self.flag_addr(FC), "fc", 44, 45): i.opaque = True; p.add(i)
        p("L_convdone:")
        self.stamp("convend")
        blk = self.I(f"s_cmp_eq_u32 s{sSite}, 1\ns_cbranch_scc1 L_got\ns_cmp_lt_u32 s{sW}, 4\ns_cselect_b32 s{sTmp}, {FA}, {FC}\ns_lshl_b32 s{sTmp2}, s{sM}, 7\ns_add_u32 s{sTmp}, s{sTmp}, s{sTmp2}\ns_add_u32 s{sTmp}, s{sTmp}, {WS_FLAG}\nv_lshlrev_b32 v44, 2, v{vN}")
        blk += self.spin_flags([44], sTmp, [45])
        blk += self.I(f"s_mov_b32 s{sSite}, 2")
        for b in range(16): blk += self.pl_site(b, "B")
        blk += [Inst("L_got:")]
        for x in blk: x.opaque = True; p.add(x)

    def xload(self):
        p = self.p; XF = 240
        t = self.I(f"s_lshl_b32 s{sTmp}, s{sM}, 7\ns_lshl_b32 s{sTmp2}, s{sJ}, 3\ns_add_u32 s{sTmp}, s{sTmp}, s{sTmp2}")
        t += self.I(f"v_and_b32 v41, 7, v{vLane}\nv_add_u32 v41, s{sTmp}, v41")
        t += self.I(f"v_mul_u32_u24 v47, 1152, v41\nv_lshrrev_b32 v43, 3, v{vLane}\nv_lshlrev_b32 v43, 4, v43\nv_add_u32 v47, v47, v43")
        k0 = sKA
        t += self.I(f"s_mov_b32 s{S_T0}, s{k0}\ns_and_b32 s{S_T0+1}, s{k0+1}, 0xffff\ns_mov_b32 s{S_T0+2}, 2359296\ns_mov_b32 s{S_T0+3}, 0x20000")
        t += self.I(f"s_lshl_b32 s{sTmp2}, s{sW}, 7\nbuffer_load_dwordx4 {vr(XF)}, v47, {srd(S_T0)}, s{sTmp2} offen\nbuffer_load_dwordx4 {vr(XF+4)}, v47, {srd(S_T0)}, 0 offen offset:1024")
        t += self.I(f"buffer_load_dwordx4 {vr(XF+8)}, v47, {srd(S_X)}, s{sTmp2} offen sc1\nbuffer_load_dwordx4 {vr(XF+12)}, v47, {srd(S_X)}, 0 offen offset:1024 sc1")
        for x in t: x.opaque = True; p.add(x)

    def conv_version(self, cls):
        p = self.p
        TF, BF, Y = 176, 208, 80
        vT, vK, vYW, vYR, vZ, vKV = 50, 51, 52, 53, 54, 55
        p(f"s_mov_b32 s{sSite}, 0")
        def mfma_ch(c, tc):
            rd = []
            for i in range(8):
                rd += self.I(f"ds_read_b128 {vr(TF+4*i)}, v{vT if tc == C_TCA else 49} offset:{512*(7-i)}\nds_read_b128 {vr(BF+4*i)}, v{vK} offset:{c*4608 + 512*i}")
            first = set(); mf = []
            pairs = sorted([(i, g_ - i, g_) for g_ in range(8) for i in range(g_ + 1)], key=lambda z: (max(z[0], z[1]), z[2]))
            for (i, m, g_) in pairs:
                cc = "0" if g_ not in first else vr(Y+4*g_); first.add(g_)
                mf += self.I(f"v_mfma_f32_16x16x32_bf16 {vr(Y+4*g_)}, {vr(TF+4*i)}, {vr(BF+4*m)}, {cc}")
            return rd, mf
        def ywrite(par):
            t = []
            for g_ in range(8):
                t += self.I(f"v_cvt_pk_bf16_f32 v{Y+4*g_}, v{Y+4*g_}, v{Y+4*g_+1}\nv_cvt_pk_bf16_f32 v{Y+4*g_+1}, v{Y+4*g_+2}, v{Y+4*g_+3}")
                t += self.I(f"ds_write_b64 v{vYW}, {vr(Y+4*g_,2)} offset:{par*(C_YRB-C_YRA) + g_*4096}")
            return t
        RD = 56
        def reduce_ch(c, par):
            t = []
            for k in range(2):
                for r in range(8): t += self.I(f"ds_read_b64 {vr(RD+2*r,2)}, v{vYR} offset:{par*(C_YRB-C_YRA) + k*16384 + r*512}")
                t += self.I(f"ds_read_b64 v[76:77], v{vKV} offset:{c*4608 + k*2048}")
                t += self.I(f"v_lshlrev_b32 v72, 16, v{RD}\nv_and_b32 v73, 0xffff0000, v{RD}\nv_lshlrev_b32 v74, 16, v{RD+1}\nv_and_b32 v75, 0xffff0000, v{RD+1}")
                for r in range(1, 8):
                    t += self.I(f"v_lshlrev_b32 v78, 16, v{RD+2*r}\nv_and_b32 v79, 0xffff0000, v{RD+2*r}\nv_add_f32 v72, v72, v78\nv_add_f32 v73, v73, v79")
                    t += self.I(f"v_lshlrev_b32 v78, 16, v{RD+2*r+1}\nv_and_b32 v79, 0xffff0000, v{RD+2*r+1}\nv_add_f32 v74, v74, v78\nv_add_f32 v75, v75, v79")
                t += self.I(f"v_lshlrev_b32 v40, 16, v{[21,22,23][c]}")
                t += self.I(f"v_lshlrev_b32 v78, 16, v76\nv_and_b32 v79, 0xffff0000, v76\nv_fmac_f32 v72, v78, v40\nv_fmac_f32 v73, v79, v40")
                t += self.I(f"v_lshlrev_b32 v78, 16, v77\nv_and_b32 v79, 0xffff0000, v77\nv_fmac_f32 v74, v78, v40\nv_fmac_f32 v75, v79, v40")
                t += self.I(f"v_cvt_pk_bf16_f32 v{42+2*k}, v72, v73\nv_cvt_pk_bf16_f32 v{43+2*k}, v74, v75")
                u = self.I(f"s_mul_i32 s{sTmp}, s2, {3*4096}\ns_add_u32 s{sTmp}, s{sTmp}, {WS_ZT + c*4096 + k*2048}")
                u.append(Inst(f"buffer_store_dwordx2 {vr(42+2*k,2)}, v{vZ}, {srd(S_WS)}, s{sTmp} offen sc1", tag="zst"))
                t.append(u)
            return t
        def phase(rd, mf, fill, sites):
            for x in rd: p.add(x)
            items = [[f] if not isinstance(f, list) else f for f in fill]
            n = len(mf)
            slots = {i: [] for i in range(n + 1)}
            for k_, it in enumerate(items): slots[min(n, 1 + (k_ * (n - 1)) // max(1, len(items)))] += it
            for k_, st_ in enumerate(sites): slots[min(n, 2 + (k_ * (n - 2)) // max(1, len(sites)))] += st_
            for i, m in enumerate(mf):
                for x in slots[i]: p.add(x)
                p.add(m)
            for x in slots[n]: p.add(x)
        ns = self.opt["early"]
        S = [self.pl_site(b, "A") for b in range(16)] if (cls == "A" and ns) else []
        p.waitlg(); p("s_barrier")
        self.stamp("cv0")
        if cls == "B":
            rd_, st2 = self.partner_stores(8)
            for i in rd_: p.add(i)
            self.add_units(st2)
        if cls == "A":
            t = self.fpoll_issue(f"s_lshl_b32 s{sTmp2}, s{sM}, 7\nv_lshlrev_b32 v16, 2, v{vN}\nv_add_u32 v16, s{sTmp2}, v16\nv_add_u32 v16, {FA}, v16", 16, 17, "fapoll")
            for x in t: x.opaque = True; p.add(x)
        rd, mf = mfma_ch(0, C_TCA)
        fill0 = []
        if cls == "B":
            fill0 = self.conv_setup_tc(24, C_TCB)
            fill0 += self.I(f"v_mov_b32 v6, 0\nv_mov_b32 v7, 0\nv_mov_b32 v8, 0\nv_mov_b32 v9, 0\nv_and_b32 v10, 7, v0\nv_mul_u32_u24 v10, 4160, v10\nv_add_u32 v10, {16*258 + C_TCB}, v10\nds_write_b128 v10, v[6:9]")
        phase(rd, mf, fill0, [])
        for x in ywrite(0): p.add(x)
        if cls == "A":
            for x in self.I(f"s_waitcnt vmcnt(0)\nv_cmp_ne_u32 vcc, s{sNonce}, v17\ns_nop 4\ns_cmp_eq_u64 vcc, 0\ns_cselect_b32 s{sSite}, {1 if self.opt['early'] else 0}, 0"): x.opaque = True; p.add(x)
        else:
            p("s_waitcnt vmcnt(0)")
        self.xload()
        p.waitlg(); p("s_barrier")
        for i in self.set_flag(self.flag_addr(FC), "fc", 44, 45): i.opaque = True; p.add(i)
        self.stamp("cv1")
        rd, mf = mfma_ch(1, C_TCB)
        fill = self.conv_setup_tc(32, C_TCA) if cls == "A" else reduce_ch(0, 0)
        phase(rd, mf, fill, S[:8])
        for x in ywrite(1): p.add(x)
        p.waitlg(); p("s_barrier")
        self.stamp("cv2")
        rd, mf = mfma_ch(2, C_TCA)
        phase(rd, mf, reduce_ch(1, 1) if cls == "B" else [], S[8:])
        for x in ywrite(0): p.add(x)
        p.waitlg(); p("s_barrier")
        if cls == "B":
            for x in reduce_ch(2, 0):
                for y in (x if isinstance(x, list) else [x]): p.add(y)
            p("s_waitcnt vmcnt(0)")
        self.stamp("cv3")
        p("s_barrier")
        for i in self.set_flag(f"s_lshl_b32 s{sTmp2}, s2, 2\ns_add_u32 s{sTmp2}, s{sTmp2}, {WS_FLAG + ZF}", "zf", 44, 45):
            i.opaque = True; p.add(i)

    def final(self):
        p = self.p
        XF = 240
        blk = self.I(f"s_cmp_ge_u32 s{sW}, 4\ns_cbranch_scc1 L_fc3\ns_lshl_b32 s{sTmp2}, s{sM}, 7\ns_add_u32 s{sTmp}, s{sTmp2}, {WS_FLAG + FC}\nv_lshlrev_b32 v44, 2, v{vN}")
        blk += self.spin_flags([44], sTmp, [45]) + [Inst("L_fc3:")]
        for x in blk: x.opaque = True; p.add(x)
        self.stamp("fbok")
        t = self.I(f"s_lshl_b32 s{sTmp}, s{sM}, 4\ns_lshl_b32 s{sTmp2}, s{sW}, 1\ns_add_u32 s{sTmp}, s{sTmp}, s{sTmp2}\ns_mul_i32 s{sTmp}, s{sTmp}, 147456\ns_lshl_b32 s{sTmp2}, s{sJ}, 10\ns_add_u32 s{sTmp}, s{sTmp}, s{sTmp2}\ns_add_u32 s{sTmp}, s{sTmp}, {WS_P + 8*16384}")
        t += self.I(f"v_lshlrev_b32 v46, 4, v{vLane}\nbuffer_load_dwordx4 v[176:179], v46, {srd(S_WS)}, s{sTmp} offen sc1\ns_add_u32 s{sTmp}, s{sTmp}, 147456\nbuffer_load_dwordx4 v[180:183], v46, {srd(S_WS)}, s{sTmp} offen sc1")
        for x in t: x.opaque = True; p.add(x)
        p(f"v_mov_b32 v44, 0x3f80\nv_mov_b32 v45, 0x3f800000")
        for e in range(8): p(f"v_mov_b32 v{200+e}, 0\nv_mov_b32 v{208+e}, 0")
        p("s_waitcnt vmcnt(2)")
        for b in range(16):
            for r in range(4):
                p(f"v_dot2_f32_bf16 v{200+2*r}, v{self.PL+4*b+r}, v44, v{200+2*r}\nv_dot2_f32_bf16 v{201+2*r}, v{self.PL+4*b+r}, v45, v{201+2*r}")
        p("s_waitcnt vmcnt(0)")
        self.stamp("loaded")
        for b in range(2):
            for r in range(4):
                p(f"v_dot2_f32_bf16 v{208+2*r}, v{176+4*b+r}, v44, v{208+2*r}\nv_dot2_f32_bf16 v{209+2*r}, v{176+4*b+r}, v45, v{209+2*r}")
        p(f"v_lshlrev_b32 v46, 5, v{vLane}\ns_lshl_b32 s{sTmp2}, s{sW}, 11\nv_add_u32 v46, s{sTmp2}, v46\nv_add_u32 v46, {C_C8}, v46")
        p("s_barrier")
        p(f"ds_write_b128 v46, v[208:211]\nds_write_b128 v46, v[212:215] offset:16")
        p(f"s_lshl_b32 s{sPL}, s{sM}, 7\ns_lshl_b32 s{sTmp2}, s{sJ}, 3\ns_add_u32 s{sPL}, s{sPL}, s{sTmp2}\ns_lshl_b32 s{sPL}, s{sPL}, 1\ns_add_u32 s{sPL}, s{sPL}, {WS_ZT}")
        p(f"v_lshlrev_b32 v55, 12, v{vLane}\ns_lshl_b32 s{sTmp2}, s{sW}, 18\ns_add_u32 s{sEP}, s{sTmp2}, s{sPL}\ns_add_u32 s{sPL}, s{sPL}, {512*4096}")
        DZ = C_ZL + 8192
        p(f"v_lshlrev_b32 v56, 4, v{vLane}\nv_add_u32 v57, {DZ}, v56\nv_add_u32 v56, s{sW1024}, v56\nv_add_u32 v56, {C_ZL}, v56")
        p(f"s_cmp_eq_u32 s{sW}, 0\ns_cselect_b32 s{sTmp}, 0, 1024\nv_add_u32 v57, s{sTmp}, v57")
        p(f"v_bfe_u32 v50, v{vLane}, 2, 2\nv_lshlrev_b32 v51, 4, v{vQ}\nv_add_u32 v50, v50, v51\nv_bfe_u32 v51, v{vLane}, 1, 1\nv_lshlrev_b32 v51, 3, v51\nv_add_u32 v50, v50, v51\nv_lshlrev_b32 v50, 4, v50")
        p(f"v_and_b32 v51, 1, v{vLane}\nv_lshlrev_b32 v51, 3, v51\nv_add_u32 v50, v50, v51")
        p(f"v_add_u32 v51, s{sW1024}, v50\nv_add_u32 v51, {C_ZL}, v51\nv_add_u32 v52, {DZ}, v50")
        p(f"v_lshlrev_b32 v58, 2, v{vLane}\nv_add_u32 v59, 256, v58\nv_add_u32 v60, 512, v58\ns_mov_b32 s{sTmp}, {WS_FLAG + ZF}")
        p.waitlg()
        for x in self.spin_flags([58, 59, 60], sTmp, [61, 62, 63]): x.opaque = True; p.add(x)
        self.stamp("zok")
        p(f"s_cmp_eq_u32 s{sW}, 0\ns_cselect_b32 s{sTmp}, 0, {OOB:#x}\nv_add_u32 v62, s{sTmp}, v55")
        p(f"buffer_load_dwordx4 v[216:219], v55, {srd(S_WS)}, s{sEP} offen sc1\nbuffer_load_dwordx4 v[220:223], v62, {srd(S_WS)}, s{sPL} offen sc1")
        p("s_barrier")
        p(f"v_lshlrev_b32 v46, 5, v{vLane}\nv_add_u32 v46, {C_C8}, v46")
        for wv in range(8):
            p(f"ds_read_b128 {vr(112+8*wv)}, v46 offset:{wv*2048}\nds_read_b128 {vr(116+8*wv)}, v46 offset:{wv*2048+16}")
        for wv in range(1, 8):
            for e in range(8): p(f"v_add_f32 v{112+e}, v{112+e}, v{112+8*wv+e}")
        p(f"ds_write_b128 v56, v[216:219]\nds_write_b128 v57, v[220:223]")
        p.waitlg(); p("s_barrier")
        p(f"ds_read_b64_tr_b16 v[216:217], v51\nds_read_b64_tr_b16 v[218:219], v51 offset:64")
        p(f"ds_read_b64_tr_b16 v[220:221], v52\nds_read_b64_tr_b16 v[222:223], v52 offset:64")
        def fin(X, Z, S, dst):
            for r in range(4):
                p(f"v_lshlrev_b32 v56, 16, v{X+r}\nv_and_b32 v57, 0xffff0000, v{X+r}")
                p(f"v_lshlrev_b32 v58, 16, v{X+8+r}\nv_and_b32 v59, 0xffff0000, v{X+8+r}")
                p(f"v_lshlrev_b32 v60, 16, v{Z+r}\nv_and_b32 v61, 0xffff0000, v{Z+r}")
                p(f"v_fmac_f32 v56, v58, v60\nv_fmac_f32 v57, v59, v61")
                p(f"v_add_f32 v56, v56, v{S+2*r}\nv_add_f32 v57, v57, v{S+2*r+1}")
                p(f"v_cvt_pk_bf16_f32 v{dst+r}, v56, v57")
        fin(XF, 216, 200, 64)
        p(f"s_lshl_b32 s{sTmp2}, s{sW}, 7")
        p(f"buffer_store_dwordx4 v[64:67], v47, {srd(S_OUT)}, s{sTmp2} offen")
        fin(XF+4, 220, 112, 68)
        p(f"s_cmp_eq_u32 s{sW}, 0\ns_cselect_b32 s{sTmp}, 0, {OOB:#x}\nv_add_u32 v43, s{sTmp}, v47")
        p(f"buffer_store_dwordx4 v[68:71], v43, {srd(S_OUT)}, 0 offen offset:1024")

    def write_stamps(self, n):
        p = self.p
        p("s_waitcnt lgkmcnt(0)")
        p(f"v_cmp_eq_u32 vcc, 0, v0\ns_and_saveexec_b64 s[{sEX}:{sEX+1}], vcc\ns_cbranch_execz L_nostamp")
        p(f"s_lshl_b32 s{sTmp}, s2, 7\ns_add_u32 s{sTmp}, s{sTmp}, {WS_DUMP}\nv_mov_b32 v4, 0")
        for i in range(n):
            p(f"v_mov_b32 v6, s{86+2*i}\nv_mov_b32 v7, s{87+2*i}")
            p(f"buffer_store_dwordx2 v[6:7], v4, {srd(S_WS)}, s{sTmp} offen offset:{8*i}")
            p("s_waitcnt vmcnt(0)")
        p(f"L_nostamp:\ns_mov_b64 exec, -1")

    def build(self):
        p = self.p
        self.stamp("start")
        self.prologue()
        self.g1()
        self.stamp("g1end")
        if self.opt["stop"] != "g1":
            self.gelu_tail()
            self.g2()
        if self.opt["stop"] not in ("g1", "g2"):
            self.conv()
            self.final()
        p.drain()
        if self.stamps:
            self.stamp("end")
            self.write_stamps(len(self.stamps))
        p("L_end:\ns_endpgm")
        return p.finalize()

class Prep(Gen):
    def build(self):
        p = self.p
        if self.opt.get("pstamp"): p("s_memrealtime s[86:87]")
        p("s_cmp_ge_u32 s2, 256\ns_cbranch_scc1 L_pend")
        p(f"s_load_dwordx16 s[{sKA}:{sKA+15}], s[0:1], 0")
        p(f"s_load_dwordx8 s[{sKA+16}:{sKA+23}], s[0:1], 64")
        p(f"s_load_dwordx2 s[{sKA+24}:{sKA+25}], s[0:1], 96")
        p(f"v_lshrrev_b32 v40, 6, v0\nv_and_b32 v{vLane}, 63, v0\nv_mov_b32 v{vOOB}, {OOB:#x}")
        p(f"v_readfirstlane_b32 s{sW}, v40")
        p(f"s_lshl_b32 s{sTmp}, s2, 3\ns_add_u32 s{sTmp}, s{sTmp}, s{sW}\ns_mul_i32 s{sPoff}, s{sTmp}, 1152")
        p(f"v_lshlrev_b32 v52, 4, v{vLane}\nv_add_u32 v53, 1024, v52\nv_cmp_gt_u32 vcc, 8, v{vLane}\nv_cndmask_b32 v53, v{vOOB}, v53, vcc")
        t = []; self.e3_base(56, t)
        for i in t: p.add(i)
        p("s_waitcnt lgkmcnt(0)")
        self.build_srd(S_X, 0, 2359296)
        p(f"buffer_load_dwordx4 v[24:27], v52, {srd(S_X)}, s{sPoff} offen\nbuffer_load_dwordx4 v[28:31], v53, {srd(S_X)}, s{sPoff} offen")
        K0, V0, W0 = 80, 94, 102
        for i in self.t0srd(8, 2359296): p.add(i)
        for r in range(3):
            p(f"v_subrev_u32 v54, {(3-r)*1152}, v56\nbuffer_load_dwordx2 {vr(K0+2*r,2)}, v54, {srd(S_T0)}, 0 offen")
        for r in range(3, 7):
            p(f"buffer_load_dwordx2 {vr(K0+2*r,2)}, v56, {srd(S_T0)}, 0 offen offset:{(r-3)*1152}")
        for i in self.t0srd(16, 2359296): p.add(i)
        for i_ in range(4):
            p(f"buffer_load_dwordx2 {vr(V0+2*i_,2)}, v56, {srd(S_T0)}, 0 offen offset:{1152*i_}")
        for i in self.t0srd(24, 4608): p.add(i)
        p(f"s_lshr_b32 s{sTmp2}, s2, 4\ns_lshl_b32 s{sTmp2}, s{sTmp2}, 9\nv_and_b32 v54, 15, v0\nv_lshlrev_b32 v54, 5, v54\nv_add_u32 v54, s{sTmp2}, v54")
        p(f"buffer_load_dwordx4 {vr(W0)}, v54, {srd(S_T0)}, 0 offen\nbuffer_load_dwordx4 {vr(W0+4)}, v54, {srd(S_T0)}, 0 offen offset:16")
        self.build_srd(S_WS, 96, WS_SIZE)
        if self.opt.get("touch", True):
            p(f"s_mul_i32 s{sTmp}, s2, 162\nv_add_u32 v58, s{sTmp}, v0\nv_lshlrev_b32 v58, 7, v58\nv_cmp_gt_u32 vcc, 162, v0\nv_cndmask_b32 v58, v{vOOB}, v58, vcc")
            for ka in (56, 64, 72):
                for i in self.t0srd(ka, 5308416): p.add(i)
                p.add(self.nodef(f"buffer_load_dword v{vDum}, v58, {srd(S_T0)}, 0 offen", "pf"))
            p(f"s_mul_i32 s{sTmp}, s2, 72\nv_add_u32 v58, s{sTmp}, v0\nv_lshlrev_b32 v58, 7, v58\nv_cmp_gt_u32 vcc, 72, v0\nv_cndmask_b32 v58, v{vOOB}, v58, vcc")
            for i in self.t0srd(32, 2359296): p.add(i)
            p.add(self.nodef(f"buffer_load_dword v{vDum}, v58, {srd(S_T0)}, 0 offen", "pf"))
        p(f"v_mov_b32 v60, 0\nv_cmp_eq_u32 vcc, 0, v0\nv_cndmask_b32 v61, v{vOOB}, v60, vcc")
        p(f"s_lshr_b32 s{sTmp}, s2, 4\ns_lshl_b32 s{sTmp}, s{sTmp}, 7\ns_and_b32 s{sTmp2}, s2, 15\ns_lshl_b32 s{sTmp2}, s{sTmp2}, 2\ns_add_u32 s{sTmp}, s{sTmp}, s{sTmp2}\ns_add_u32 s{sTmp}, s{sTmp}, {WS_FLAG + FA}")
        p(f"buffer_store_dword v60, v61, {srd(S_WS)}, s{sTmp} offen\ns_add_u32 s{sTmp}, s{sTmp}, {FC - FA}\nbuffer_store_dword v60, v61, {srd(S_WS)}, s{sTmp} offen")
        p(f"s_lshl_b32 s{sTmp}, s2, 2\ns_add_u32 s{sTmp}, s{sTmp}, {WS_FLAG + ZF}\nbuffer_store_dword v60, v61, {srd(S_WS)}, s{sTmp} offen")
        p("v_mov_b32 v40, 0x3f803f80\nv_mov_b32 v41, 0\nv_mov_b32 v42, 0")
        for r in range(8):
            p(f"v_dot2_f32_bf16 v41, v{24+r}, v40, v41\nv_dot2_f32_bf16 v42, v{24+r}, v{24+r}, v42")
        for reg in (41, 42):
            for d in ("quad_perm:[1,0,3,2]", "quad_perm:[2,3,0,1]", "row_half_mirror", "row_mirror"):
                p(f"v_add_f32_dpp v{reg}, v{reg}, v{reg} {d} row_mask:0xf bank_mask:0xf")
            for sw in ("v_permlane16_swap_b32", "v_permlane32_swap_b32"):
                p(f"v_mov_b32 v43, v{reg}\n{sw} v{reg}, v43\nv_add_f32 v{reg}, v{reg}, v43")
        p(f"v_mul_f32 v41, {f2u(1/576):#x}, v41\nv_mul_f32 v42, {f2u(1/576):#x}, v42")
        p("v_fma_f32 v42, -v41, v41, v42\nv_max_f32 v42, 0, v42")
        p("v_cvt_pk_bf16_f32 v43, v41, v42\nv_lshlrev_b32 v41, 16, v43\nv_and_b32 v42, 0xffff0000, v43")
        p(f"v_add_f32 v42, {f2u(1e-5):#x}, v42")
        p("v_cvt_pk_bf16_f32 v42, v42, v42\nv_lshlrev_b32 v42, 16, v42\nv_sqrt_f32 v42, v42")
        p("v_cvt_pk_bf16_f32 v42, v42, v42\nv_lshlrev_b32 v42, 16, v42\nv_rcp_f32 v43, v42")
        for r in range(8):
            p(f"v_lshlrev_b32 v44, 16, v{24+r}\nv_and_b32 v45, 0xffff0000, v{24+r}\nv_sub_f32 v44, v44, v41\nv_sub_f32 v45, v45, v41")
            p(f"v_cvt_pk_bf16_f32 v44, v44, v45\nv_and_b32 v45, 0xffff0000, v44\nv_lshlrev_b32 v44, 16, v44")
            p(f"v_mul_f32 v44, v44, v43\nv_mul_f32 v45, v45, v43\nv_cvt_pk_bf16_f32 v{24+r}, v44, v45")
        p(f"s_add_u32 s{sTmp}, s{sPoff}, {WS_XN}")
        sf = self.opt.get("psc", "")
        p(f"buffer_store_dwordx4 v[24:27], v52, {srd(S_WS)}, s{sTmp} offen {sf}\nbuffer_store_dwordx4 v[28:31], v53, {srd(S_WS)}, s{sTmp} offen {sf}")
        for c in range(4):
            p(f"v_lshlrev_b32 v{136+4*c-72}, 16, v{W0+2*c}\nv_and_b32 v{137+4*c-72}, 0xffff0000, v{W0+2*c}")
            p(f"v_lshlrev_b32 v{138+4*c-72}, 16, v{W0+2*c+1}\nv_and_b32 v{139+4*c-72}, 0xffff0000, v{W0+2*c+1}")
        TP, KF, VF, OU = 64, 112, 140, 156
        for r in range(7):
            p(f"v_lshlrev_b32 v{KF+4*r}, 16, v{K0+2*r}\nv_and_b32 v{KF+1+4*r}, 0xffff0000, v{K0+2*r}")
            p(f"v_lshlrev_b32 v{KF+2+4*r}, 16, v{K0+2*r+1}\nv_and_b32 v{KF+3+4*r}, 0xffff0000, v{K0+2*r+1}")
        for i_ in range(4):
            p(f"v_lshlrev_b32 v{VF+4*i_}, 16, v{V0+2*i_}\nv_and_b32 v{VF+1+4*i_}, 0xffff0000, v{V0+2*i_}")
            p(f"v_lshlrev_b32 v{VF+2+4*i_}, 16, v{V0+2*i_+1}\nv_and_b32 v{VF+3+4*i_}, 0xffff0000, v{V0+2*i_+1}")
        for c in range(4):
            for i_ in range(4): p(f"v_mul_f32 v{OU+4*c+i_}, v{KF+4*(3+i_)+c}, v{TP+4*c}")
        for jj in range(1, 4):
            for c in range(4):
                for i_ in range(4): p(f"v_fmac_f32 v{OU+4*c+i_}, v{KF+4*(3+i_-jj)+c}, v{TP+4*c+jj}")
        for c in range(4):
            for i_ in range(4): p(f"v_mul_f32 v{OU+4*c+i_}, v{OU+4*c+i_}, v{VF+4*i_+c}")
        p(f"v_and_b32 v32, 15, v0\nv_lshrrev_b32 v33, 5, v0\nv_xor_b32 v33, v33, v32\nv_lshlrev_b32 v33, 4, v33\nv_lshlrev_b32 v32, 10, v32\nv_add_u32 v32, v32, v33")
        p(f"v_bfe_u32 v33, v0, 4, 1\nv_lshlrev_b32 v33, 3, v33\nv_add_u32 v32, v32, v33")
        for c in range(4):
            p(f"v_cvt_pk_bf16_f32 v{34+2*c}, v{OU+4*c}, v{OU+4*c+1}\nv_cvt_pk_bf16_f32 v{35+2*c}, v{OU+4*c+2}, v{OU+4*c+3}")
            p(f"ds_write_b64 v32, {vr(34+2*c,2)} offset:{c*256}")
        p.waitlg(); p("s_barrier")
        p(f"v_and_b32 v44, 15, v0\nv_lshrrev_b32 v45, 4, v0")
        p(f"v_lshlrev_b32 v46, 12, v45\nv_lshlrev_b32 v47, 4, v44\nv_add_u32 v46, v46, v47")
        p(f"s_cmp_lt_u32 s2, 144\ns_cselect_b32 s{sTmp}, 0, {OOB:#x}\nv_add_u32 v46, s{sTmp}, v46")
        for r in range(2):
            p(f"v_lshrrev_b32 v47, 2, v45\nv_add_u32 v47, {8*r}, v47\nv_xor_b32 v47, v47, v44\nv_and_b32 v47, 15, v47\nv_lshlrev_b32 v47, 4, v47\nv_lshlrev_b32 v48, 8, v45\nv_add_u32 v47, v47, v48")
            p(f"ds_read_b128 {vr(24+4*r)}, v47 offset:{r*8192}")
        p(f"s_lshr_b32 s{sTmp}, s2, 4\ns_mul_i32 s{sTmp}, s{sTmp}, {64*4096}\ns_and_b32 s{sTmp2}, s2, 15\ns_lshl_b32 s{sTmp2}, s{sTmp2}, 8\ns_add_u32 s{sTmp}, s{sTmp}, s{sTmp2}\ns_add_u32 s{sTmp}, s{sTmp}, {WS_KVT}")
        p(f"buffer_store_dwordx4 v[24:27], v46, {srd(S_WS)}, s{sTmp} offen {sf}\ns_add_u32 s{sTmp}, s{sTmp}, {32*4096}\nbuffer_store_dwordx4 v[28:31], v46, {srd(S_WS)}, s{sTmp} offen {sf}")
        if self.opt.get("pstamp"):
            p("s_memrealtime s[88:89]")
            if self.opt.get("pwait"): p("s_waitcnt vmcnt(0)")
            p("s_memrealtime s[90:91]\ns_waitcnt lgkmcnt(0)")
            p(f"v_mov_b32 v4, s86\nv_mov_b32 v5, s88\nv_mov_b32 v6, s90\nv_mov_b32 v7, 0\nv_cmp_eq_u32 vcc, 0, v0\nv_mov_b32 v8, 0\nv_cndmask_b32 v8, v{vOOB}, v8, vcc")
            p(f"s_lshl_b32 s{sTmp}, s2, 4\ns_add_u32 s{sTmp}, s{sTmp}, {WS_DUMP + 0x8000}\nbuffer_store_dwordx4 v[4:7], v8, {srd(S_WS)}, s{sTmp} offen")
        p("L_pend:\ns_endpgm")
        return p.finalize()

def kernel_wrap(name, body, nvgpr=256, nsgpr=102):
    t = f".globl {name}\n.p2align 8\n.type {name},@function\n{name}:\n" + body
    d = f""".p2align 6
.amdhsa_kernel {name}
  .amdhsa_next_free_vgpr {nvgpr}
  .amdhsa_next_free_sgpr {nsgpr}
  .amdhsa_accum_offset {nvgpr}
  .amdhsa_group_segment_fixed_size 0
  .amdhsa_kernarg_size 104
  .amdhsa_user_sgpr_count 2
  .amdhsa_user_sgpr_kernarg_segment_ptr 1
  .amdhsa_system_sgpr_workgroup_id_x 1
.end_amdhsa_kernel
"""
    return t, d

PRODUCER_MAJOR = True
STAMP_SETS = [["start", "g1start", "g1end", "g2start", "g2end", "convend", "zok", "end"],
        ["start", "karg", "xrow", "s1set", "e3done", "s1ok", "g1start", "st2"],
        ["start", "st3", "st5", "st7", "st9", "st11", "st13", "st15"],
        ["start", "st15", "st17", "g1end", "gelu", "g2start", "c1", "c3"],
        ["start", "c3", "c5", "c7", "g2end", "cv0", "cv1", "cv2"],
        ["start", "cv2", "cv3", "convend", "fbok", "loaded", "zok", "end"]]
DEFAULT_STAMPS = ["start", "g1start", "g1end", "g2start", "g2end", "convend", "zok", "end"]
def make(stamps=False, listform=False, **kw):
    if stamps is True: stamps = DEFAULT_STAMPS
    g = Gen(stamps=stamps, **kw)
    body = g.build()
    name = NAME + "_kernel"
    t, d = kernel_wrap(name, body)
    ref = open(f"cdna_kernels/{NAME}.s.ref").read().split("\n")
    hdr = [l for l in ref if l.startswith(";") and "@launch" not in l and "Override launch" not in l and "grid=ceil" not in l]
    hdr = [l for l in hdr if not l.strip().startswith("; v1")]
    launch = f"; @launch grid=(256,1,1) block=(512,1,1) lds={LDS_BYTES}"
    if listform: launch = f"; @launch kernel={name} grid=(256,1,1) block=(512,1,1) lds={LDS_BYTES}"
    head = "\n".join(hdr[:15]) + "\n" + launch + "\n"
    asm = head + '.amdgcn_target "amdgcn-amd-amdhsa--gfx950"\n.text\n' + t + '.section .rodata,"a"\n' + d
    return asm, g

if __name__ == "__main__":
    asm, g = make(stamps=False)
    open(f"cdna_kernels/{NAME}.s", "w").write(asm)
    print(g.p.stats(), len(g.p.ins), len(asm))
```

```python
import sys, math, struct
sys.path.insert(0, "gen")
from fw import *

NAME = "parallel_sum__ssm_conv_h3__glu_gated_geglu__prompt"
def f2u(x): return struct.unpack("<I", struct.pack("<f", x))[0]
OOB = 0x80000000

WS_SIZE = 268435456
WS_BASE = 0xC000000
WS_P    = WS_BASE
WS_KVT  = WS_BASE + 0x2400000
WS_ZT   = WS_BASE + 0x2C00000
WS_XN   = WS_BASE + 0x2950000
WS_ST   = WS_BASE + 0x2880000
WS_CSP  = WS_BASE + 0x2890000
WS_FLAG = WS_BASE + 0x2930000
WS_DUMP = WS_BASE + 0x2940000
FA, FB, FC, ZF, S1, S2 = 0, 4096, 8192, 12288, 16384, 20480

SLOT = 36864
L_X = 110592
L_H = 73728
L_CS = 147456
L_KVL = 149760
L_DUMMY = 159552
L_STG = 147456
LDS_BYTES = 163840
C_KP = 0
C_TCB = 13824
C_YRA = 47104
C_YRB = 79872
C_DUM = 112640
C_TCA = 114176
C_ZL = 33280
C_C8 = 0

S_X, S_WG, S_WU, S_WD, S_WS, S_W5 = 8, 12, 16, 20, 24, 28
S_OUT, S_T0, S_DBG = 32, 36, 40
sW, sM, sJ = 44, 45, 46
sW1024, sM5, sKoff, sT, sH = 47, 48, 49, 50, 51
sM5D = 52
sTmp, sTmp2, sTmp3 = 53, 54, 55
sPoff = 56
sPF = 3
sEX = 4
sKA = 60
sXoff = 4
sTmp4 = 5
sCS = 6
sCW = 7
sEP = 58
sPL = 59
sNonce = 57
sSite = 73
sMask = 74
def srd(n): return f"s[{n}:{n+3}]"

vLane, vN, vQ = 1, 2, 3
vAE, vAO, vAS = 4, 5, 6
vB, vB2 = 7, 8
vO0, vO1, vO5 = 9, 10, 11
vXA = 12
vPF1, vPF2 = 13, 14
vDum = 15
vD0, vD5, vA2, vP0 = 16, 17, 18, 19
vOOB = 20
vE = 21
vK0 = 24
TMP = 40
FR0 = 56; NFR = 6
BFR = [80, 96]
ACC = 112
def vr(a, n=4): return f"v[{a}:{a+n-1}]"
def acc_own(a, ten, i): return ACC + 4 * ((a * 2 + ten) * 4 + i)
def acc_sh(ten, k): return ACC + 4 * (32 + ten * 2 + k)
sE2 = 72

class Gen:
    def __init__(self, stamps=False, **kw):
        self.p = Prog()
        self.stamps = stamps
        self.opt = dict(pf=True, nostore=False, stop=None, dump=None, nofill=False, dma4=True, dmaslots=None, prio=False, pf64=False, pfd=6, g1read=None, barslot=28, frbuf=None, order=None, nocvin=False, bprio=3, zblk=False, cons=True, ptouch=False, g2bare=False, noepi=False, epimode=3, epislots=(2,11), stgslot=22, own=(12,16), prd=21, pst=(30,33), early=16, prio2=False, sitesM2=False, dropst=0, noe3=True, pfB=True, xsc1=True, stflags='sc1', g2nodma=False, stslots=(16,22), g2carry=(1,12), nodma=False, breadslot=(29,30), vmfirst=(30,35), vmcarry=(1,22))
        self.opt.update(kw)
        self.uid = 0

    def stamp(self, name):
        if self.stamps and name in self.stamps:
            idx = self.stamps.index(name)
            self.p(f"{self.opt.get('clk','s_memtime')} s[{86+2*idx}:{87+2*idx}]")
    def stamp_i(self, name):
        if self.stamps and name in self.stamps:
            idx = self.stamps.index(name)
            return [Inst(f"{self.opt.get('clk','s_memtime')} s[{86+2*idx}:{87+2*idx}]")]
        return []
    def label(self, base):
        self.uid += 1; return f"L_{base}_{self.uid}"
    def build_srd(self, dst, ka_off, nbytes):
        k = sKA + ka_off // 4
        self.p(f"s_mov_b32 s{dst}, s{k}\ns_and_b32 s{dst+1}, s{k+1}, 0xffff\ns_mov_b32 s{dst+2}, {nbytes}\ns_mov_b32 s{dst+3}, 0x20000")
    def build_xn_srd(self):
        k = sKA + 96 // 4
        self.p(f"s_add_u32 s{S_X}, s{k}, {WS_XN}\ns_addc_u32 s{S_X+1}, s{k+1}, 0\ns_and_b32 s{S_X+1}, s{S_X+1}, 0xffff\ns_mov_b32 s{S_X+2}, 2359296\ns_mov_b32 s{S_X+3}, 0x20000")
    def code_prefetch(self, nl, ra=40):
        L = self.label("pc")
        t = self.I(f"s_getpc_b64 s[4:5]") + [Inst(f"{L}:")]
        t += self.I(f"s_lshr_b32 s{sTmp}, s2, 3\ns_mul_i32 s{sTmp}, s{sTmp}, {nl*128}\nv_lshlrev_b32 v{ra}, 7, v{vLane}\nv_add_u32 v{ra}, s{sTmp}, v{ra}")
        t += self.I(f"v_min_u32 v{ra}, L_end-{L}-4, v{ra}\nv_and_b32 v{ra}, 0xfffffffc, v{ra}")
        t += self.I(f"v_mov_b32 v{ra+1}, s5\nv_add_co_u32 v{ra}, vcc, s4, v{ra}\nv_addc_co_u32 v{ra+1}, vcc, 0, v{ra+1}, vcc")
        t += self.I(f"s_mov_b64 exec, {(1 << nl) - 1}\nglobal_load_dword v{vDum}, v[{ra}:{ra+1}], off\ns_mov_b64 exec, -1")
        for x in t: x.opaque = True
        return t
    def add_units(self, units):
        for u in units:
            if isinstance(u, list):
                for i in u: self.p.add(i)
            else: self.p.add(u)
    def I(self, text, tag=None):
        return [Inst(l, tag) for l in text.split("\n") if l.strip()]
    def nodef(self, text, tag):
        i = Inst(text, tag); i.defs = set(); return i

    @property
    def PFD(self): return self.opt['pfd']
    def pf_tile(self, tile):
        if not self.opt["pf"] or tile > 26: return []
        if tile < 18:
            if self.opt["pfB"] and tile >= 3:
                return [Inst(f"s_mov_b32 s{sPF}, {tile * 32 * 9216}"),
                        self.nodef(f"buffer_load_dword v{vDum}, v{vPF1}, {srd(S_WG)}, s{sPF} offen", "pf"),
                        self.nodef(f"buffer_load_dword v{vDum}, v{vPF1}, {srd(S_WU)}, s{sPF} offen", "pf")]
            return [Inst(f"s_mov_b32 s{sPF}, {tile * 32 * 9216}"),
                    self.nodef(f"buffer_load_dword v{vDum}, v{vPF1}, {srd(S_W5)}, s{sPF} offen", "pf")]
        return [Inst(f"s_mov_b32 s{sPF}, {(tile - 18) * 128}"),
                self.nodef(f"buffer_load_dword v{vDum}, v{vPF2}, {srd(S_WD)}, s{sPF} offen", "pf")]
    def pf_x(self, line):
        if not self.opt["pf"] or line > 8: return []
        return [Inst(f"s_mov_b32 s{sPF}, {line * 128}"),
                self.nodef(f"buffer_load_dword v{vDum}, v{vE}, {srd(S_X)}, s{sPF} offen", "pf")]

    def onlyB(self, u):
        if not u: return u
        if self.cls == "A": return []
        if self.cls == "B": return u
        L = self.label("sk")
        r = [Inst(f"s_cmp_lt_u32 s{sW}, 4"), Inst(f"s_cbranch_scc1 {L}")] + u + [Inst(f"{L}:")]
        for x in r: x.opaque = True
        return r
    def dma_tile(self, tile):
        out = []
        if tile < 18 and self.opt["dma4"]: return self.dma_tile4(tile)
        base = (tile % 3) * SLOT
        tag = f"tile{tile}"
        if tile < 18:
            first = True
            for (srd_, vo, off) in ((S_WG, vO0, 0), (S_WG, vO1, 8192), (S_WU, vO0, 18432), (S_WU, vO1, 18432 + 8192)):
                u = []
                if first: u.append(Inst(f"s_mov_b32 s{sKoff}, {tile * 32 * 9216}")); first = False
                u.append(Inst(f"s_add_u32 m0, s{sW1024}, {base + off}"))
                u.append(Inst(f"buffer_load_dwordx4 v{vo}, {srd(srd_)}, s{sKoff} offen lds", tag=tag))
                out.append(u)
            out.append([Inst(f"s_add_u32 m0, s{sM5}, {base}"), Inst("s_mov_b32 exec_hi, 0"),
                        Inst(f"buffer_load_dwordx4 v{vO5}, {srd(S_W5)}, s{sKoff} offen lds", tag=tag),
                        Inst("s_mov_b32 exec_hi, -1")])
        else:
            c = tile - 18
            for a in range(4):
                out.append([Inst(f"s_mov_b32 s{sKoff}, {a * 73728 + c * 128}"),
                            Inst(f"s_add_u32 m0, s{sW1024}, {base + a * 8192}"),
                            Inst(f"buffer_load_dwordx4 v{vD0}, {srd(S_WD)}, s{sKoff} offen lds", tag=tag)])
            out.append([Inst(f"s_mov_b32 s{sKoff}, {c * 128}"),
                        Inst(f"s_add_u32 m0, s{sM5D}, {base}"), Inst("s_mov_b32 exec_hi, 0"),
                        Inst(f"buffer_load_dwordx4 v{vD5}, {srd(S_WD)}, s{sKoff} offen lds", tag=tag),
                        Inst("s_mov_b32 exec_hi, -1")])
        return out

    def dma_tile4(self, tile):
        out = []
        base = (tile % 3) * SLOT
        tag = f"tile{tile}"
        L = self.label("d4")
        first = True
        for ten, srd_ in ((0, S_WG), (1, S_WU)):
            for a in range(4):
                u = []
                u.append(Inst(f"s_add_u32 m0, s{sW1024}, {base + ten*18432 + a*4096}"))
                u.append(Inst(f"s_mov_b32 s{sKoff}, {tile * 32 * 9216}"))
                u.append(Inst(f"buffer_load_dwordx4 v{self.vO4[a]}, {srd(srd_)}, s{sKoff} offen lds", tag=tag))
                out.append(u)
        out.append([Inst(f"s_add_u32 m0, s{sM5}, {base}"), Inst(f"s_mov_b32 s{sKoff}, {tile * 32 * 9216}"), Inst(f"buffer_load_dwordx4 v{vO5}, {srd(S_W5)}, s{sKoff} offen lds", tag=tag)])
        return [self.skipB(u) for u in out]
    cls = None
    @property
    def JJ(self): return 147456 if self.opt['cons'] else 1024
    @property
    def BJ(self): return 1024 if self.opt['cons'] else 147456
    def skipB(self, u):
        if self.cls == "A": return u
        if self.cls == "B": return []
        L = self.label("sk")
        return [Inst(f"s_cmp_ge_u32 s{sW}, 4"), Inst(f"s_cbranch_scc1 {L}")] + u + [Inst(f"{L}:")]
    vO4 = [9, 10, 32, 33]
    def dma_x4(self, s):
        base = L_X + (s % 3) * 8192
        out = []
        for k in range(2):
            out.append(self.skipB([Inst(f"s_add_u32 m0, s{sW1024}, {base + k * 4096}"),
                 Inst(f"s_mov_b32 s{sXoff}, {s * 64 + k * 64 * 1152}"),
                 Inst(f"buffer_load_dwordx4 v{vXA}, {srd(S_X)}, s{sXoff} offen {'sc1 ' if self.opt['xsc1'] else ''}lds", tag=f"x{s}")]))
        return out

    def dma_x(self, s):
        if self.opt["dma4"]: return self.dma_x4(s)
        base = L_X + (s % 3) * 8192
        return [[Inst(f"s_mov_b32 s{sXoff}, {s * 64}"),
                 Inst(f"s_add_u32 m0, s{sW1024}, {base}"),
                 Inst(f"buffer_load_dwordx4 v{vXA}, {srd(S_X)}, s{sXoff} offen {'sc1 ' if self.opt['xsc1'] else ''}lds", tag=f"x{s}")]]

    def prologue(self):
        p = self.p
        p("s_cmp_ge_u32 s2, 256\ns_cbranch_scc1 L_end")
        p(f"s_load_dwordx16 s[{sKA}:{sKA+15}], s[0:1], 0")
        p(f"s_load_dwordx8 s[{sKA+16}:{sKA+23}], s[0:1], 64")
        p(f"s_load_dwordx2 s[{sKA+24}:{sKA+25}], s[0:1], 96")
        p(f"v_lshrrev_b32 v40, 6, v0\nv_and_b32 v{vLane}, 63, v0")
        p(f"v_readfirstlane_b32 s{sW}, v40")
        p(f"v_and_b32 v{vN}, 15, v{vLane}\nv_lshrrev_b32 v{vQ}, 4, v{vLane}\nv_mov_b32 v{vOOB}, {OOB:#x}")
        p(f"s_and_b32 s{sJ}, s2, 3\ns_lshl_b32 s{sJ}, s{sJ}, 2\ns_bfe_u32 s{sTmp}, s2, 0x20003\ns_add_u32 s{sJ}, s{sJ}, s{sTmp}")
        p(f"s_bfe_u32 s{sM}, s2, 0x10002\ns_lshl_b32 s{sM}, s{sM}, 3\ns_lshr_b32 s{sTmp}, s2, 5\ns_add_u32 s{sM}, s{sM}, s{sTmp}")
        p(f"s_lshr_b32 s{sT}, s{sW}, 2\ns_and_b32 s{sH}, s{sW}, 3\ns_lshl_b32 s{sW1024}, s{sW}, 10")
        if self.opt.get("cpf", True):
            blk = self.I(f"s_cmp_lg_u32 s{sW}, 7\ns_cbranch_scc1 L_cpf0") + self.code_prefetch(20) + [Inst("L_cpf0:")]
            for x in blk: x.opaque = True; p.add(x)
        p(f"s_lshl_b32 s{sTmp}, s{sM}, 7\ns_lshl_b32 s{sTmp2}, s{sJ}, 3\ns_add_u32 s{sTmp}, s{sTmp}, s{sTmp2}\ns_add_u32 s{sTmp}, s{sTmp}, s{sW}\ns_mul_i32 s{sPoff}, s{sTmp}, 1152")
        p(f"v_lshlrev_b32 v52, 4, v{vLane}\nv_add_u32 v53, 1024, v52\nv_cmp_gt_u32 vcc, 8, v{vLane}\nv_cndmask_b32 v53, v{vOOB}, v53, vcc")
        p(f"s_and_b32 s{sTmp}, s{sM}, 7\ns_lshl_b32 s{sTmp2}, s{sTmp}, 2\ns_add_u32 s{sTmp2}, s{sTmp2}, s{sH}\ns_mul_i32 s{sTmp2}, s{sTmp2}, 9216")
        p(f"s_mul_i32 s{sTmp3}, s{sJ}, 576\ns_and_b32 s{sTmp4}, s{sTmp3}, 0xffffff80\ns_add_u32 s{sTmp2}, s{sTmp2}, s{sTmp4}")
        p(f"v_lshlrev_b32 v40, 7, v{vLane}\nv_add_u32 v40, s{sTmp2}, v40\nv_cmp_gt_u32 vcc, 5, v{vLane}\nv_cndmask_b32 v{vPF1}, v{vOOB}, v40, vcc")
        p("s_waitcnt lgkmcnt(0)")
        self.stamp("karg")
        self.build_srd(S_T0, 0, 2359296)
        p(f"buffer_load_dwordx4 v[24:27], v52, {srd(S_T0)}, s{sPoff} offen\nbuffer_load_dwordx4 v[28:31], v53, {srd(S_T0)}, s{sPoff} offen", tag="xrow")
        self.build_srd(S_DBG, 88, 256)
        p("s_memrealtime s[72:73]")
        self.build_srd(S_WG, 56, 5308416)
        self.build_srd(S_WU, 64, 5308416)
        p(f"s_cmp_lt_u32 s{sW}, 4")
        for i in range(4): p(f"s_cselect_b32 s{S_W5+i}, s{S_WG+i}, s{S_WU+i}")
        p("s_waitcnt lgkmcnt(0)")
        p(f"s_or_b32 s72, s72, 1\ns_cmp_eq_u32 s2, 0\ns_cselect_b32 s73, 0, {OOB:#x}\nv_mov_b32 v40, s72\nv_mov_b32 v41, s73\nv_cmp_eq_u32 vcc, 0, v0\nv_cndmask_b32 v41, v{vOOB}, v41, vcc")
        p(f"buffer_store_dword v40, v41, {srd(S_DBG)}, 0 offen sc1", tag="nonce")
        for t in range(3):
            for i in self.pf_tile(t): p.add(i)
        p(f"s_cmp_lt_u32 s{sH}, 2")
        for i in range(4): p(f"s_cselect_b32 s{S_W5+i}, s{S_WG+i}, s{S_WU+i}")
        self.build_srd(S_WS, 96, WS_SIZE)
        self.build_xn_srd()
        p(f"s_lshl_b32 s{sTmp}, s{sM}, 7\ns_lshl_b32 s{sTmp2}, s{sH}, 4\ns_add_u32 s{sTmp}, s{sTmp}, s{sTmp2}")
        p(f"v_lshrrev_b32 v40, 2, v{vLane}\nv_add_u32 v40, s{sTmp}, v40\nv_mul_u32_u24 v40, 1152, v40")
        p(f"v_bfe_u32 v41, v{vLane}, 4, 1\nv_mul_u32_u24 v41, 3, v41\nv_and_b32 v42, 3, v{vLane}\nv_xor_b32 v41, v41, v42\nv_lshlrev_b32 v41, 4, v41\nv_add_u32 v{vXA}, v40, v41")
        def w_voff(dst, ireg):
            p(f"v_mul_u32_u24 v42, 1821, v{ireg}\nv_lshrrev_b32 v42, 16, v42")
            p(f"v_mul_u32_u24 v43, 36, v42\nv_sub_u32 v43, v{ireg}, v43")
            p(f"v_lshrrev_b32 v44, 2, v42\nv_and_b32 v44, 2, v44\nv_xor_b32 v43, v43, v44")
            p(f"v_lshlrev_b32 v43, 4, v43\nv_mul_u32_u24 v42, 9216, v42\nv_add_u32 v42, v42, v43\nv_add_u32 v{dst}, s{sTmp3}, v42")
        p(f"s_mul_i32 s{sTmp3}, s{sJ}, 576")
        p(f"s_lshl_b32 s{sTmp}, s{sH}, 6\nv_add_u32 v41, s{sTmp}, v{vLane}")
        for a_ in range(4):
            w_voff(self.vO4[a_], 41)
            p(f"v_add_u32 v41, 256, v41")
        p(f"s_and_b32 s{sTmp}, s{sH}, 1\ns_add_u32 s{sTmp}, s{sTmp}, 16\ns_lshl_b32 s{sTmp}, s{sTmp}, 6\nv_add_u32 v41, s{sTmp}, v{vLane}")
        w_voff(vO5, 41)
        p(f"s_lshl_b32 s{sM5}, s{sTmp}, 4\ns_lshr_b32 s{sTmp2}, s{sH}, 1\ns_mul_i32 s{sTmp2}, s{sTmp2}, 18432\ns_add_u32 s{sM5}, s{sM5}, s{sTmp2}")
        p(f"s_and_b32 s{sTmp2}, s{sJ}, 3\ns_lshl_b32 s{sTmp2}, s{sTmp2}, 5\ns_lshl_b32 s{sTmp4}, s{sH}, 3\ns_add_u32 s{sTmp2}, s{sTmp2}, s{sTmp4}\ns_lshl_b32 s{sTmp4}, s{sM}, 7\ns_add_u32 s{sTmp2}, s{sTmp2}, s{sTmp4}")
        p(f"v_add_u32 v40, s{sTmp2}, v{vLane}\nv_mul_u32_u24 v40, 1152, v40\nv_cmp_gt_u32 vcc, 8, v{vLane}\nv_cndmask_b32 v{vE}, v{vOOB}, v40, vcc")
        for i in self.nonce_issue(23): p.add(i)
        p("v_mov_b32 v40, 0x3f803f80\nv_mov_b32 v41, 0\nv_mov_b32 v42, 0")
        for r in range(8):
            p(f"v_dot2_f32_bf16 v41, v{24+r}, v40, v41\nv_dot2_f32_bf16 v42, v{24+r}, v{24+r}, v42")
        self.stamp("xrow")
        for reg in (41, 42):
            for d in ("quad_perm:[1,0,3,2]", "quad_perm:[2,3,0,1]", "row_half_mirror", "row_mirror"):
                p(f"v_add_f32_dpp v{reg}, v{reg}, v{reg} {d} row_mask:0xf bank_mask:0xf")
            for sw in ("v_permlane16_swap_b32", "v_permlane32_swap_b32"):
                p(f"v_mov_b32 v43, v{reg}\n{sw} v{reg}, v43\nv_add_f32 v{reg}, v{reg}, v43")
        p(f"v_mul_f32 v41, {f2u(1/576):#x}, v41\nv_mul_f32 v42, {f2u(1/576):#x}, v42")
        p("v_fma_f32 v42, -v41, v41, v42\nv_max_f32 v42, 0, v42")
        p("v_cvt_pk_bf16_f32 v43, v41, v42\nv_lshlrev_b32 v41, 16, v43\nv_and_b32 v42, 0xffff0000, v43")
        p(f"v_add_f32 v42, {f2u(1e-5):#x}, v42")
        p("v_cvt_pk_bf16_f32 v42, v42, v42\nv_lshlrev_b32 v42, 16, v42\nv_sqrt_f32 v42, v42")
        p("v_cvt_pk_bf16_f32 v42, v42, v42\nv_lshlrev_b32 v42, 16, v42\nv_rcp_f32 v43, v42")
        for r in range(8):
            p(f"v_lshlrev_b32 v44, 16, v{24+r}\nv_and_b32 v45, 0xffff0000, v{24+r}\nv_sub_f32 v44, v44, v41\nv_sub_f32 v45, v45, v41")
            p(f"v_cvt_pk_bf16_f32 v44, v44, v45\nv_and_b32 v45, 0xffff0000, v44\nv_lshlrev_b32 v44, 16, v44")
            p(f"v_mul_f32 v44, v44, v43\nv_mul_f32 v45, v45, v43\nv_cvt_pk_bf16_f32 v{24+r}, v44, v45")
        p(f"buffer_store_dwordx4 v[24:27], v52, {srd(S_X)}, s{sPoff} offen sc1\nbuffer_store_dwordx4 v[28:31], v53, {srd(S_X)}, s{sPoff} offen sc1", tag="xnst")
        for i in self.nonce_check(23): p.add(i)
        p.waitvm("xnst"); p("s_barrier")
        for i in self.signal(S1, 40, 41): p.add(i)
        self.stamp("s1set")
        self.add_units(self.dma_tile(0)); self.add_units(self.dma_tile(1)); self.add_units(self.dma_tile(2))
        self.build_srd(S_WD, 72, 5308416)
        self.build_srd(S_OUT, 80, 2359296)
        p(f"v_bfe_u32 v40, v{vLane}, 2, 2")
        p(f"v_lshlrev_b32 v41, 3, v{vQ}\nv_add_u32 v41, v41, v40\nv_mul_u32_u24 v41, 576, v41")
        p(f"v_and_b32 v42, 3, v{vLane}\nv_lshlrev_b32 v42, 3, v42\nv_add_u32 v41, v41, v42")
        p(f"v_and_b32 v43, 1, v{vQ}")
        p(f"s_lshl_b32 s{sTmp}, s{sH}, 2")
        p(f"v_add_u32 v44, s{sTmp}, v43\nv_lshlrev_b32 v44, 5, v44\nv_add_u32 v{vAE}, v41, v44")
        p(f"v_xor_b32 v44, 1, v43\nv_add_u32 v44, s{sTmp}, v44\nv_lshlrev_b32 v44, 5, v44\nv_add_u32 v{vAO}, v41, v44")
        p(f"s_lshr_b32 s{sTmp}, s{sH}, 1\ns_add_u32 s{sTmp}, s{sTmp}, 16")
        p(f"v_xor_b32 v44, s{sTmp}, v43\nv_lshlrev_b32 v44, 5, v44\nv_add_u32 v{vAS}, v41, v44")
        p(f"v_bfe_u32 v40, v{vN}, 2, 1\nv_mul_u32_u24 v40, 3, v40\nv_xor_b32 v40, v{vQ}, v40\nv_lshlrev_b32 v40, 4, v40")
        p(f"s_lshl_b32 s{sTmp}, s{sT}, 6\nv_add_u32 v41, s{sTmp}, v{vN}\nv_lshlrev_b32 v41, 6, v41\nv_add_u32 v41, v41, v40\nv_add_u32 v41, {L_X}, v41")
        p(f"s_and_b32 s{sE2}, s{sH}, 1\ns_lshl_b32 s{sTmp}, s{sE2}, 11")
        p(f"v_add_u32 v{vB}, s{sTmp}, v41\nv_subrev_u32 v{vB2}, s{sTmp}, v41")
        for i in self.fpoll_issue(f"s_lshl_b32 s{sTmp2}, s{sM}, 4\nv_add_u32 v22, s{sTmp2}, v{vN}\nv_lshlrev_b32 v22, 2, v22\nv_add_u32 v22, {S1}, v22", 22, 21): p.add(i)
        for i in self.fpoll_check(22, 21): p.add(i)
        self.stamp("s1ok")
        self.add_units(self.dma_x(0)); self.add_units(self.dma_x(1)); self.add_units(self.dma_x(2))

    def f3_addr(self):
        t = []
        A = lambda s: t.extend(self.I(s))
        A(f"s_and_b32 s{sTmp}, s2, 15\ns_lshl_b32 s{sTmp}, s{sTmp}, 7\ns_lshr_b32 s{sTmp2}, s2, 4\ns_lshl_b32 s{sTmp2}, s{sTmp2}, 7")
        A(f"v_bfe_u32 v22, v0, 5, 3\nv_lshlrev_b32 v22, 2, v22\nv_add_u32 v22, s{sTmp}, v22\nv_mul_u32_u24 v22, 1152, v22")
        A(f"v_and_b32 v35, 31, v0\nv_lshlrev_b32 v35, 2, v35\nv_add_u32 v35, s{sTmp2}, v35\nv_add_u32 v22, v22, v35")
        A(f"s_cmp_lt_u32 s2, 144\ns_cselect_b32 s{sTmp}, 0, {OOB:#x}\nv_add_u32 v22, s{sTmp}, v22")
        u = self.t0srd(24, 4608) + self.I(f"s_lshr_b32 s{sTmp2}, s2, 4\ns_lshl_b32 s{sTmp2}, s{sTmp2}, 9\nv_and_b32 v35, 31, v0\nv_lshlrev_b32 v35, 4, v35\nv_add_u32 v35, s{sTmp2}, v35")
        u.append(Inst(f"buffer_load_dwordx4 v[36:39], v35, {srd(S_T0)}, 0 offen", tag="e3"))
        t.append(u)
        return t
    def f3_taps(self):
        t = []
        for c in range(2):
            t += self.I(f"v_lshlrev_b32 v{40+4*c}, 16, v{36+2*c}\nv_and_b32 v{41+4*c}, 0xffff0000, v{36+2*c}\nv_lshlrev_b32 v{42+4*c}, 16, v{37+2*c}\nv_and_b32 v{43+4*c}, 0xffff0000, v{37+2*c}")
        return t
    def f3_loads(self, r):
        t = []
        if r > 0: t += self.I(f"v_add_u32 v22, {32*1152}, v22")
        t += [self.t0srd(8, 2359296)]
        for rr in range(3):
            t.append(self.I(f"v_subrev_u32 v35, {(3-rr)*1152}, v22") + [Inst(f"buffer_load_dword v{24+rr}, v35, {srd(S_T0)}, 0 offen", tag="e3")])
        for rr in range(3, 7):
            t.append(Inst(f"buffer_load_dword v{24+rr}, v22, {srd(S_T0)}, 0 offen offset:{(rr-3)*1152}", tag="e3"))
        t += [self.t0srd(16, 2359296)]
        for i in range(4):
            t.append(Inst(f"buffer_load_dword v{31+i}, v22, {srd(S_T0)}, 0 offen offset:{i*1152}", tag="e3"))
        return t
    def f3_compute(self, r):
        t = []
        A = lambda s: t.extend(self.I(s))
        A(f"v_bfe_u32 v23, v0, 6, 2\nv_add_u32 v23, {4*r}, v23\nv_and_b32 v35, 15, v0\nv_xor_b32 v23, v23, v35\nv_lshlrev_b32 v23, 4, v23")
        A(f"v_and_b32 v35, 31, v0\nv_lshlrev_b32 v35, 9, v35\nv_add_u32 v23, v23, v35\nv_bfe_u32 v35, v0, 5, 1\nv_lshlrev_b32 v35, 3, v35\nv_add_u32 v23, v23, v35\nv_add_u32 v23, {L_STG}, v23")
        for rr in range(7): A(f"v_lshlrev_b32 v{48+rr}, 16, v{24+rr}\nv_and_b32 v{24+rr}, 0xffff0000, v{24+rr}")
        for c in range(2):
            K = 48 if c == 0 else 24
            for i in range(4):
                d = 36 + i
                A(f"v_mul_f32 v{d}, v{K+3+i}, v{40+4*c}")
                for jj in range(1, 4): A(f"v_fmac_f32 v{d}, v{K+3+i-jj}, v{40+4*c+jj}")
                if c == 0: A(f"v_lshlrev_b32 v35, 16, v{31+i}")
                else: A(f"v_and_b32 v35, 0xffff0000, v{31+i}")
                A(f"v_mul_f32 v{d}, v{d}, v35")
            A(f"v_cvt_pk_bf16_f32 v36, v36, v37\nv_cvt_pk_bf16_f32 v37, v38, v39")
            A(f"ds_write_b64 v23, v[36:37] offset:{c*256}")
        return t
    def kv_store(self):
        t = []
        A = lambda s: t.extend(self.I(s))
        A(f"v_and_b32 v44, 15, v0\nv_bfe_u32 v45, v0, 4, 4")
        A(f"v_lshlrev_b32 v46, 12, v45\nv_lshlrev_b32 v47, 4, v44\nv_add_u32 v46, v46, v47")
        A(f"s_cmp_lt_u32 s2, 144\ns_cselect_b32 s{sTmp}, 0, {OOB:#x}\nv_add_u32 v46, s{sTmp}, v46")
        for r in range(4):
            A(f"v_lshrrev_b32 v47, 1, v45\nv_add_u32 v47, {8*r}, v47\nv_xor_b32 v47, v47, v44\nv_and_b32 v47, 15, v47\nv_lshlrev_b32 v47, 4, v47\nv_lshlrev_b32 v48, 8, v45\nv_add_u32 v47, v47, v48\nv_add_u32 v47, {L_STG}, v47")
            A(f"ds_read_b128 {vr(24+4*r)}, v47 offset:{r*4096}")
        A(f"s_lshr_b32 s{sTmp}, s2, 4\ns_mul_i32 s{sTmp}, s{sTmp}, {64*4096}\ns_and_b32 s{sTmp2}, s2, 15\ns_lshl_b32 s{sTmp2}, s{sTmp2}, 8\ns_add_u32 s{sTmp}, s{sTmp}, s{sTmp2}\ns_add_u32 s{sTmp}, s{sTmp}, {WS_KVT}")
        for r in range(4):
            u = [Inst(f"buffer_store_dwordx4 {vr(24+4*r)}, v46, {srd(S_WS)}, s{sTmp} offen sc1", tag="est2")]
            if r < 3: u += self.I(f"s_add_u32 s{sTmp}, s{sTmp}, {16*4096}")
            t.append(u)
        return t

    def g2_setup(self):
        t = []
        A = lambda s: t.extend(self.I(s))
        A(f"s_and_b32 s{sTmp}, s{sM}, 7\ns_lshl_b32 s{sTmp2}, s{sTmp}, 2\ns_add_u32 s{sTmp2}, s{sTmp2}, s{sH}\ns_mul_i32 s{sTmp2}, s{sTmp2}, 9")
        A(f"v_add_u32 v52, s{sTmp2}, v{vLane}\ns_mul_i32 s{sTmp3}, s{sJ}, 288\nv_add_u32 v53, s{sTmp3}, v52\nv_mul_u32_u24 v53, 1152, v53")
        A(f"v_cmp_gt_u32 vcc, 9, v{vLane}\nv_cndmask_b32 v53, v{vOOB}, v53, vcc\nv_cmp_gt_u32 vcc, 288, v52\nv_cndmask_b32 v{vPF2}, v{vOOB}, v53, vcc")
        A(f"s_mul_i32 s{sTmp}, s{sJ}, 288\ns_lshl_b32 s{sTmp2}, s{sW}, 3\ns_add_u32 s{sTmp}, s{sTmp}, s{sTmp2}")
        A(f"v_lshrrev_b32 v52, 3, v{vLane}\nv_add_u32 v53, s{sTmp}, v52\nv_mul_u32_u24 v53, 1152, v53")
        A(f"v_bfe_u32 v54, v{vLane}, 1, 2\nv_bfe_u32 v55, v{vLane}, 4, 1")
        A(f"s_and_b32 s{sTmp2}, s{sW}, 1\ns_lshl_b32 s{sTmp2}, s{sTmp2}, 1")
        A(f"v_or_b32 v{vD0}, s{sTmp2}, v55\nv_xor_b32 v{vD0}, v54, v{vD0}\nv_lshlrev_b32 v{vD0}, 5, v{vD0}")
        A(f"v_and_b32 v{vD5}, 1, v{vLane}\nv_lshlrev_b32 v{vD5}, 4, v{vD5}\nv_add_u32 v{vD0}, v{vD0}, v{vD5}\nv_add_u32 v{vD0}, v53, v{vD0}")
        A(f"s_lshr_b32 s{sTmp}, s{sW}, 1\ns_add_u32 s{sTmp}, s{sTmp}, 32\ns_and_b32 s{sTmp2}, s{sW}, 1")
        A(f"s_lshl_b32 s{sM5D}, s{sTmp}, 10\ns_lshl_b32 s{sTmp3}, s{sTmp2}, 9\ns_add_u32 s{sM5D}, s{sM5D}, s{sTmp3}")
        A(f"s_lshl_b32 s{sTmp3}, s{sTmp}, 3\ns_lshl_b32 s{sTmp2}, s{sTmp2}, 2\ns_add_u32 s{sTmp3}, s{sTmp3}, s{sTmp2}")
        A(f"s_mul_i32 s{sTmp2}, s{sJ}, 288\ns_add_u32 s{sTmp3}, s{sTmp3}, s{sTmp2}")
        A(f"v_add_u32 v53, s{sTmp3}, v52\nv_mul_u32_u24 v53, 1152, v53")
        A(f"s_and_b32 s{sTmp}, s{sTmp}, 1\ns_lshl_b32 s{sTmp}, s{sTmp}, 1")
        A(f"v_or_b32 v52, s{sTmp}, v55\nv_xor_b32 v52, v54, v52\nv_lshlrev_b32 v52, 5, v52\nv_add_u32 v52, v52, v{vD5}\nv_add_u32 v{vD5}, v53, v52")
        self.seg2 = len(t)
        A(f"v_bfe_u32 v52, v{vLane}, 2, 2\nv_lshlrev_b32 v53, 3, v{vQ}\nv_add_u32 v53, v53, v52\nv_lshlrev_b32 v53, 7, v53")
        A(f"v_lshrrev_b32 v54, 1, v52\nv_and_b32 v55, 1, v{vQ}\nv_lshlrev_b32 v55, 1, v55\nv_or_b32 v54, v54, v55")
        A(f"v_xor_b32 v54, s{sH}, v54\nv_lshlrev_b32 v54, 5, v54\nv_add_u32 v53, v53, v54")
        A(f"v_and_b32 v54, 3, v{vLane}\nv_lshlrev_b32 v54, 3, v54\nv_add_u32 v{vA2}, v53, v54")
        A(f"v_and_b32 v52, 1, v{vQ}\nv_lshlrev_b32 v52, 1, v52\nv_lshrrev_b32 v53, 3, v{vN}\nv_add_u32 v52, v52, v53")
        if self.opt["cons"]: A(f"s_lshl_b32 s{sTmp}, s{sT}, 3\nv_add_u32 v52, s{sTmp}, v52\ns_mov_b32 s{sTmp}, 147456\nv_mul_lo_u32 v52, v52, s{sTmp}")
        else: A(f"s_lshl_b32 s{sTmp}, s{sT}, 3\nv_add_u32 v52, s{sTmp}, v52\nv_lshlrev_b32 v52, 10, v52")
        A(f"v_lshrrev_b32 v53, 1, v{vQ}\nv_lshlrev_b32 v53, 7, v53\nv_and_b32 v54, 7, v{vN}\nv_lshlrev_b32 v54, 4, v54\nv_add_u32 v53, v53, v54")
        A(f"s_lshl_b32 s{sTmp}, s{sH}, 8\nv_add_u32 v53, s{sTmp}, v53\nv_add_u32 v{vP0}, v52, v53")
        if self.opt["cons"]: A(f"s_mul_i32 s{sPoff}, s{sM}, {16*147456}\ns_lshl_b32 s{sTmp}, s{sJ}, 10\ns_add_u32 s{sPoff}, s{sPoff}, s{sTmp}\ns_add_u32 s{sPoff}, s{sPoff}, {WS_P}")
        else: A(f"s_lshl_b32 s{sPoff}, s{sM}, 4\ns_add_u32 s{sPoff}, s{sPoff}, s{sJ}\ns_mul_i32 s{sPoff}, s{sPoff}, 147456\ns_add_u32 s{sPoff}, s{sPoff}, {WS_P}")
        return t

    def e1_loads(self):
        t = []
        t += self.I(f"s_lshl_b32 s{sTmp}, s{sM}, 7\ns_lshl_b32 s{sTmp2}, s{sJ}, 3\ns_add_u32 s{sTmp}, s{sTmp}, s{sTmp2}\ns_add_u32 s{sTmp}, s{sTmp}, s{sW}\ns_mul_i32 s{sTmp}, s{sTmp}, 1152")
        t += self.I(f"v_lshlrev_b32 v52, 4, v{vLane}\nv_add_u32 v53, 1024, v52\nv_cmp_gt_u32 vcc, 8, v{vLane}\nv_cndmask_b32 v53, v{vOOB}, v53, vcc")
        t.append(Inst(f"buffer_load_dwordx4 v[24:27], v52, {srd(S_X)}, s{sTmp} offen", tag="e1"))
        t.append(Inst(f"buffer_load_dwordx4 v[28:31], v53, {srd(S_X)}, s{sTmp} offen", tag="e1"))
        return t
    def e1_compute(self):
        t = []
        A = lambda s: t.extend(self.I(s))
        A("v_mov_b32 v52, 0\nv_mov_b32 v53, 0")
        for r in range(8):
            A(f"v_lshlrev_b32 v54, 16, v{24+r}\nv_and_b32 v55, 0xffff0000, v{24+r}\nv_add_f32 v52, v52, v54\nv_fmac_f32 v53, v54, v54\nv_add_f32 v52, v52, v55\nv_fmac_f32 v53, v55, v55")
        for reg in (52, 53):
            for d in ("quad_perm:[1,0,3,2]", "quad_perm:[2,3,0,1]", "row_half_mirror", "row_mirror"):
                A(f"v_add_f32_dpp v{reg}, v{reg}, v{reg} {d} row_mask:0xf bank_mask:0xf")
            for sw in ("v_permlane16_swap_b32", "v_permlane32_swap_b32"):
                A(f"v_mov_b32 v54, v{reg}\n{sw} v{reg}, v54\nv_add_f32 v{reg}, v{reg}, v54")
        A(f"v_mul_f32 v52, {f2u(1/576):#x}, v52\nv_mul_f32 v53, {f2u(1/576):#x}, v53")
        A("v_fma_f32 v53, -v52, v52, v53\nv_max_f32 v53, 0, v53")
        A("v_cvt_pk_bf16_f32 v54, v52, v53\nv_lshlrev_b32 v52, 16, v54\nv_and_b32 v53, 0xffff0000, v54")
        A(f"v_add_f32 v53, {f2u(1e-5):#x}, v53")
        A("v_cvt_pk_bf16_f32 v53, v53, v53\nv_lshlrev_b32 v53, 16, v53\nv_sqrt_f32 v53, v53")
        A("v_cvt_pk_bf16_f32 v53, v53, v53\nv_lshlrev_b32 v53, 16, v53\nv_rcp_f32 v54, v53")
        c1 = -2.0 * math.sqrt(2.0 / math.pi) * math.log2(math.e)
        A(f"v_sub_f32 v24, 0, v52\nv_mul_f32 v25, {f2u(c1):#x}, v54")
        A(f"v_mul_f32 v26, v54, v54\nv_mul_f32 v26, v26, v54\nv_mul_f32 v26, {f2u(c1*0.044715):#x}, v26\nv_mul_f32 v27, v53, v53")
        A(f"s_lshl_b32 s{sTmp}, s{sM}, 7\ns_lshl_b32 s{sTmp2}, s{sJ}, 3\ns_add_u32 s{sTmp}, s{sTmp}, s{sTmp2}\ns_add_u32 s{sTmp}, s{sTmp}, s{sW}\ns_lshl_b32 s{sTmp}, s{sTmp}, 4\ns_add_u32 s{sTmp}, s{sTmp}, {WS_ST}")
        A(f"v_cmp_eq_u32 vcc, 0, v{vLane}\nv_cndmask_b32 v54, v{vOOB}, v{vLane}, vcc")
        t.append(Inst(f"buffer_store_dwordx4 v[24:27], v54, {srd(S_WS)}, s{sTmp} offen sc1", tag="est"))
        return t
    def e2_loads(self, r):
        t = []
        if r == 0:
            t += self.I(f"v_lshlrev_b32 v22, 4, v{vLane}\nv_cmp_gt_u32 vcc, 36, v{vLane}\nv_cndmask_b32 v22, v{vOOB}, v22, vcc")
        t += self.I(f"s_mul_i32 s{sTmp}, s{sM}, 36\ns_add_u32 s{sTmp}, s{sTmp}, s{sH}\ns_add_u32 s{sTmp}, s{sTmp}, {20*r}\ns_mul_i32 s{sTmp}, s{sTmp}, 9216\ns_mul_i32 s{sTmp2}, s{sJ}, 576\ns_add_u32 s{sTmp}, s{sTmp}, s{sTmp2}")
        n = 5 if r == 0 else 4
        for a in range(n):
            t.append(Inst(f"buffer_load_dwordx4 {vr(32+4*a)}, v22, {srd(S_W5)}, s{sTmp} offen", tag="e2"))
            if a < n - 1: t += self.I(f"s_add_u32 s{sTmp}, s{sTmp}, {4*9216}")
        return t
    def e2_compute(self, r):
        t = []
        n = 5 if r == 0 else 4
        for a in range(n):
            for q in range(4):
                s = 32 + 4 * a + q
                if r == 0 and a == 0:
                    t += self.I(f"v_lshlrev_b32 v{24+2*q}, 16, v{s}\nv_and_b32 v{25+2*q}, 0xffff0000, v{s}")
                else:
                    t += self.I(f"v_lshlrev_b32 v54, 16, v{s}\nv_and_b32 v55, 0xffff0000, v{s}\nv_add_f32 v{24+2*q}, v{24+2*q}, v54\nv_add_f32 v{25+2*q}, v{25+2*q}, v55")
        return t
    def e2_add(self):
        t = self.I(f"s_mul_i32 s{sTmp}, s{sW}, 1152\ns_add_u32 s{sTmp}, s{sTmp}, {L_KVL}\nv_lshlrev_b32 v54, 5, v{vLane}\nv_add_u32 v54, s{sTmp}, v54")
        t += self.I(f"v_lshlrev_b32 v55, 5, v{vLane}\nv_and_b32 v55, 0x3ff, v55\nv_add_u32 v55, {L_DUMMY}, v55\nv_cmp_gt_u32 vcc, 36, v{vLane}\nv_cndmask_b32 v54, v55, v54, vcc")
        t += self.I(f"ds_write_b128 v54, v[24:27]\nds_write_b128 v54, v[28:31] offset:16")
        return t
    def e2_store(self):
        t = self.I(f"v_cmp_lt_u32 vcc, 71, v0\nv_cndmask_b32 v52, 0, 1, vcc\nv_mul_u32_u24 v53, 72, v52\nv_sub_u32 v53, v0, v53")
        t += self.I(f"v_mul_u32_u24 v52, {4*1152}, v52\nv_lshlrev_b32 v53, 4, v53\nv_add_u32 v53, v53, v52\nv_add_u32 v53, {L_KVL}, v53")
        t += self.I(f"v_lshlrev_b32 v54, 2, v{vLane}\nv_and_b32 v54, 0xf0, v54\nv_add_u32 v54, {L_DUMMY}, v54\nv_cmp_gt_u32 vcc, 144, v0\nv_cndmask_b32 v53, v{vDum}, v53, vcc" if False else f"v_mov_b32 v54, {L_KVL}\nv_cmp_gt_u32 vcc, 144, v0\nv_cndmask_b32 v53, v54, v53, vcc")
        for k in range(4):
            t += self.I(f"ds_read_b128 {vr(32+4*k)}, v53 offset:{k*1152}")
        for k in range(1, 4):
            for e in range(4): t += self.I(f"v_add_f32 v{32+e}, v{32+e}, v{32+4*k+e}")
        t += self.I(f"v_lshlrev_b32 v52, 4, v0\nv_cndmask_b32 v52, v{vOOB}, v52, vcc")
        t += self.I(f"s_lshl_b32 s{sTmp}, s{sJ}, 4\ns_add_u32 s{sTmp}, s{sTmp}, s{sM}\ns_mul_i32 s{sTmp}, s{sTmp}, 2304\ns_add_u32 s{sTmp}, s{sTmp}, {WS_CSP}")
        t.append(Inst(f"buffer_store_dwordx4 v[32:35], v52, {srd(S_WS)}, s{sTmp} offen sc1", tag="est"))
        return t
    E3K, E3V, E3W = 80, 94, 102
    def e3_base(self, dst, t):
        A = lambda s: t.extend(self.I(s))
        A(f"s_and_b32 s{sTmp}, s2, 15\ns_lshl_b32 s{sTmp}, s{sTmp}, 7\ns_lshr_b32 s{sTmp2}, s2, 4\ns_lshl_b32 s{sTmp2}, s{sTmp2}, 7")
        A(f"v_lshrrev_b32 v{dst}, 4, v0\nv_lshlrev_b32 v{dst}, 2, v{dst}\nv_add_u32 v{dst}, s{sTmp}, v{dst}\nv_mul_u32_u24 v{dst}, 1152, v{dst}")
        A(f"v_and_b32 v{dst+1}, 15, v0\nv_lshlrev_b32 v{dst+1}, 3, v{dst+1}\nv_add_u32 v{dst+1}, s{sTmp2}, v{dst+1}\nv_add_u32 v{dst}, v{dst}, v{dst+1}")
        A(f"s_cmp_lt_u32 s2, 144\ns_cselect_b32 s{sTmp}, 0, {OOB:#x}\nv_add_u32 v{dst}, s{sTmp}, v{dst}")
    def t0srd(self, ka, n):
        k = sKA + ka // 4
        return self.I(f"s_mov_b32 s{S_T0}, s{k}\ns_and_b32 s{S_T0+1}, s{k+1}, 0xffff\ns_mov_b32 s{S_T0+2}, {n}\ns_mov_b32 s{S_T0+3}, 0x20000")
    def e3_prefetch(self):
        t = []
        A = lambda s: t.extend(self.I(s))
        A(f"s_and_b32 s{sTmp}, s2, 15\ns_lshl_b32 s{sTmp}, s{sTmp}, 7\ns_lshl_b32 s{sTmp2}, s{sH}, 5\ns_add_u32 s{sTmp}, s{sTmp}, s{sTmp2}\ns_lshr_b32 s{sTmp2}, s2, 4\ns_lshl_b32 s{sTmp2}, s{sTmp2}, 7")
        A(f"v_add_u32 v34, s{sTmp}, v{vLane}\nv_subrev_u32 v34, 3, v34\ns_movk_i32 s{sTmp3}, 1152\nv_mul_lo_u32 v34, v34, s{sTmp3}\nv_add_u32 v34, s{sTmp2}, v34")
        A(f"v_cmp_gt_u32 vcc, 9, v{vLane}\nv_cndmask_b32 v34, v{vOOB}, v34, vcc\ns_cmp_lt_u32 s2, 144\ns_cselect_b32 s{sTmp}, 0, {OOB:#x}\nv_or_b32 v34, s{sTmp}, v34")
        units = []
        for part in range(4):
            for ka in (8, 16):
                u = self.t0srd(ka, 2359296) + [self.nodef(f"buffer_load_dword v{vDum}, v34, {srd(S_T0)}, 0 offen", "pf")]
                if ka == 16 and part < 3: u += self.I(f"v_add_u32 v34, {9*1152}, v34")
                units.append(u)
        return t, units
    def e3_loads(self):
        t = []
        K0, V0, W0 = self.E3K, self.E3V, self.E3W
        self.e3_base(52, t)
        t += self.t0srd(8, 2359296)
        for r in range(3):
            t += self.I(f"v_subrev_u32 v54, {(3-r)*1152}, v52")
            t.append(Inst(f"buffer_load_dwordx2 {vr(K0+2*r,2)}, v54, {srd(S_T0)}, 0 offen", tag="e3"))
        for r in range(3, 7):
            t.append(Inst(f"buffer_load_dwordx2 {vr(K0+2*r,2)}, v52, {srd(S_T0)}, 0 offen offset:{(r-3)*1152}", tag="e3"))
        t += self.t0srd(16, 2359296)
        for i in range(4):
            t.append(Inst(f"buffer_load_dwordx2 {vr(V0+2*i,2)}, v52, {srd(S_T0)}, 0 offen offset:{1152*i}", tag="e3"))
        t += self.t0srd(24, 4608)
        t += self.I(f"s_lshr_b32 s{sTmp2}, s2, 4\ns_lshl_b32 s{sTmp2}, s{sTmp2}, 9\nv_and_b32 v54, 15, v0\nv_lshlrev_b32 v54, 5, v54\nv_add_u32 v54, s{sTmp2}, v54")
        t.append(Inst(f"buffer_load_dwordx4 {vr(W0)}, v54, {srd(S_T0)}, 0 offen", tag="e3"))
        t.append(Inst(f"buffer_load_dwordx4 {vr(W0+4)}, v54, {srd(S_T0)}, 0 offen offset:16", tag="e3"))
        return t
    def e3_compute(self):
        p = self.p
        K0, V0, W0 = self.E3K, self.E3V, self.E3W
        TP, KF, VF, OU = 136, 152, 180, 200
        pr = lambda r: f"v[{r}:{r+1}]"
        for c in range(4):
            p(f"v_lshlrev_b32 v{TP+c}, 16, v{W0+2*c}\nv_and_b32 v{TP+4+c}, 0xffff0000, v{W0+2*c}")
            p(f"v_lshlrev_b32 v{TP+8+c}, 16, v{W0+2*c+1}\nv_and_b32 v{TP+12+c}, 0xffff0000, v{W0+2*c+1}")
        for r in range(7):
            p(f"v_lshlrev_b32 v{KF+4*r}, 16, v{K0+2*r}\nv_and_b32 v{KF+1+4*r}, 0xffff0000, v{K0+2*r}")
            p(f"v_lshlrev_b32 v{KF+2+4*r}, 16, v{K0+2*r+1}\nv_and_b32 v{KF+3+4*r}, 0xffff0000, v{K0+2*r+1}")
        for i in range(4):
            p(f"v_lshlrev_b32 v{VF+4*i}, 16, v{V0+2*i}\nv_and_b32 v{VF+1+4*i}, 0xffff0000, v{V0+2*i}")
            p(f"v_lshlrev_b32 v{VF+2+4*i}, 16, v{V0+2*i+1}\nv_and_b32 v{VF+3+4*i}, 0xffff0000, v{V0+2*i+1}")
        for i in range(4):
            for cp in (0, 2): p(f"v_pk_mul_f32 {pr(OU+4*i+cp)}, {pr(KF+4*(3+i)+cp)}, {pr(TP+cp)}")
        for jj in range(1, 4):
            for i in range(4):
                for cp in (0, 2): p(f"v_pk_fma_f32 {pr(OU+4*i+cp)}, {pr(KF+4*(3+i-jj)+cp)}, {pr(TP+4*jj+cp)}, {pr(OU+4*i+cp)}")
        for i in range(4):
            for cp in (0, 2): p(f"v_pk_mul_f32 {pr(OU+4*i+cp)}, {pr(OU+4*i+cp)}, {pr(VF+4*i+cp)}")
        for c in range(4):
            p(f"v_cvt_pk_bf16_f32 v{216+2*c}, v{OU+c}, v{OU+4+c}\nv_cvt_pk_bf16_f32 v{217+2*c}, v{OU+8+c}, v{OU+12+c}")
    def e3_kvl_write(self):
        p = self.p
        p(f"v_and_b32 v224, 15, v0\nv_lshrrev_b32 v225, 5, v0\nv_xor_b32 v225, v225, v224\nv_lshlrev_b32 v225, 4, v225\nv_lshlrev_b32 v224, 10, v224\nv_add_u32 v224, v224, v225")
        p(f"v_bfe_u32 v225, v0, 4, 1\nv_lshlrev_b32 v225, 3, v225\nv_add_u32 v224, v224, v225\nv_add_u32 v224, {L_STG}, v224")
        for c in range(4): p(f"ds_write_b64 v224, {vr(216+2*c,2)} offset:{c*256}")
    def e3_store(self):
        t = []
        A = lambda s: t.extend(self.I(s))
        A(f"v_and_b32 v5, 255, v0\nv_and_b32 v6, 15, v5\nv_lshrrev_b32 v8, 4, v5")
        A(f"v_lshlrev_b32 v9, 12, v8\nv_lshlrev_b32 v10, 4, v6\nv_add_u32 v9, v9, v10")
        A(f"s_cmp_lt_u32 s2, 144\ns_cselect_b32 s{sTmp}, 0, {OOB:#x}\nv_add_u32 v9, s{sTmp}, v9")
        A(f"v_lshrrev_b32 v10, 6, v5\nv_lshlrev_b32 v8, 8, v8\nv_add_u32 v8, {L_STG}, v8")
        A(f"s_lshr_b32 s{sTmp}, s2, 4\ns_mul_i32 s{sTmp}, s{sTmp}, {64*4096}\ns_and_b32 s{sTmp2}, s2, 15\ns_lshl_b32 s{sTmp2}, s{sTmp2}, 8\ns_add_u32 s{sTmp}, s{sTmp}, s{sTmp2}\ns_add_u32 s{sTmp}, s{sTmp}, {WS_KVT}")
        for r in range(4):
            A(f"v_add_u32 v11, {4*r}, v10\nv_xor_b32 v11, v11, v6\nv_and_b32 v11, 15, v11\nv_lshlrev_b32 v11, 4, v11\nv_add_u32 v11, v11, v8")
            A(f"ds_read_b128 {vr(40+4*(r%2))}, v11 offset:{r*4096}")
            u = [Inst(f"buffer_store_dwordx4 {vr(40+4*(r%2))}, v9, {srd(S_WS)}, s{sTmp} offen sc1", tag="est2")]
            if r < 3: u += self.I(f"s_add_u32 s{sTmp}, s{sTmp}, {16*4096}")
            t.append(u)
        return t

    def signal(self, which, ra=52, rb=53):
        if which == S1: idx = f"s_lshl_b32 s{sTmp2}, s{sM}, 4\ns_add_u32 s{sTmp2}, s{sTmp2}, s{sJ}\ns_lshl_b32 s{sTmp2}, s{sTmp2}, 2"
        else: idx = f"s_lshl_b32 s{sTmp2}, s2, 2"
        return self.set_flag(idx + f"\ns_add_u32 s{sTmp2}, s{sTmp2}, {WS_FLAG + which}", "sig", ra, rb)
    def nonce_issue(self, reg):
        return self.I(f"v_mov_b32 v{reg}, 0") + [Inst(f"buffer_load_dword v{reg}, v{reg}, {srd(S_DBG)}, 0 offen sc1", tag="poll")]
    def nonce_check(self, reg):
        L = self.label("spin"); D = self.label("spind")
        out = self.I(f"v_readfirstlane_b32 s{sNonce}, v{reg}\ns_cmp_lg_u32 s{sNonce}, 0\ns_cbranch_scc1 {D}")
        out += self.I(f"s_mov_b32 s{sTmp2}, 0x20000")
        sp = [Inst(f"{L}:")]
        sp += self.I(f"s_sleep 4\nv_mov_b32 v{reg}, 0\nbuffer_load_dword v{reg}, v{reg}, {srd(S_DBG)}, 0 offen sc1\ns_waitcnt vmcnt(0)\nv_readfirstlane_b32 s{sNonce}, v{reg}\ns_sub_u32 s{sTmp2}, s{sTmp2}, 1\ns_cmp_eq_u32 s{sTmp2}, 0\ns_cbranch_scc1 {D}\ns_cmp_eq_u32 s{sNonce}, 0\ns_cbranch_scc1 {L}")
        for x in sp: x.opaque = True
        out += sp + [Inst(f"{D}:")]
        return out
    def fpoll_issue(self, addr_insts, ra, rv, tag="poll"):
        return self.I(addr_insts) + self.I(f"s_mov_b32 s{sTmp}, {WS_FLAG}") + [Inst(f"buffer_load_dword v{rv}, v{ra}, {srd(S_WS)}, s{sTmp} offen sc1", tag=tag)]
    def fpoll_check(self, ra, rv):
        L = self.label("spin"); D = self.label("spind")
        out = self.I(f"v_readfirstlane_b32 s{sTmp}, v{rv}\nv_cmp_ne_u32 vcc, s{sNonce}, v{rv}\ns_cmp_eq_u64 vcc, 0\ns_cbranch_scc1 {D}")
        out += self.I(f"s_mov_b32 s{sTmp2}, 0x20000\ns_mov_b32 s{sTmp}, {WS_FLAG}")
        sp = [Inst(f"{L}:")]
        sp += self.I(f"s_sleep 4\nbuffer_load_dword v{rv}, v{ra}, {srd(S_WS)}, s{sTmp} offen sc1\ns_waitcnt vmcnt(0)\nv_cmp_ne_u32 vcc, s{sNonce}, v{rv}\ns_nop 4\ns_sub_u32 s{sTmp2}, s{sTmp2}, 1\ns_cmp_eq_u32 s{sTmp2}, 0\ns_cbranch_scc1 {D}\ns_cmp_lg_u64 vcc, 0\ns_cbranch_scc1 {L}")
        for x in sp: x.opaque = True
        out += sp + [Inst(f"{D}:")]
        return out
    def s1_addr(self, ra):
        return (f"s_lshl_b32 s{sTmp2}, s{sM}, 4\nv_add_u32 v{ra}, s{sTmp2}, v{vN}\nv_lshlrev_b32 v{ra+1}, 4, v{vN}\nv_add_u32 v{ra+1}, s{sJ}, v{ra+1}\n"
                f"v_cmp_gt_u32 vcc, 16, v{vLane}\nv_cndmask_b32 v{ra}, v{ra+1}, v{ra}, vcc\nv_lshlrev_b32 v{ra}, 2, v{ra}\nv_add_u32 v{ra}, {S1}, v{ra}")
    def s2_addr(self, ra):
        return (f"s_mul_i32 s{sTmp2}, s{sCW}, 3\ns_add_u32 s{sTmp3}, s{sTmp2}, 2\ns_lshr_b32 s{sTmp2}, s{sTmp2}, 6\ns_lshr_b32 s{sTmp3}, s{sTmp3}, 6\n"
                f"s_lshl_b32 s{sTmp2}, s{sTmp2}, 4\ns_lshl_b32 s{sTmp3}, s{sTmp3}, 4\nv_add_u32 v{ra}, s{sTmp2}, v{vN}\nv_add_u32 v{ra+1}, s{sTmp3}, v{vN}\n"
                f"v_cmp_gt_u32 vcc, 16, v{vLane}\nv_cndmask_b32 v{ra}, v{ra+1}, v{ra}, vcc\nv_lshlrev_b32 v{ra}, 2, v{ra}\nv_add_u32 v{ra}, {S2}, v{ra}")

    def emit_step(self, mf, pre):
        p = self.p
        for i, m in enumerate(mf):
            for x in pre.get(i, []): p.add(x)
            p.add(m)
        for x in pre.get(len(mf), []): p.add(x)

    def slot_advance(self, regs, frm, to):
        d = ((to % 3) - (frm % 3)) * SLOT
        if d > 0: return [Inst(f"v_add_u32 v{r}, {d}, v{r}") for r in regs]
        return [Inst(f"v_subrev_u32 v{r}, {-d}, v{r}") for r in regs]

    G1_START = [0, 2, 4, 8, 12, 16, 20, 24, 28, 32]
    G1_READ = [-6, -4, -2, 2, 6, 10, 13, 16, 18, 20]
    BARSLOT = 28
    def frbuf(self, idx):
        fb = self.opt["frbuf"] or [FR0 + 4 * i for i in range(NFR)]
        return fb[idx % len(fb)]
    def g1_frag_reads(self, s, fi):
        buf = self.frbuf(s * 10 + fi)
        if fi < 2: base, off = vAS, fi * 18432
        else:
            a = (fi - 2) // 2; ten = (fi - 2) % 2
            base = vAE if a % 2 == 0 else vAO
            off = ten * 18432 + (a >> 1) * 64
        return [Inst(f"ds_read_b64_tr_b16 {vr(buf,2)}, v{base} offset:{off}"),
                Inst(f"ds_read_b64_tr_b16 {vr(buf+2,2)}, v{base} offset:{off + 2304}")]
    def g1_b_reads(self, s):
        return [Inst(f"ds_read_b128 {vr(BFR[s % 2] + 4*i)}, v{vB if i < 2 else vB2} offset:{(s % 3) * 8192 + i * 1024}") for i in range(4)]
    def g1_mfmas(self, s):
        out = []
        B = BFR[s % 2]
        for fi in range(10):
            buf = self.frbuf(s * 10 + fi)
            if fi < 2: lst = [(k, acc_sh(fi, k)) for k in range(2)]
            else:
                a = (fi - 2) // 2; ten = (fi - 2) % 2
                lst = [(i, acc_own(a, ten, i)) for i in range(4)]
            for (i, acc) in lst:
                c = "0" if s == 0 else vr(acc)
                out.append(Inst(f"v_mfma_f32_16x16x32_bf16 {vr(acc)}, {vr(buf)}, {vr(B + 4*i)}, {c}"))
        return out

    vC1, vC2, vONE = 40, 42, 62
    def gelu_pair(self, G, U, T):
        o = []
        pr = lambda r: f"v[{r}:{r+1}]"
        for i in (0, 2): o.append(f"v_pk_mul_f32 {pr(T+i)}, {pr(G+i)}, {pr(G+i)}")
        for i in (0, 2): o.append(f"v_pk_fma_f32 {pr(T+i)}, {pr(T+i)}, {pr(self.vC2)}, {pr(self.vC1)}")
        for i in (0, 2): o.append(f"v_pk_mul_f32 {pr(T+i)}, {pr(T+i)}, {pr(G+i)}")
        for i in range(4): o.append(f"v_exp_f32 v{T+i}, v{T+i}")
        for i in (0, 2): o.append(f"v_pk_mul_f32 {pr(U+i)}, {pr(G+i)}, {pr(U+i)}")
        for i in (0, 2): o.append(f"v_pk_add_f32 {pr(T+i)}, {pr(T+i)}, {pr(self.vONE)}")
        for i in range(4): o.append(f"v_rcp_f32 v{T+i}, v{T+i}")
        for i in (0, 2): o.append(f"v_pk_mul_f32 {pr(U+i)}, {pr(U+i)}, {pr(T+i)}")
        o.append(f"v_cvt_pk_bf16_f32 v{G}, v{U}, v{U+1}")
        o.append(f"v_cvt_pk_bf16_f32 v{G+1}, v{U+2}, v{U+3}")
        return [Inst(x) for x in o]

    def consts_loads(self):
        ld = []
        ld += self.I(f"s_lshl_b32 s{sTmp}, s{sM}, 7\ns_lshl_b32 s{sTmp2}, s{sT}, 6\ns_add_u32 s{sTmp}, s{sTmp}, s{sTmp2}\ns_lshl_b32 s{sTmp}, s{sTmp}, 4\ns_add_u32 s{sTmp}, s{sTmp}, {WS_ST}")
        ld += self.I(f"v_lshlrev_b32 v22, 4, v{vN}\ns_lshl_b32 s{sTmp3}, s{sE2}, 1")
        for i in range(4):
            ld += self.I(f"s_xor_b32 s{sTmp2}, s{sTmp3}, {i}\ns_lshl_b32 s{sTmp2}, s{sTmp2}, 8\ns_add_u32 s{sTmp2}, s{sTmp2}, s{sTmp}")
            ld.append(Inst(f"buffer_load_dwordx4 {vr(vK0+4*i)}, v22, {srd(S_WS)}, s{sTmp2} offen sc1", tag="kc"))
        return ld
    def g1(self):
        p = self.p
        p.waitvm("tile0"); p.waitvm("x0"); p.waitlg(); p("s_barrier")
        for i in self.g1_b_reads(0): p.add(i)
        G1R = self.opt["g1read"] or self.G1_READ
        npre = sum(1 for r in G1R if r < 0)
        for fi in range(npre):
            for i in self.g1_frag_reads(0, fi): p.add(i)
        self.stamp("g1start")
        p(f"s_cmp_ge_u32 s{sW}, 4\ns_cbranch_scc1 L_g1B")
        p.save()
        self.cls = "A"; self.g1_version("A")
        p("s_branch L_g1end")
        p("L_g1B:")
        p.restore()
        self.cls = "B"; self.g1_version("B")
        p("L_g1end:")
        self.cls = None

    def g1_version(self, cls):
        p = self.p
        G1R = self.opt["g1read"] or self.G1_READ
        BAR = self.opt["barslot"]
        npre = sum(1 for r in G1R if r < 0)
        plan = {s: [] for s in range(18)}
        g2s = self.g2_setup()
        if cls == "B":
            plan[0] += [u for u in ([self.pf_x(1), self.pf_x(2)] + [self.pf_tile(t) for t in range(3, self.PFD)]) if u]
        if cls == "A":
            plan[1] += g2s[:12]
            plan[2] += g2s[12:self.seg2]
            plan[3] += g2s[self.seg2:]
        else:
            plan[1] += g2s[:12]
            plan[2] += g2s[12:self.seg2]
            plan[3] += g2s[self.seg2:]
        if self.opt["prio"] and cls == "A": p("s_setprio 1")
        carry = []
        for s in range(18):
            pre = {}
            def put(slot, insts): pre.setdefault(slot, []).extend(insts)
            def spread(insts, lo, hi):
                insts = [x for x in insts if not (isinstance(x, list) and not x)]
                n = len(insts)
                for k, x in enumerate(insts): put(lo + (k * (hi - lo + 1)) // n, x if isinstance(x, list) else [x])
            for fi in range(npre, 10): put(G1R[fi], self.g1_frag_reads(s, fi))
            if carry: spread(carry, *self.opt["vmcarry"]); carry = []
            if plan[s]: spread(self.atomize(plan[s]), 1, 26)
            w = [Inst("WAITLG")]
            if s + 1 < 18 and cls == "A":
                for tg in (f"tile{s+1}", f"x{s+1}"):
                    wv = Inst("WAITVM"); wv.tag = tg; w.append(wv)
            w.append(Inst("s_barrier"))
            put(BAR, w)
            if s + 1 < 18:
                put(BAR, self.slot_advance([vAS, vAE, vAO], s, s + 1))
                br = self.g1_b_reads(s + 1)
                put(self.opt["breadslot"][0], br[:2]); put(self.opt["breadslot"][1], br[2:])
                for fi in range(npre): put(36 + G1R[fi], self.g1_frag_reads(s + 1, fi))
            vm = []
            if cls == "A":
                if s + 3 < 18: vm += self.dma_x(s + 3) + self.dma_tile(s + 3)
                elif s + 3 < 20: vm += self.dma_tileA(s + 3)
            else:
                if self.opt["ptouch"]:
                    u = []
                    if s == 0:
                        u += self.I(f"s_lshl_b32 s{sTmp}, s{sH}, 4\nv_add_u32 v35, s{sTmp}, v{vLane}\nv_lshlrev_b32 v35, 7, v35\nv_cmp_gt_u32 vcc, 16, v{vLane}\nv_cndmask_b32 v35, v{vOOB}, v35, vcc\ns_mul_i32 s{sCS}, s2, 147456\ns_add_u32 s{sCS}, s{sCS}, {WS_P}")
                    u += [self.nodef(f"buffer_load_dword v{vDum}, v35, {srd(S_WS)}, s{sCS} offen", "pf")] + self.I(f"s_add_u32 s{sCS}, s{sCS}, 8192")
                    vm.append(u)
                if s + self.PFD < 18: vm.append(self.pf_tile(s + self.PFD))
                if s in (9, 10): vm.append(self.pf_tile(s + 9))
                if s % 2 == 0 and self.pf_x(s // 2 + 3): vm.append(self.pf_x(s // 2 + 3))
                vm = [u for u in vm if u]
            if vm:
                nfirst = min(3, len(vm))
                spread(vm[:nfirst], *self.opt["vmfirst"]); carry = vm[nfirst:]
            put(0, self.stamp_i(f"st{s}"))
            self.emit_step(self.g1_mfmas(s), pre)
        self.add_units(carry)
        if self.opt["prio"] and cls == "A": p("s_setprio 0")

    def atomize(self, insts):
        out = []; i = 0
        while i < len(insts):
            x = insts[i]
            if isinstance(x, list):
                out.append(x); i += 1; continue
            if x.op.startswith("v_readfirstlane") and any((not isinstance(y, list)) and y.kind == "branch" for y in insts[i+1:i+5]):
                j = i
                while not (insts[j].kind == "label" and insts[j].text.startswith("L_spind")): j += 1
                out.append(insts[i:j+1]); i = j + 1; continue
            if x.op.startswith("s_cmp") or (x.op == "s_add_u32" and i + 1 < len(insts) and not isinstance(insts[i+1], list) and insts[i+1].op == "s_addc_u32"):
                j = i + 1
                while j < len(insts) and not isinstance(insts[j], list) and (insts[j].op.startswith("s_cselect") or insts[j].op.startswith("s_addc") or insts[j].kind == "branch"): j += 1
                out.append(insts[i:j]); i = j; continue
            out.append(x); i += 1
        return out

    def cs_ld0(self):
        ld = self.I(f"v_lshlrev_b32 v23, 3, v0\nv_cmp_gt_u32 vcc, 288, v0\nv_cndmask_b32 v23, v{vOOB}, v23, vcc")
        ld += self.I(f"s_mul_i32 s{sCS}, s{sJ}, {16*2304}\ns_add_u32 s{sCS}, s{sCS}, {WS_CSP}")
        for mm in range(8):
            ld.append(Inst(f"buffer_load_dwordx2 {vr(40+2*mm,2)}, v23, {srd(S_WS)}, s{sCS} offen sc1", tag="cs"))
            ld += self.I(f"s_add_u32 s{sCS}, s{sCS}, 2304")
        return ld
    def cs_ld1(self):
        t = []
        for mm in range(1, 8): t += self.I(f"v_add_f32 v40, v40, v{40+2*mm}\nv_add_f32 v41, v41, v{41+2*mm}")
        for mm in range(7):
            t.append(Inst(f"buffer_load_dwordx2 {vr(42+2*mm,2)}, v23, {srd(S_WS)}, s{sCS} offen sc1", tag="cs"))
            t += self.I(f"s_add_u32 s{sCS}, s{sCS}, 2304")
        t.append(Inst(f"buffer_load_dword v21, v23, {srd(S_WS)}, s{sCS} offen sc1", tag="cs"))
        t.append(Inst(f"buffer_load_dword v22, v23, {srd(S_WS)}, s{sCS} offen offset:4 sc1", tag="cs"))
        return t
    vCSa, vCSs = 22, 23
    def cs_sum(self):
        t = []
        for mm in range(7): t += self.I(f"v_add_f32 v40, v40, v{42+2*mm}\nv_add_f32 v41, v41, v{43+2*mm}")
        t += self.I(f"v_add_f32 v40, v40, v21\nv_add_f32 v41, v41, v22")
        t += self.I(f"v_lshlrev_b32 v42, 3, v0\nv_add_u32 v42, {L_CS}, v42\nv_lshlrev_b32 v43, 3, v{vLane}\nv_add_u32 v43, {L_DUMMY}, v43\nv_cmp_gt_u32 vcc, 288, v0\nv_cndmask_b32 v42, v43, v42, vcc")
        t += self.I(f"ds_write_b64 v42, v[40:41]")
        t += self.I(f"v_lshlrev_b32 v43, 4, v{vQ}\ns_lshl_b32 s{sTmp}, s{sH}, 8\ns_add_u32 s{sTmp}, s{sTmp}, {L_CS}\nv_add_u32 v{self.vCSa}, s{sTmp}, v43")
        t += self.I(f"s_lshr_b32 s{sTmp}, s{sH}, 1\ns_lshl_b32 s{sTmp}, s{sTmp}, 6\ns_add_u32 s{sTmp}, s{sTmp}, {L_CS + 1024}\nv_add_u32 v{self.vCSs}, s{sTmp}, v43")
        return t

    def gelu_tail(self):
        p = self.p
        self.add_units(self.e3_loads())
        self.add_units(self.atomize(self.conv_h_loads()))
        tl = []
        for t_ in range(20, 27): tl += self.pf_tile(t_)
        for x in self.onlyB(tl): p.add(x)
        if self.opt.get("cpf", True):
            blk = self.I(f"s_cmp_lg_u32 s{sW}, 5\ns_cbranch_scc1 L_cpf1") + self.code_prefetch(12, 40) + [Inst("L_cpf1:")]
            for x in blk: x.opaque = True; p.add(x)
        HR = 54
        HW = [56, 57, 58, 59]
        HWS = 60
        p(f"v_bfe_u32 v40, v{vN}, 1, 2")
        p(f"s_lshl_b32 s{sTmp}, s{sT}, 6\nv_add_u32 v41, s{sTmp}, v{vN}\nv_mul_u32_u24 v41, 576, v41")
        p(f"v_xor_b32 v42, v{vQ}, v40\nv_lshlrev_b32 v42, 4, v42\nv_add_u32 v{HR}, v41, v42\nv_add_u32 v{HR}, {L_H}, v{HR}")
        p(f"v_and_b32 v42, 1, v{vQ}\nv_lshlrev_b32 v42, 3, v42\nv_add_u32 v41, v41, v42\nv_add_u32 v41, {L_H}, v41")
        p(f"v_lshrrev_b32 v42, 1, v{vQ}")
        p(f"s_lshl_b32 s{sTmp}, s{sH}, 7\ns_mul_i32 s{sTmp2}, s{sE2}, {2*9216}")
        p(f"v_xor_b32 v43, v42, v40\nv_lshlrev_b32 v43, 4, v43\nv_add_u32 v43, v41, v43\nv_add_u32 v43, s{sTmp}, v43")
        p(f"v_add_u32 v{HW[0]}, s{sTmp2}, v43\nv_subrev_u32 v{HW[1]}, s{sTmp2}, v43")
        p(f"v_add_u32 v43, 2, v42\nv_xor_b32 v43, v43, v40\nv_lshlrev_b32 v43, 4, v43\nv_add_u32 v43, v41, v43\nv_add_u32 v43, s{sTmp}, v43")
        p(f"v_add_u32 v{HW[2]}, s{sTmp2}, v43\nv_subrev_u32 v{HW[3]}, s{sTmp2}, v43")
        p(f"s_lshr_b32 s{sTmp}, s{sH}, 1\ns_lshl_b32 s{sTmp}, s{sTmp}, 1")
        p(f"v_add_u32 v43, s{sTmp}, v42\nv_xor_b32 v43, v43, v40\nv_lshlrev_b32 v43, 4, v43\nv_add_u32 v43, v41, v43")
        p(f"s_add_u32 s{sTmp2}, s{sTmp2}, 512\nv_add_u32 v{HWS}, s{sTmp2}, v43")
        c1 = -2.0 * math.sqrt(2.0 / math.pi) * math.log2(math.e)
        p(f"v_mov_b32 v{self.vC1}, {f2u(c1):#x}\nv_mov_b32 v{self.vC1+1}, {f2u(c1):#x}\nv_mov_b32 v{self.vC2}, {f2u(c1 * 0.044715):#x}\nv_mov_b32 v{self.vC2+1}, {f2u(c1 * 0.044715):#x}")
        p(f"v_mov_b32 v{self.vONE}, 1.0\nv_mov_b32 v{self.vONE+1}, 1.0")
        Ts = [44, 48, 64, 68]
        jobs = []
        for kk in range(2):
            jobs.append((acc_sh(0, kk), acc_sh(1, kk), HWS, kk * 9216))
        for a in range(4):
            for i in range(4):
                base = (HW[0] if i < 2 else HW[1]) if a % 2 == 0 else (HW[2] if i < 2 else HW[3])
                jobs.append((acc_own(a, 0, i), acc_own(a, 1, i), base, i * 9216 + (a >> 1) * 64))
        for k in range(0, 18, 2):
            s0 = self.gelu_pair(jobs[k][0], jobs[k][1], Ts[(k // 2 % 2) * 2]); s1 = self.gelu_pair(jobs[k+1][0], jobs[k+1][1], Ts[(k // 2 % 2) * 2 + 1])
            pos = 0
            for ln in (2, 2, 2, 4, 2, 2, 4, 2, 2):
                for x in s0[pos:pos+ln] + s1[pos:pos+ln]: p.add(x)
                pos += ln
            for jb in (jobs[k], jobs[k+1]):
                p(f"ds_write_b64 v{jb[2]}, {vr(jb[0],2)} offset:{jb[3]}")
        self.stamp("gelu")
        self.e3_compute()
        self.e3_kvl_write()
        p.waitlg(); p.waitvm("tile18"); p.waitvm("tile19"); p("s_barrier")
        self.HR = HR

    G2_READ = [-6, -2, 2, 6, 10, 13, 16, 18, 20]
    def g2_frag_reads(self, c, s):
        buf = FR0 + 4 * ((c * 9 + s) % NFR)
        return [Inst(f"ds_read_b64_tr_b16 {vr(buf,2)}, v{vA2} offset:{s * 4096}"),
                Inst(f"ds_read_b64_tr_b16 {vr(buf+2,2)}, v{vA2} offset:{s * 4096 + 512}")]
    def h_reads(self, s):
        return [Inst(f"ds_read_b128 {vr(ACC + 4*(tt*9+s))}, v{self.HR} offset:{tt * 9216 + s * 64}") for tt in range(4)]
    def g2_mfmas(self, c):
        out = []
        A2 = BFR[c % 2]
        for s in range(9):
            buf = FR0 + 4 * ((c * 9 + s) % NFR)
            for tt in range(4):
                acc = A2 + 4 * tt
                cc = "0" if s == 0 else vr(acc)
                out.append(Inst(f"v_mfma_f32_16x16x32_bf16 {vr(acc)}, {vr(buf)}, {vr(ACC + 4*(tt*9+s))}, {cc}"))
        return out
    def g2_epilogue(self, c):
        A2 = BFR[c % 2]; T = TMP
        o = []
        for tt in range(4):
            o.append(Inst(f"v_cvt_pk_bf16_f32 v{T+2*tt}, v{A2+4*tt}, v{A2+4*tt+1}"))
            o.append(Inst(f"v_cvt_pk_bf16_f32 v{T+2*tt+1}, v{A2+4*tt+2}, v{A2+4*tt+3}"))
        for pr in range(2):
            o.append(Inst(f"v_permlane16_swap_b32 v{T+4*pr}, v{T+4*pr+2}"))
            o.append(Inst(f"v_permlane16_swap_b32 v{T+4*pr+1}, v{T+4*pr+3}"))
        st = []
        for pr in range(2):
            u = [Inst(f"s_add_u32 s{sEP}, s{sPoff}, {c * 16384 + pr * 4 * self.JJ}")]
            if not self.opt["nostore"]:
                u.append(Inst(f"buffer_store_dwordx4 {vr(T+4*pr)}, v{vP0}, {srd(S_WS)}, s{sEP} offen {self.opt['stflags']}", tag=f"pst{c}"))
            st.append(u)
        return o, st
    def set_flag(self, addr_insts, tag, ra=48, rb=49):
        return self.I(addr_insts) + self.I(f"v_cmp_eq_u32 vcc, 0, v0\nv_cndmask_b32 v{ra}, v{vOOB}, v0, vcc\nv_mov_b32 v{rb}, s{sNonce}") + \
               [Inst(f"buffer_store_dword v{rb}, v{ra}, {srd(S_WS)}, s{sTmp2} offen sc1", tag=tag)]
    def flag_addr(self, which):
        return f"s_lshl_b32 s{sTmp2}, s{sM}, 7\ns_lshl_b32 s{sTmp3}, s{sJ}, 2\ns_add_u32 s{sTmp2}, s{sTmp2}, s{sTmp3}\ns_add_u32 s{sTmp2}, s{sTmp2}, {WS_FLAG + which}"

    def conv_h_loads(self):
        t = []
        A = lambda s: t.extend(self.I(s))
        A(f"s_min_u32 s{sCW}, s2, 191")
        A(f"v_and_b32 v21, 255, v0\nv_lshlrev_b32 v21, 4, v21\nv_subrev_u32 v22, 16, v21")
        k = sKA + 32 // 4
        for (r, chx) in ((0, f"s_mul_i32 s{sTmp}, s{sCW}, 3\ns_add_u32 s{sTmp}, s{sTmp}, s{sT}"), (1, f"s_mul_i32 s{sTmp}, s{sCW}, 3\ns_add_u32 s{sTmp}, s{sTmp}, 2")):
            u = self.I(chx) + self.I(f"s_lshl_b32 s{sTmp}, s{sTmp}, 12\ns_add_u32 s{S_T0}, s{k}, s{sTmp}\ns_addc_u32 s{S_T0+1}, s{k+1}, 0\ns_and_b32 s{S_T0+1}, s{S_T0+1}, 0xffff\ns_mov_b32 s{S_T0+2}, 4096\ns_mov_b32 s{S_T0+3}, 0x20000")
            u.append(Inst(f"buffer_load_dwordx4 {vr(24+8*r)}, v22, {srd(S_T0)}, 0 offen", tag="cvin"))
            u.append(Inst(f"buffer_load_dwordx4 {vr(28+8*r)}, v21, {srd(S_T0)}, 0 offen", tag="cvin"))
            t.append(u)
        k = sKA + 40 // 4
        u = self.I(f"s_mov_b32 s{S_T0}, s{k}\ns_and_b32 s{S_T0+1}, s{k+1}, 0xffff\ns_mov_b32 s{S_T0+2}, 1152\ns_mov_b32 s{S_T0+3}, 0x20000\ns_mul_i32 s{sTmp}, s{sCW}, 6\nv_mov_b32 v21, 0")
        u.append(Inst(f"buffer_load_ushort v22, v21, {srd(S_T0)}, s{sTmp} offen offset:2", tag="cvin"))
        u.append(Inst(f"buffer_load_ushort v23, v21, {srd(S_T0)}, s{sTmp} offen offset:4", tag="cvin"))
        u.append(Inst(f"buffer_load_ushort v21, v21, {srd(S_T0)}, s{sTmp} offen", tag="cvin"))
        t.append(u)
        return t
    def conv_kv_loads(self):
        t = []
        A = lambda s: t.extend(self.I(s))
        A(f"s_mul_i32 s{sTmp}, s{sCW}, {3*4096}\ns_add_u32 s{sTmp}, s{sTmp}, {WS_KVT}")
        A(f"v_lshlrev_b32 v5, 4, v0\nv_add_u32 v6, 8192, v5\nv_cmp_gt_u32 vcc, 256, v0\nv_cndmask_b32 v6, v{vOOB}, v6, vcc")
        t.append(Inst(f"buffer_load_dwordx4 v[48:51], v5, {srd(S_WS)}, s{sTmp} offen sc1", tag="cvin"))
        t.append(Inst(f"buffer_load_dwordx4 v[52:55], v6, {srd(S_WS)}, s{sTmp} offen sc1", tag="cvin"))
        return t
    def conv_build(self, S, dst, R0=6, R1=None):
        t = []
        bufs = [R0, R1 if R1 is not None else R0]
        k = 0
        for kind in range(4):
            R = bufs[k % 2]; k += 1
            for i in range(6):
                if kind == 0: t += self.I(f"v_alignbit_b32 v{R+i}, v{S+7-i}, v{S+7-i}, 16")
                elif kind == 1: t += self.I(f"v_alignbit_b32 v{R+i}, v{S+6-i}, v{S+6-i}, 16")
                elif kind == 2: t += self.I(f"v_bfi_b32 v{R+i}, s{sMask}, v{S+7-i}, v{S+6-i}")
                else: t += self.I(f"v_bfi_b32 v{R+i}, s{sMask}, v{S+6-i}, v{S+5-i}")
            sgs = [(0, 4), (2, 6), (1, 5), (3, 7)][kind]
            t += self.I(f"ds_write_b128 v{dst}, {vr(R)} offset:{sgs[0]*4160}\nds_write_b128 v{dst}, {vr(R+2)} offset:{sgs[1]*4160}")
        return t
    vMASK, vTCW, vU16 = 18 + 0, 5, 19 + 0
    def conv_setup_tc(self, S=24, region=None):
        region = C_TCA if region is None else region
        t = self.I(f"s_mov_b32 s{sMask}, 0xffff\nv_and_b32 v6, 255, v0\nv_lshlrev_b32 v6, 4, v6\ns_mov_b32 s{sTmp}, {region + 16*257}\nv_sub_u32 v5, s{sTmp}, v6")
        t += self.conv_build(S, 5, 6, None)
        return t
    def conv_setup_kp(self):
        t = []
        A = lambda s: t.extend(self.I(s))
        A(f"v_mov_b32 v6, 0\nv_mov_b32 v7, 0\nv_mov_b32 v8, 0\nv_mov_b32 v9, 0")
        A(f"v_lshlrev_b32 v12, 4, v{vLane}\nv_add_u32 v12, {C_DUM}, v12")
        A(f"v_lshrrev_b32 v10, 5, v0\nv_mul_u32_u24 v10, 4608, v10\nv_and_b32 v11, 31, v0\nv_lshlrev_b32 v11, 4, v11\nv_add_u32 v10, v10, v11\nv_add_u32 v10, {C_KP}, v10")
        A(f"v_cmp_gt_u32 vcc, 96, v0\nv_cndmask_b32 v10, v12, v10, vcc\nds_write_b128 v10, v[6:9]")
        A(f"v_and_b32 v10, 7, v0\nv_mul_u32_u24 v10, 4160, v10\nv_add_u32 v10, {16*258 + C_TCA}, v10\nv_cmp_gt_u32 vcc, 8, v0\nv_cndmask_b32 v10, v12, v10, vcc\nds_write_b128 v10, v[6:9]")
        A(f"v_lshlrev_b32 v11, 4, v0\nv_lshrrev_b32 v10, 8, v0\nv_lshlrev_b32 v10, 9, v10\nv_add_u32 v10, v10, v11\nv_add_u32 v10, {C_KP + 512}, v10\nds_write_b128 v10, v[48:51]")
        A(f"v_add_u32 v10, {C_KP + 512 + 8192 + 1024}, v11\nv_cmp_gt_u32 vcc, 256, v0\nv_cndmask_b32 v10, v12, v10, vcc\nds_write_b128 v10, v[52:55]")
        return t
    def conv_addrs(self):
        vT, vK, vYW, vYR, vZ, vKV = 50, 51, 52, 53, 54, 55
        t = []
        A = lambda s: t.extend(self.I(s))
        A(f"v_and_b32 v10, 7, v{vN}\nv_sub_u32 v10, 7, v10\nv_mul_u32_u24 v10, 4160, v10\nv_lshrrev_b32 v11, 3, v{vN}\nv_sub_u32 v11, v{vQ}, v11\nv_add_u32 v11, 255, v11\nv_lshlrev_b32 v11, 4, v11\nv_add_u32 v10, v10, v11")
        A(f"s_lshl_b32 s{sTmp}, s{sW}, 6\ns_add_u32 s{sTmp}, s{sTmp}, 3584\nv_subrev_u32 v10, s{sTmp}, v10\nv_add_u32 v{vT}, {C_TCA}, v10\nv_add_u32 v49, {C_TCB}, v10")
        A(f"v_lshlrev_b32 v10, 5, v{vN}\nv_lshlrev_b32 v11, 4, v{vQ}\nv_add_u32 v10, v10, v11\nv_add_u32 v10, {480 + C_KP}, v10\ns_lshl_b32 s{sTmp}, s{sW}, 6\nv_subrev_u32 v{vK}, s{sTmp}, v10")
        A(f"v_lshlrev_b32 v{vYW}, 3, v{vLane}\ns_lshl_b32 s{sTmp}, s{sW}, 9\nv_add_u32 v{vYW}, s{sTmp}, v{vYW}\nv_add_u32 v{vYW}, {C_YRA}, v{vYW}")
        A(f"v_lshlrev_b32 v{vYR}, 3, v{vLane}\ns_lshl_b32 s{sTmp}, s{sH}, 12\nv_add_u32 v{vYR}, s{sTmp}, v{vYR}\nv_add_u32 v{vYR}, {C_YRA}, v{vYR}")
        A(f"v_lshlrev_b32 v{vZ}, 5, v{vN}\nv_lshlrev_b32 v{vKV}, 3, v{vQ}\nv_add_u32 v{vZ}, v{vZ}, v{vKV}\ns_lshl_b32 s{sTmp}, s{sH}, 9\nv_add_u32 v{vZ}, s{sTmp}, v{vZ}")
        A(f"v_add_u32 v{vKV}, {C_KP + 512}, v{vZ}")
        return t

    def dma_tileA(self, tile):
        base = ((tile - 18) % 3) * SLOT
        c = tile - 18
        out = []
        for a in range(9):
            out.append([Inst(f"s_add_u32 m0, s{sW1024}, {base + a * 4096}"),
                        Inst(f"s_mov_b32 s{sKoff}, {a * 36864 + c * 128}"),
                        Inst(f"buffer_load_dwordx4 v{vD0}, {srd(S_WD)}, s{sKoff} offen lds", tag=f"tile{tile}")])
        return out

    def partner_stores(self, c):
        vST = 4
        rd = [Inst(f"ds_read_b128 {vr(TMP)}, v{vST} offset:{(c % 2) * 8192}"), Inst(f"ds_read_b128 {vr(TMP+4)}, v{vST} offset:{(c % 2) * 8192 + 1024}")]
        st = []
        for pr in range(2):
            u = [Inst(f"s_add_u32 s{sEP}, s{sPoff}, {(c * 16384 + pr * 4 * self.JJ - 8 * self.JJ) & 0xffffffff}")]
            if not self.opt["nostore"]:
                u.append(Inst(f"buffer_store_dwordx4 {vr(TMP+4*pr)}, v{vP0}, {srd(S_WS)}, s{sEP} offen {self.opt['stflags']}", tag=f"pst{c}"))
            st.append(u)
        return rd, st
    def g2_version(self, cls):
        p = self.p
        carry = []
        if self.opt["prio2"] == cls: p("s_setprio 1")
        vST = 4
        p(f"v_lshlrev_b32 v{vST}, 4, v{vLane}\ns_lshl_b32 s{sTmp}, s{sH}, 11\ns_add_u32 s{sTmp}, s{sTmp}, {L_STG}\nv_add_u32 v{vST}, s{sTmp}, v{vST}")
        def partner_stores(c):
            return self.partner_stores(c)
        def _unused(c):
            rd = [Inst(f"ds_read_b128 {vr(TMP)}, v{vST} offset:{(c % 2) * 8192}"), Inst(f"ds_read_b128 {vr(TMP+4)}, v{vST} offset:{(c % 2) * 8192 + 1024}")]
            st = []
            for pr in range(2):
                u = [Inst(f"s_add_u32 s{sEP}, s{sPoff}, {(c * 16384 + pr * 4 * self.JJ - 8 * self.JJ) & 0xffffffff}")]
                if not self.opt["nostore"]:
                    u.append(Inst(f"buffer_store_dwordx4 {vr(TMP+4*pr)}, v{vP0}, {srd(S_WS)}, s{sEP} offen {self.opt['stflags']}", tag=f"pst{c}"))
                st.append(u)
            return rd, st
        for c in range(9):
            T = 18 + c
            pre = {}
            def put(slot, insts): pre.setdefault(slot, []).extend(insts)
            def spread(insts, lo, hi):
                n = len(insts)
                for k, x in enumerate(insts): put(lo + (k * (hi - lo + 1)) // n, x if isinstance(x, list) else [x])
            for s in range(2, 9):
                if c == 0: put(max(self.G2_READ[s] - 2, 0), self.h_reads(s))
                put(self.G2_READ[s], self.g2_frag_reads(c, s))
            if carry: spread(carry, 1, 26); carry = []
            if c > 0 and not self.opt["noepi"]:
                ev, st = self.g2_epilogue(c - 1)
                if self.opt["epimode"] == 1: ev = ev[:8]
                spread(ev, *self.opt["epislots"])
                if self.opt["epimode"] < 3: pass
                elif cls == "A":
                    put(self.opt["stgslot"], [Inst(f"ds_write_b128 v{vST}, {vr(TMP)} offset:{((c-1) % 2) * 8192}"), Inst(f"ds_write_b128 v{vST}, {vr(TMP+4)} offset:{((c-1) % 2) * 8192 + 1024}")])
                else:
                    put(self.opt['own'][0], st[0]); put(self.opt['own'][1], st[1])
            if cls == "B" and c > 1 and not self.opt["noepi"] and self.opt["epimode"] == 3:
                rd, st2 = partner_stores(c - 2)
                put(self.opt["prd"], rd)
                if self.opt["dropst"] < 2: put(self.opt["pst"][0], st2[0])
                if self.opt["dropst"] < 1: put(self.opt["pst"][1], st2[1])
            if not self.opt["g2bare"]:
                if cls == "B" and c == 0: spread(self.atomize(self.e3_store()), 1, 26)
                if c == 3 and cls == "B": put(2, self.signal(S2, 7, 8) if False else [])
                if c == 2: put(29, self.signal(S2, 7, 8))
                if c == 5: put(27, self.fpoll_issue(self.s2_addr(12), 12, 14))
                if c == 6: spread([self.fpoll_check(12, 14)] + self.atomize(self.conv_kv_loads()), 1, 26)
                if cls == "A" and c == 3: spread(self.atomize(self.conv_setup_tc()), 1, 26)
                if c == 8: spread(self.atomize(self.conv_setup_kp() + self.conv_addrs()), 1, 35)
            w = [Inst("WAITLG")]
            if cls == "A" and c + 1 < 9:
                wv = Inst("WAITVM"); wv.tag = f"tile{T+1}"; w.append(wv)
            if cls == "B" and c == 7:
                wv = Inst("WAITVM"); wv.tag = "pst3"; w.append(wv)
            if cls == "B" and c == 2:
                wv = Inst("WAITVM"); wv.tag = "est2"; w.append(wv)
            w.append(Inst("s_barrier"))
            put(self.BARSLOT, w)
            if c == 7: put(29, self.set_flag(self.flag_addr(FA), "fa", 7, 8))
            if c + 1 < 9:
                put(self.BARSLOT, self.slot_advance([vA2], T, T + 1))
                put(30, self.g2_frag_reads(c + 1, 0)); put(34, self.g2_frag_reads(c + 1, 1))
                vm = []
                if cls == "A" and not self.opt["g2nodma"]:
                    if c == 0: vm += self.dma_tileA(20)
                    if c + 3 < 9: vm += self.dma_tileA(T + 3)
                if vm:
                    nf = 3 if c == 0 else 2
                    spread(vm[:nf], 30, 35); carry = vm[nf:]
            put(0, self.stamp_i(f"c{c}"))
            self.emit_step(self.g2_mfmas(c), pre)
        ev, st = self.g2_epilogue(8)
        if cls == "B":
            rd, st2 = partner_stores(7)
            for i in rd: p.add(i)
            self.add_units(st2)
        for i in ev: p.add(i)
        if cls == "A":
            p(f"ds_write_b128 v{vST}, {vr(TMP)} offset:0\nds_write_b128 v{vST}, {vr(TMP+4)} offset:1024")
        else:
            self.add_units(st)
        p.waitlg()
        if self.opt["prio2"] == cls: p("s_setprio 0")

    def g2(self):
        p = self.p
        for s in range(2):
            for i in self.h_reads(s): p.add(i)
        for s in range(2):
            for i in self.g2_frag_reads(0, s): p.add(i)
        self.stamp("g2start")
        p.drain()
        p(f"s_cmp_ge_u32 s{sW}, 4\ns_cbranch_scc1 L_g2B")
        p.save()
        self.g2_version("A")
        p("s_branch L_g2end")
        p("L_g2B:")
        p.restore()
        self.g2_version("B")
        p("L_g2end:")
        self.stamp("g2end")

    def spin_flags(self, voffs, soff_sreg, vals, opaque=False):
        L = self.label("fl"); D = self.label("fld")
        t = self.I(f"s_mov_b32 s{sTmp4}, 0x20000") + [Inst(f"{L}:")]
        for (vo, r) in zip(voffs, vals):
            t += self.I(f"buffer_load_dword v{r}, v{vo}, {srd(S_WS)}, s{soff_sreg} offen sc1")
        t += self.I("s_waitcnt vmcnt(0)")
        t += self.I(f"v_xor_b32 v{vals[0]}, s{sNonce}, v{vals[0]}")
        for r in vals[1:]: t += self.I(f"v_xor_b32 v{r}, s{sNonce}, v{r}\nv_or_b32 v{vals[0]}, v{vals[0]}, v{r}")
        t += self.I(f"v_cmp_ne_u32 vcc, 0, v{vals[0]}\ns_nop 4\ns_sub_u32 s{sTmp4}, s{sTmp4}, 1\ns_cmp_eq_u32 s{sTmp4}, 0\ns_cbranch_scc1 {D}")
        t += self.I(f"s_cmp_eq_u64 vcc, 0\ns_cbranch_scc1 {D}\ns_sleep {self.opt.get('slp', 2)}\ns_branch {L}") + [Inst(f"{D}:")]
        return t

    PL = 112
    def pl_setup(self):
        if self.opt["cons"]:
            return self.I(f"s_lshl_b32 s{sPL}, s{sM}, 4\ns_add_u32 s{sPL}, s{sPL}, s{sJ}\ns_mul_i32 s{sPL}, s{sPL}, 147456\ns_lshl_b32 s{sTmp3}, s{sW}, 14\ns_add_u32 s{sPL}, s{sPL}, s{sTmp3}\ns_add_u32 s{sPL}, s{sPL}, {WS_P}\nv_lshlrev_b32 v18, 4, v{vLane}")
        return self.I(f"s_mul_i32 s{sPL}, s{sM}, {16*147456}\ns_lshl_b32 s{sTmp2}, s{sJ}, 10\ns_add_u32 s{sPL}, s{sPL}, s{sTmp2}\ns_lshl_b32 s{sTmp3}, s{sW}, 14\ns_add_u32 s{sPL}, s{sPL}, s{sTmp3}\ns_add_u32 s{sPL}, s{sPL}, {WS_P}\nv_lshlrev_b32 v18, 4, v{vLane}")
    def pl_site(self, b, cls):
        L = self.label("pl")
        t = self.I(f"s_cmp_eq_u32 s{sSite}, {1 if cls == 'A' else 2}\ns_cbranch_scc0 {L}\nbuffer_load_dwordx4 {vr(self.PL+4*b)}, v18, {srd(S_WS)}, s{sPL} offen sc1\ns_add_u32 s{sPL}, s{sPL}, {self.BJ}") + [Inst(f"{L}:")]
        for x in t: x.opaque = True
        return t
    def interleave(self, base, sites):
        out = []; n = len(base); m = len(sites); k = 0
        for i, x in enumerate(base):
            out.append(x)
            while k < m and (i + 1) * (m + 1) >= (k + 1) * n and not x.op.startswith("v_cmp") and not x.op.startswith("s_cmp"):
                out += sites[k]; k += 1
        while k < m: out += sites[k]; k += 1
        return out

    def conv(self):
        p = self.p
        for i in self.pl_setup(): p.add(i)
        p("s_cmp_ge_u32 s2, 192\ns_cbranch_scc1 L_noconv")
        p(f"s_cmp_ge_u32 s{sW}, 4\ns_cbranch_scc1 L_cvB")
        p.save()
        self.conv_version("A")
        p("s_branch L_convdone")
        p("L_cvB:")
        p.restore()
        self.conv_version("B")
        p("s_branch L_convdone")
        p("L_noconv:")
        p.restore()
        p(f"s_mov_b32 s{sSite}, 0")
        p.waitlg(); p("s_barrier")
        rd_, st2 = self.partner_stores(8)
        blk = self.I(f"s_cmp_lt_u32 s{sW}, 4\ns_cbranch_scc1 L_ncA") + rd_ + self.I("s_waitcnt lgkmcnt(0)")
        for u in st2: blk += u
        blk += [Inst("L_ncA:")]
        for x in blk: x.opaque = True; p.add(x)
        self.xload()
        p("s_waitcnt vmcnt(0)"); p.waitlg(); p("s_barrier")
        for i in self.set_flag(self.flag_addr(FC), "fc", 44, 45): i.opaque = True; p.add(i)
        p("L_convdone:")
        self.stamp("convend")

    def xload(self):
        p = self.p; XF = 240
        t = self.I(f"s_lshl_b32 s{sTmp}, s{sM}, 7\ns_lshl_b32 s{sTmp2}, s{sJ}, 3\ns_add_u32 s{sTmp}, s{sTmp}, s{sTmp2}")
        t += self.I(f"v_and_b32 v41, 7, v{vLane}\nv_add_u32 v41, s{sTmp}, v41")
        t += self.I(f"v_mul_u32_u24 v15, 1152, v41\nv_lshrrev_b32 v43, 3, v{vLane}\nv_lshlrev_b32 v43, 4, v43\nv_add_u32 v15, v15, v43")
        k0 = sKA
        t += self.I(f"s_mov_b32 s{S_T0}, s{k0}\ns_and_b32 s{S_T0+1}, s{k0+1}, 0xffff\ns_mov_b32 s{S_T0+2}, 2359296\ns_mov_b32 s{S_T0+3}, 0x20000")
        t += self.I(f"s_lshl_b32 s{sTmp2}, s{sW}, 7\nbuffer_load_dwordx4 {vr(XF)}, v15, {srd(S_T0)}, s{sTmp2} offen\nbuffer_load_dwordx4 {vr(XF+4)}, v15, {srd(S_T0)}, 0 offen offset:1024")
        t += self.I(f"buffer_load_dwordx4 {vr(XF+8)}, v15, {srd(S_X)}, s{sTmp2} offen sc1\nbuffer_load_dwordx4 {vr(XF+12)}, v15, {srd(S_X)}, 0 offen offset:1024 sc1")
        for x in t: x.opaque = True; p.add(x)

    def conv_version(self, cls):
        p = self.p
        TF, BF, Y = 176, 208, 80
        vT, vK, vYW, vYR, vZ, vKV = 50, 51, 52, 53, 54, 55
        p(f"s_mov_b32 s{sSite}, 0")
        def mfma_ch(c, tc):
            rd = []
            for i in range(8):
                rd += self.I(f"ds_read_b128 {vr(TF+4*i)}, v{vT if tc == C_TCA else 49} offset:{512*(7-i)}\nds_read_b128 {vr(BF+4*i)}, v{vK} offset:{c*4608 + 512*i}")
            first = set(); mf = []
            pairs = sorted([(i, g_ - i, g_) for g_ in range(8) for i in range(g_ + 1)], key=lambda z: (max(z[0], z[1]), z[2]))
            for (i, m, g_) in pairs:
                cc = "0" if g_ not in first else vr(Y+4*g_); first.add(g_)
                mf += self.I(f"v_mfma_f32_16x16x32_bf16 {vr(Y+4*g_)}, {vr(TF+4*i)}, {vr(BF+4*m)}, {cc}")
            return rd, mf
        def ywrite(par):
            t = []
            for g_ in range(8):
                t += self.I(f"v_cvt_pk_bf16_f32 v{Y+4*g_}, v{Y+4*g_}, v{Y+4*g_+1}\nv_cvt_pk_bf16_f32 v{Y+4*g_+1}, v{Y+4*g_+2}, v{Y+4*g_+3}")
                t += self.I(f"ds_write_b64 v{vYW}, {vr(Y+4*g_,2)} offset:{par*(C_YRB-C_YRA) + g_*4096}")
            return t
        RD = 56
        def reduce_ch(c, par):
            t = []
            for k in range(2):
                for r in range(8): t += self.I(f"ds_read_b64 {vr(RD+2*r,2)}, v{vYR} offset:{par*(C_YRB-C_YRA) + k*16384 + r*512}")
                t += self.I(f"ds_read_b64 v[76:77], v{vKV} offset:{c*4608 + k*2048}")
                t += self.I(f"v_lshlrev_b32 v72, 16, v{RD}\nv_and_b32 v73, 0xffff0000, v{RD}\nv_lshlrev_b32 v74, 16, v{RD+1}\nv_and_b32 v75, 0xffff0000, v{RD+1}")
                for r in range(1, 8):
                    t += self.I(f"v_lshlrev_b32 v78, 16, v{RD+2*r}\nv_and_b32 v79, 0xffff0000, v{RD+2*r}\nv_add_f32 v72, v72, v78\nv_add_f32 v73, v73, v79")
                    t += self.I(f"v_lshlrev_b32 v78, 16, v{RD+2*r+1}\nv_and_b32 v79, 0xffff0000, v{RD+2*r+1}\nv_add_f32 v74, v74, v78\nv_add_f32 v75, v75, v79")
                t += self.I(f"v_lshlrev_b32 v48, 16, v{[21,22,23][c]}")
                t += self.I(f"v_lshlrev_b32 v78, 16, v76\nv_and_b32 v79, 0xffff0000, v76\nv_fmac_f32 v72, v78, v48\nv_fmac_f32 v73, v79, v48")
                t += self.I(f"v_lshlrev_b32 v78, 16, v77\nv_and_b32 v79, 0xffff0000, v77\nv_fmac_f32 v74, v78, v48\nv_fmac_f32 v75, v79, v48")
                Z0 = 40 if k == 0 else 44
                t += self.I(f"v_cvt_pk_bf16_f32 v{Z0}, v72, v73\nv_mov_b32 v{Z0+1}, s{sNonce}\nv_cvt_pk_bf16_f32 v{Z0+2}, v74, v75\nv_mov_b32 v{Z0+3}, s{sNonce}")
                if self.opt["zblk"]: u = self.I(f"s_mul_i32 s{sTmp}, s2, 96\ns_add_u32 s{sTmp}, s{sTmp}, {WS_ZT + c*32 + k*128*18432}")
                else: u = self.I(f"s_mul_i32 s{sTmp}, s2, {3*8192}\ns_add_u32 s{sTmp}, s{sTmp}, {WS_ZT + c*8192 + k*4096}")
                u.append(Inst(f"buffer_store_dwordx4 {vr(Z0)}, v19, {srd(S_WS)}, s{sTmp} offen sc1", tag="zst"))
                t.append(u)
            return t
        def phase(rd, mf, fill, sites):
            for x in rd: p.add(x)
            items = [[f] if not isinstance(f, list) else f for f in fill]
            n = len(mf)
            slots = {i: [] for i in range(n + 1)}
            for k_, it in enumerate(items): slots[min(n, 1 + (k_ * (n - 1)) // max(1, len(items)))] += it
            for k_, st_ in enumerate(sites): slots[min(n, 2 + (k_ * (n - 2)) // max(1, len(sites)))] += st_
            for i, m in enumerate(mf):
                for x in slots[i]: p.add(x)
                p.add(m)
            for x in slots[n]: p.add(x)
        ns = self.opt["early"]
        S = [self.pl_site(b, "A") for b in range(16)] if (cls == "A" and ns) else []
        p.waitlg(); p("s_barrier")
        self.stamp("cv0")
        if cls == "B":
            rd_, st2 = self.partner_stores(8)
            for i in rd_: p.add(i)
            self.add_units(st2)
            if self.opt["zblk"]:
                p(f"v_lshlrev_b32 v19, 1, v{vN}\nv_lshrrev_b32 v5, 1, v{vQ}\nv_add_u32 v19, v19, v5\ns_lshl_b32 s{sTmp}, s{sH}, 5\nv_add_u32 v19, s{sTmp}, v19\nv_mul_u32_u24 v19, 18432, v19\nv_and_b32 v5, 1, v{vQ}\nv_lshlrev_b32 v5, 4, v5\nv_add_u32 v19, v19, v5")
            else:
                p(f"v_lshlrev_b32 v19, 1, v{vZ}")
        if cls == "A":
            t = self.fpoll_issue(f"s_lshl_b32 s{sTmp2}, s{sM}, 7\nv_lshlrev_b32 v16, 2, v{vN}\nv_add_u32 v16, s{sTmp2}, v16\nv_add_u32 v16, {FA}, v16", 16, 17, "fapoll")
            for x in t: x.opaque = True; p.add(x)
        rd, mf = mfma_ch(0, C_TCA)
        fill0 = []
        if cls == "B":
            fill0 = self.conv_setup_tc(24, C_TCB)
            fill0 += self.I(f"v_mov_b32 v6, 0\nv_mov_b32 v7, 0\nv_mov_b32 v8, 0\nv_mov_b32 v9, 0\nv_and_b32 v10, 7, v0\nv_mul_u32_u24 v10, 4160, v10\nv_add_u32 v10, {16*258 + C_TCB}, v10\nds_write_b128 v10, v[6:9]")
        phase(rd, mf, fill0, [])
        for x in ywrite(0): p.add(x)
        if cls == "A":
            for x in self.I(f"s_waitcnt vmcnt(0)\nv_cmp_ne_u32 vcc, s{sNonce}, v17\ns_nop 4\ns_cmp_eq_u64 vcc, 0\ns_cselect_b32 s{sSite}, {1 if self.opt['early'] else 0}, 0"): x.opaque = True; p.add(x)
        else:
            p("s_waitcnt vmcnt(0)")
        self.xload()
        p.waitlg(); p("s_barrier")
        for i in self.set_flag(self.flag_addr(FC), "fc", 44, 45): i.opaque = True; p.add(i)
        self.stamp("cv1")
        rd, mf = mfma_ch(1, C_TCB)
        fill = self.conv_setup_tc(32, C_TCA) if cls == "A" else reduce_ch(0, 0)
        phase(rd, mf, fill, S[:8])
        for x in ywrite(1): p.add(x)
        p.waitlg(); p("s_barrier")
        self.stamp("cv2")
        rd, mf = mfma_ch(2, C_TCA)
        phase(rd, mf, reduce_ch(1, 1) if cls == "B" else [], S[8:])
        for x in ywrite(0): p.add(x)
        p.waitlg(); p("s_barrier")
        if cls == "B":
            for x in reduce_ch(2, 0):
                for y in (x if isinstance(x, list) else [x]): p.add(y)
            t = self.I(f"s_lshl_b32 s{sTmp2}, s2, 2\ns_add_u32 s{sTmp2}, s{sTmp2}, {WS_FLAG + ZF}\nv_cmp_eq_u32 vcc, 256, v0\nv_mov_b32 v48, 0\nv_cndmask_b32 v48, v{vOOB}, v48, vcc\nv_mov_b32 v49, s{sNonce}\nbuffer_store_dword v49, v48, {srd(S_WS)}, s{sTmp2} offen sc1")
            for x in t: x.opaque = True; p.add(x)
        self.stamp("cv3")
        p.waitlg(); p("s_barrier")

    def final(self):
        p = self.p
        p.drain() if False else None
        p(f"s_cmp_ge_u32 s{sW}, 4\ns_cbranch_scc1 L_finB")
        p.save()
        self.final_version("A")
        p("s_branch L_finJ")
        p("L_finB:")
        p.restore()
        self.final_version("B")
        p("L_finJ:")
        XF = 240
        DZ = C_ZL + 8192
        p(f"v_bfe_u32 v50, v{vLane}, 2, 2\nv_lshlrev_b32 v51, 4, v{vQ}\nv_add_u32 v50, v50, v51\nv_bfe_u32 v51, v{vLane}, 1, 1\nv_lshlrev_b32 v51, 3, v51\nv_add_u32 v50, v50, v51\nv_lshlrev_b32 v50, 4, v50")
        p(f"v_and_b32 v51, 1, v{vLane}\nv_lshlrev_b32 v51, 3, v51\nv_add_u32 v50, v50, v51")
        p(f"v_add_u32 v51, s{sW1024}, v50\nv_add_u32 v51, {C_ZL}, v51\nv_add_u32 v52, {DZ}, v50")
        p(f"v_lshlrev_b32 v46, 5, v{vLane}\nv_add_u32 v46, {C_C8}, v46")
        p.waitlg(); p("s_barrier")
        self.stamp("zok")
        p(f"ds_read_b64_tr_b16 v[216:217], v51\nds_read_b64_tr_b16 v[218:219], v51 offset:64")
        p(f"ds_read_b64_tr_b16 v[220:221], v52\nds_read_b64_tr_b16 v[222:223], v52 offset:64")
        for wv in range(8):
            p(f"ds_read_b128 {vr(112+8*wv)}, v46 offset:{wv*2048}\nds_read_b128 {vr(116+8*wv)}, v46 offset:{wv*2048+16}")
        def fin(X, Z, S, dst):
            for r in range(4):
                p(f"v_lshlrev_b32 v56, 16, v{X+r}\nv_and_b32 v57, 0xffff0000, v{X+r}")
                p(f"v_lshlrev_b32 v58, 16, v{X+8+r}\nv_and_b32 v59, 0xffff0000, v{X+8+r}")
                p(f"v_lshlrev_b32 v60, 16, v{Z+r}\nv_and_b32 v61, 0xffff0000, v{Z+r}")
                p(f"v_fmac_f32 v56, v58, v60\nv_fmac_f32 v57, v59, v61")
                p(f"v_add_f32 v56, v56, v{S+2*r}\nv_add_f32 v57, v57, v{S+2*r+1}")
                p(f"v_cvt_pk_bf16_f32 v{dst+r}, v56, v57")
        fin(XF, 216, 200, 64)
        p(f"s_lshl_b32 s{sTmp2}, s{sW}, 7")
        p(f"buffer_store_dwordx4 v[64:67], v15, {srd(S_OUT)}, s{sTmp2} offen {self.opt.get('outflags', '')}")
        p(f"s_cmp_lg_u32 s{sW}, 0\ns_cbranch_scc1 L_finE")
        for wv in range(1, 8):
            for e in range(0, 8, 2): p(f"v_pk_add_f32 v[{112+e}:{113+e}], v[{112+e}:{113+e}], v[{112+8*wv+e}:{113+8*wv+e}]")
        fin(XF+4, 220, 112, 68)
        p(f"buffer_store_dwordx4 v[68:71], v15, {srd(S_OUT)}, 0 offen offset:1024 {self.opt.get('outflags', '')}")
        p("L_finE:")

    def final_version(self, cls):
        p = self.p
        def flagwait(which, tag):
            t = self.I(f"s_lshl_b32 s{sTmp2}, s{sM}, 7\ns_add_u32 s{sTmp}, s{sTmp2}, {WS_FLAG + which}\nv_lshlrev_b32 v44, 2, v{vN}")
            t += self.spin_flags([44], sTmp, [45])
            for x in t: x.opaque = True; p.add(x)
        def chunk_loads():
            t = self.I(f"s_mov_b32 s{sSite}, 2")
            for b in range(16): t += self.pl_site(b, "B")
            for x in t: x.opaque = True; p.add(x)
        if cls == "A":
            L = self.label("got")
            t = self.I(f"s_cmp_eq_u32 s{sSite}, 1\ns_cbranch_scc1 {L}")
            for x in t: x.opaque = True; p.add(x)
            flagwait(FA, "fa"); chunk_loads()
            i_ = Inst(f"{L}:"); i_.opaque = True; p.add(i_)
            flagwait(FC, "fc")
        else:
            if self.opt.get("bprio"): p(f"s_setprio {self.opt['bprio']}")
            flagwait(FC, "fc"); chunk_loads()
        self.stamp("fbok")
        if self.opt["cons"]:
            t = self.I(f"s_lshl_b32 s{sTmp}, s{sM}, 4\ns_add_u32 s{sTmp}, s{sTmp}, s{sJ}\ns_mul_i32 s{sTmp}, s{sTmp}, 147456\ns_lshl_b32 s{sTmp2}, s{sW}, 11\ns_add_u32 s{sTmp}, s{sTmp}, s{sTmp2}\ns_add_u32 s{sTmp}, s{sTmp}, {WS_P + 8*16384}")
        else:
            t = self.I(f"s_lshl_b32 s{sTmp}, s{sM}, 4\ns_lshl_b32 s{sTmp2}, s{sW}, 1\ns_add_u32 s{sTmp}, s{sTmp}, s{sTmp2}\ns_mul_i32 s{sTmp}, s{sTmp}, 147456\ns_lshl_b32 s{sTmp2}, s{sJ}, 10\ns_add_u32 s{sTmp}, s{sTmp}, s{sTmp2}\ns_add_u32 s{sTmp}, s{sTmp}, {WS_P + 8*16384}")
        t += self.I(f"buffer_load_dwordx4 v[176:179], v18, {srd(S_WS)}, s{sTmp} offen sc1\ns_add_u32 s{sTmp}, s{sTmp}, {self.BJ}\nbuffer_load_dwordx4 v[180:183], v18, {srd(S_WS)}, s{sTmp} offen sc1")
        for x in t: x.opaque = True; p.add(x)
        if cls == "B" and self.opt.get("bprio"): p("s_setprio 0")
        p(f"v_mov_b32 v44, 0x3f80\nv_mov_b32 v45, 0x3f800000")
        for e in range(8): p(f"v_mov_b32 v{200+e}, 0\nv_mov_b32 v{208+e}, 0")
        def sums_main():
            for b in range(16):
                if cls == "B": p(f"s_waitcnt vmcnt({17 - b})")
                for r in range(4):
                    p(f"v_dot2_f32_bf16 v{200+2*r}, v{self.PL+4*b+r}, v44, v{200+2*r}\nv_dot2_f32_bf16 v{201+2*r}, v{self.PL+4*b+r}, v45, v{201+2*r}")
        def sums_c8():
            for b in range(2):
                for r in range(4):
                    p(f"v_dot2_f32_bf16 v{208+2*r}, v{176+4*b+r}, v44, v{208+2*r}\nv_dot2_f32_bf16 v{209+2*r}, v{176+4*b+r}, v45, v{209+2*r}")
            p(f"v_lshlrev_b32 v46, 5, v{vLane}\ns_lshl_b32 s{sTmp2}, s{sW}, 11\nv_add_u32 v46, s{sTmp2}, v46\nv_add_u32 v46, {C_C8}, v46")
            p(f"ds_write_b128 v46, v[208:211]\nds_write_b128 v46, v[212:215] offset:16")
        if cls == "A":
            p("s_waitcnt vmcnt(2)")
            sums_main()
            if self.opt["zblk"]:
                p(f"s_lshl_b32 s{sPL}, s{sM}, 4\ns_add_u32 s{sPL}, s{sPL}, s{sJ}\ns_mul_i32 s{sPL}, s{sPL}, 18432\ns_add_u32 s{sPL}, s{sPL}, {WS_ZT}")
                p(f"v_lshlrev_b32 v55, 5, v{vLane}\ns_lshl_b32 s{sTmp2}, s{sW}, 12\ns_add_u32 s{sEP}, s{sTmp2}, s{sPL}\ns_add_u32 s{sCW}, s{sEP}, 2048\ns_add_u32 s{sPL}, s{sPL}, {512*32}")
            else:
                p(f"s_lshl_b32 s{sPL}, s{sM}, 7\ns_lshl_b32 s{sTmp2}, s{sJ}, 3\ns_add_u32 s{sPL}, s{sPL}, s{sTmp2}\ns_lshl_b32 s{sPL}, s{sPL}, 2\ns_add_u32 s{sPL}, s{sPL}, {WS_ZT}")
                p(f"v_lshlrev_b32 v55, 13, v{vLane}\ns_lshl_b32 s{sTmp2}, s{sW}, 20\ns_add_u32 s{sEP}, s{sTmp2}, s{sPL}\ns_add_u32 s{sCW}, s{sEP}, {64*8192}\ns_add_u32 s{sPL}, s{sPL}, {512*8192}")
            p(f"s_cmp_eq_u32 s{sW}, 0\ns_cselect_b32 s{sTmp3}, 0, {OOB:#x}\ns_cselect_b32 s{sCS}, 0, 1024\nv_add_u32 v62, s{sTmp3}, v55")
            p(f"v_lshlrev_b32 v56, 4, v{vLane}\ns_lshl_b32 s{sTmp2}, s{sW}, 11\nv_add_u32 v56, s{sTmp2}, v56\nv_add_u32 v56, {C_ZL}, v56")
            p(f"v_lshlrev_b32 v57, 4, v{vLane}\nv_add_u32 v57, s{sCS}, v57\nv_add_u32 v57, {C_ZL + 8192}, v57")
            p(f"v_lshlrev_b32 v58, 2, v{vLane}\nv_add_u32 v59, 256, v58\nv_add_u32 v60, 512, v58\ns_mov_b32 s{sTmp}, {WS_FLAG + ZF}")
            p("s_waitcnt vmcnt(0)")
            sums_c8()
            for x in self.spin_flags([58, 59, 60], sTmp, [61, 63, 43]): x.opaque = True; p.add(x)
            self.stamp("loaded")
            LZ = self.label("zr"); LD = self.label("zrd")
            Z = 216
            t = self.I(f"s_mov_b32 s{sTmp4}, 0x8000") + [Inst(f"{LZ}:")]
            t += self.I(f"buffer_load_dwordx4 {vr(Z)}, v55, {srd(S_WS)}, s{sEP} offen sc1\nbuffer_load_dwordx4 {vr(Z+4)}, v55, {srd(S_WS)}, s{sEP} offen offset:16 sc1")
            t += self.I(f"buffer_load_dwordx4 {vr(Z+8)}, v55, {srd(S_WS)}, s{sCW} offen sc1\nbuffer_load_dwordx4 {vr(Z+12)}, v55, {srd(S_WS)}, s{sCW} offen offset:16 sc1")
            t += self.I(f"buffer_load_dwordx4 {vr(Z+16)}, v62, {srd(S_WS)}, s{sPL} offen sc1\nbuffer_load_dwordx4 {vr(Z+20)}, v62, {srd(S_WS)}, s{sPL} offen offset:16 sc1\ns_waitcnt vmcnt(0)")
            t += self.I(f"v_xor_b32 v40, s{sNonce}, v{Z+1}")
            for r in (Z+3, Z+5, Z+7, Z+9, Z+11, Z+13, Z+15): t += self.I(f"v_xor_b32 v41, s{sNonce}, v{r}\nv_or_b32 v40, v40, v41")
            t += self.I(f"s_cmp_lg_u32 s{sW}, 0\ns_cbranch_scc1 {LD}x")
            for r in (Z+17, Z+19, Z+21, Z+23): t += self.I(f"v_xor_b32 v41, s{sNonce}, v{r}\nv_or_b32 v40, v40, v41")
            t += [Inst(f"{LD}x:")]
            t += self.I(f"v_cmp_ne_u32 vcc, 0, v40\ns_nop 4\ns_cmp_eq_u64 vcc, 0\ns_cbranch_scc1 {LD}\ns_sub_u32 s{sTmp4}, s{sTmp4}, 1\ns_cmp_eq_u32 s{sTmp4}, 0\ns_cbranch_scc1 {LD}\ns_sleep 2\ns_branch {LZ}") + [Inst(f"{LD}:")]
            for x in t: x.opaque = True; p.add(x)
            for q_ in range(3):
                b0 = Z + 8 * q_
                p(f"v_mov_b32 v{b0+1}, v{b0+2}\nv_mov_b32 v{b0+2}, v{b0+4}\nv_mov_b32 v{b0+3}, v{b0+6}")
            p(f"ds_write_b128 v56, {vr(Z)}\nds_write_b128 v56, {vr(Z+8)} offset:1024\nds_write_b128 v57, {vr(Z+16)}")
        else:
            sums_main()
            p("s_waitcnt vmcnt(0)")
            sums_c8()
            self.stamp("loaded")

    def write_stamps(self, n):
        p = self.p
        p("s_waitcnt lgkmcnt(0)")
        p(f"v_cmp_eq_u32 vcc, {64*self.opt.get('stampwave', 0)}, v0\ns_and_saveexec_b64 s[{sEX}:{sEX+1}], vcc\ns_cbranch_execz L_nostamp")
        p(f"s_lshl_b32 s{sTmp}, s2, 7\ns_add_u32 s{sTmp}, s{sTmp}, {WS_DUMP}\nv_mov_b32 v4, 0")
        for i in range(n):
            p(f"v_mov_b32 v6, s{86+2*i}\nv_mov_b32 v7, s{87+2*i}")
            p(f"buffer_store_dwordx2 v[6:7], v4, {srd(S_WS)}, s{sTmp} offen offset:{8*i}")
            p("s_waitcnt vmcnt(0)")
        p(f"L_nostamp:\ns_mov_b64 exec, -1")

    def build(self):
        p = self.p
        self.stamp("start")
        self.prologue()
        self.g1()
        self.stamp("g1end")
        if self.opt["stop"] != "g1":
            self.gelu_tail()
            self.g2()
        if self.opt["stop"] not in ("g1", "g2"):
            self.conv()
            self.final()
        p.drain()
        if self.stamps:
            self.stamp("end")
            self.write_stamps(len(self.stamps))
        p("L_end:\ns_endpgm")
        return p.finalize()

class Prep(Gen):
    def build(self):
        p = self.p
        if self.opt.get("pstamp"): p("s_memrealtime s[86:87]")
        p("s_cmp_ge_u32 s2, 256\ns_cbranch_scc1 L_pend")
        p(f"s_load_dwordx16 s[{sKA}:{sKA+15}], s[0:1], 0")
        p(f"s_load_dwordx8 s[{sKA+16}:{sKA+23}], s[0:1], 64")
        p(f"s_load_dwordx2 s[{sKA+24}:{sKA+25}], s[0:1], 96")
        p(f"v_lshrrev_b32 v40, 6, v0\nv_and_b32 v{vLane}, 63, v0\nv_mov_b32 v{vOOB}, {OOB:#x}")
        p(f"v_readfirstlane_b32 s{sW}, v40")
        p(f"s_lshl_b32 s{sTmp}, s2, 3\ns_add_u32 s{sTmp}, s{sTmp}, s{sW}\ns_mul_i32 s{sPoff}, s{sTmp}, 1152")
        p(f"v_lshlrev_b32 v52, 4, v{vLane}\nv_add_u32 v53, 1024, v52\nv_cmp_gt_u32 vcc, 8, v{vLane}\nv_cndmask_b32 v53, v{vOOB}, v53, vcc")
        t = []; self.e3_base(56, t)
        for i in t: p.add(i)
        p("s_waitcnt lgkmcnt(0)")
        self.build_srd(S_X, 0, 2359296)
        p(f"buffer_load_dwordx4 v[24:27], v52, {srd(S_X)}, s{sPoff} offen\nbuffer_load_dwordx4 v[28:31], v53, {srd(S_X)}, s{sPoff} offen")
        K0, V0, W0 = 80, 94, 102
        for i in self.t0srd(8, 2359296): p.add(i)
        for r in range(3):
            p(f"v_subrev_u32 v54, {(3-r)*1152}, v56\nbuffer_load_dwordx2 {vr(K0+2*r,2)}, v54, {srd(S_T0)}, 0 offen")
        for r in range(3, 7):
            p(f"buffer_load_dwordx2 {vr(K0+2*r,2)}, v56, {srd(S_T0)}, 0 offen offset:{(r-3)*1152}")
        for i in self.t0srd(16, 2359296): p.add(i)
        for i_ in range(4):
            p(f"buffer_load_dwordx2 {vr(V0+2*i_,2)}, v56, {srd(S_T0)}, 0 offen offset:{1152*i_}")
        for i in self.t0srd(24, 4608): p.add(i)
        p(f"s_lshr_b32 s{sTmp2}, s2, 4\ns_lshl_b32 s{sTmp2}, s{sTmp2}, 9\nv_and_b32 v54, 15, v0\nv_lshlrev_b32 v54, 5, v54\nv_add_u32 v54, s{sTmp2}, v54")
        p(f"buffer_load_dwordx4 {vr(W0)}, v54, {srd(S_T0)}, 0 offen\nbuffer_load_dwordx4 {vr(W0+4)}, v54, {srd(S_T0)}, 0 offen offset:16")
        self.build_srd(S_WS, 96, WS_SIZE)
        if self.opt.get("touch", True):
            p(f"s_mul_i32 s{sTmp}, s2, 162\nv_add_u32 v58, s{sTmp}, v0\nv_lshlrev_b32 v58, 7, v58\nv_cmp_gt_u32 vcc, 162, v0\nv_cndmask_b32 v58, v{vOOB}, v58, vcc")
            for ka in (56, 64, 72):
                for i in self.t0srd(ka, 5308416): p.add(i)
                p.add(self.nodef(f"buffer_load_dword v{vDum}, v58, {srd(S_T0)}, 0 offen", "pf"))
            p(f"s_mul_i32 s{sTmp}, s2, 72\nv_add_u32 v58, s{sTmp}, v0\nv_lshlrev_b32 v58, 7, v58\nv_cmp_gt_u32 vcc, 72, v0\nv_cndmask_b32 v58, v{vOOB}, v58, vcc")
            for i in self.t0srd(32, 2359296): p.add(i)
            p.add(self.nodef(f"buffer_load_dword v{vDum}, v58, {srd(S_T0)}, 0 offen", "pf"))
        p(f"v_mov_b32 v60, 0\nv_cmp_eq_u32 vcc, 0, v0\nv_cndmask_b32 v61, v{vOOB}, v60, vcc")
        p(f"s_lshr_b32 s{sTmp}, s2, 4\ns_lshl_b32 s{sTmp}, s{sTmp}, 7\ns_and_b32 s{sTmp2}, s2, 15\ns_lshl_b32 s{sTmp2}, s{sTmp2}, 2\ns_add_u32 s{sTmp}, s{sTmp}, s{sTmp2}\ns_add_u32 s{sTmp}, s{sTmp}, {WS_FLAG + FA}")
        p(f"buffer_store_dword v60, v61, {srd(S_WS)}, s{sTmp} offen\ns_add_u32 s{sTmp}, s{sTmp}, {FC - FA}\nbuffer_store_dword v60, v61, {srd(S_WS)}, s{sTmp} offen")
        p(f"s_lshl_b32 s{sTmp}, s2, 2\ns_add_u32 s{sTmp}, s{sTmp}, {WS_FLAG + ZF}\nbuffer_store_dword v60, v61, {srd(S_WS)}, s{sTmp} offen")
        p("v_mov_b32 v40, 0x3f803f80\nv_mov_b32 v41, 0\nv_mov_b32 v42, 0")
        for r in range(8):
            p(f"v_dot2_f32_bf16 v41, v{24+r}, v40, v41\nv_dot2_f32_bf16 v42, v{24+r}, v{24+r}, v42")
        for reg in (41, 42):
            for d in ("quad_perm:[1,0,3,2]", "quad_perm:[2,3,0,1]", "row_half_mirror", "row_mirror"):
                p(f"v_add_f32_dpp v{reg}, v{reg}, v{reg} {d} row_mask:0xf bank_mask:0xf")
            for sw in ("v_permlane16_swap_b32", "v_permlane32_swap_b32"):
                p(f"v_mov_b32 v43, v{reg}\n{sw} v{reg}, v43\nv_add_f32 v{reg}, v{reg}, v43")
        p(f"v_mul_f32 v41, {f2u(1/576):#x}, v41\nv_mul_f32 v42, {f2u(1/576):#x}, v42")
        p("v_fma_f32 v42, -v41, v41, v42\nv_max_f32 v42, 0, v42")
        p("v_cvt_pk_bf16_f32 v43, v41, v42\nv_lshlrev_b32 v41, 16, v43\nv_and_b32 v42, 0xffff0000, v43")
        p(f"v_add_f32 v42, {f2u(1e-5):#x}, v42")
        p("v_cvt_pk_bf16_f32 v42, v42, v42\nv_lshlrev_b32 v42, 16, v42\nv_sqrt_f32 v42, v42")
        p("v_cvt_pk_bf16_f32 v42, v42, v42\nv_lshlrev_b32 v42, 16, v42\nv_rcp_f32 v43, v42")
        for r in range(8):
            p(f"v_lshlrev_b32 v44, 16, v{24+r}\nv_and_b32 v45, 0xffff0000, v{24+r}\nv_sub_f32 v44, v44, v41\nv_sub_f32 v45, v45, v41")
            p(f"v_cvt_pk_bf16_f32 v44, v44, v45\nv_and_b32 v45, 0xffff0000, v44\nv_lshlrev_b32 v44, 16, v44")
            p(f"v_mul_f32 v44, v44, v43\nv_mul_f32 v45, v45, v43\nv_cvt_pk_bf16_f32 v{24+r}, v44, v45")
        p(f"s_add_u32 s{sTmp}, s{sPoff}, {WS_XN}")
        sf = self.opt.get("psc", "")
        p(f"buffer_store_dwordx4 v[24:27], v52, {srd(S_WS)}, s{sTmp} offen {sf}\nbuffer_store_dwordx4 v[28:31], v53, {srd(S_WS)}, s{sTmp} offen {sf}")
        for c in range(4):
            p(f"v_lshlrev_b32 v{136+4*c-72}, 16, v{W0+2*c}\nv_and_b32 v{137+4*c-72}, 0xffff0000, v{W0+2*c}")
            p(f"v_lshlrev_b32 v{138+4*c-72}, 16, v{W0+2*c+1}\nv_and_b32 v{139+4*c-72}, 0xffff0000, v{W0+2*c+1}")
        TP, KF, VF, OU = 64, 112, 140, 156
        for r in range(7):
            p(f"v_lshlrev_b32 v{KF+4*r}, 16, v{K0+2*r}\nv_and_b32 v{KF+1+4*r}, 0xffff0000, v{K0+2*r}")
            p(f"v_lshlrev_b32 v{KF+2+4*r}, 16, v{K0+2*r+1}\nv_and_b32 v{KF+3+4*r}, 0xffff0000, v{K0+2*r+1}")
        for i_ in range(4):
            p(f"v_lshlrev_b32 v{VF+4*i_}, 16, v{V0+2*i_}\nv_and_b32 v{VF+1+4*i_}, 0xffff0000, v{V0+2*i_}")
            p(f"v_lshlrev_b32 v{VF+2+4*i_}, 16, v{V0+2*i_+1}\nv_and_b32 v{VF+3+4*i_}, 0xffff0000, v{V0+2*i_+1}")
        for c in range(4):
            for i_ in range(4): p(f"v_mul_f32 v{OU+4*c+i_}, v{KF+4*(3+i_)+c}, v{TP+4*c}")
        for jj in range(1, 4):
            for c in range(4):
                for i_ in range(4): p(f"v_fmac_f32 v{OU+4*c+i_}, v{KF+4*(3+i_-jj)+c}, v{TP+4*c+jj}")
        for c in range(4):
            for i_ in range(4): p(f"v_mul_f32 v{OU+4*c+i_}, v{OU+4*c+i_}, v{VF+4*i_+c}")
        p(f"v_and_b32 v32, 15, v0\nv_lshrrev_b32 v33, 5, v0\nv_xor_b32 v33, v33, v32\nv_lshlrev_b32 v33, 4, v33\nv_lshlrev_b32 v32, 10, v32\nv_add_u32 v32, v32, v33")
        p(f"v_bfe_u32 v33, v0, 4, 1\nv_lshlrev_b32 v33, 3, v33\nv_add_u32 v32, v32, v33")
        for c in range(4):
            p(f"v_cvt_pk_bf16_f32 v{34+2*c}, v{OU+4*c}, v{OU+4*c+1}\nv_cvt_pk_bf16_f32 v{35+2*c}, v{OU+4*c+2}, v{OU+4*c+3}")
            p(f"ds_write_b64 v32, {vr(34+2*c,2)} offset:{c*256}")
        p.waitlg(); p("s_barrier")
        p(f"v_and_b32 v44, 15, v0\nv_lshrrev_b32 v45, 4, v0")
        p(f"v_lshlrev_b32 v46, 12, v45\nv_lshlrev_b32 v47, 4, v44\nv_add_u32 v46, v46, v47")
        p(f"s_cmp_lt_u32 s2, 144\ns_cselect_b32 s{sTmp}, 0, {OOB:#x}\nv_add_u32 v46, s{sTmp}, v46")
        for r in range(2):
            p(f"v_lshrrev_b32 v47, 2, v45\nv_add_u32 v47, {8*r}, v47\nv_xor_b32 v47, v47, v44\nv_and_b32 v47, 15, v47\nv_lshlrev_b32 v47, 4, v47\nv_lshlrev_b32 v48, 8, v45\nv_add_u32 v47, v47, v48")
            p(f"ds_read_b128 {vr(24+4*r)}, v47 offset:{r*8192}")
        p(f"s_lshr_b32 s{sTmp}, s2, 4\ns_mul_i32 s{sTmp}, s{sTmp}, {64*4096}\ns_and_b32 s{sTmp2}, s2, 15\ns_lshl_b32 s{sTmp2}, s{sTmp2}, 8\ns_add_u32 s{sTmp}, s{sTmp}, s{sTmp2}\ns_add_u32 s{sTmp}, s{sTmp}, {WS_KVT}")
        p(f"buffer_store_dwordx4 v[24:27], v46, {srd(S_WS)}, s{sTmp} offen {sf}\ns_add_u32 s{sTmp}, s{sTmp}, {32*4096}\nbuffer_store_dwordx4 v[28:31], v46, {srd(S_WS)}, s{sTmp} offen {sf}")
        if self.opt.get("pstamp"):
            p("s_memrealtime s[88:89]")
            if self.opt.get("pwait"): p("s_waitcnt vmcnt(0)")
            p("s_memrealtime s[90:91]\ns_waitcnt lgkmcnt(0)")
            p(f"v_mov_b32 v4, s86\nv_mov_b32 v5, s88\nv_mov_b32 v6, s90\nv_mov_b32 v7, 0\nv_cmp_eq_u32 vcc, 0, v0\nv_mov_b32 v8, 0\nv_cndmask_b32 v8, v{vOOB}, v8, vcc")
            p(f"s_lshl_b32 s{sTmp}, s2, 4\ns_add_u32 s{sTmp}, s{sTmp}, {WS_DUMP + 0x8000}\nbuffer_store_dwordx4 v[4:7], v8, {srd(S_WS)}, s{sTmp} offen")
        p("L_pend:\ns_endpgm")
        return p.finalize()

def kernel_wrap(name, body, nvgpr=256, nsgpr=102):
    t = f".globl {name}\n.p2align 8\n.type {name},@function\n{name}:\n" + body
    d = f""".p2align 6
.amdhsa_kernel {name}
  .amdhsa_next_free_vgpr {nvgpr}
  .amdhsa_next_free_sgpr {nsgpr}
  .amdhsa_accum_offset {nvgpr}
  .amdhsa_group_segment_fixed_size 0
  .amdhsa_kernarg_size 104
  .amdhsa_user_sgpr_count 2
  .amdhsa_user_sgpr_kernarg_segment_ptr 1
  .amdhsa_system_sgpr_workgroup_id_x 1
.end_amdhsa_kernel
"""
    return t, d

PRODUCER_MAJOR = False
STAMP_SETS = [["start", "g1start", "g1end", "g2start", "g2end", "convend", "zok", "end"],
        ["start", "karg", "xrow", "s1set", "e3done", "s1ok", "g1start", "st2"],
        ["start", "st3", "st5", "st7", "st9", "st11", "st13", "st15"],
        ["start", "st15", "st17", "g1end", "gelu", "g2start", "c1", "c3"],
        ["start", "c3", "c5", "c7", "g2end", "cv0", "cv1", "cv2"],
        ["start", "cv2", "cv3", "convend", "fbok", "loaded", "zok", "end"]]
DEFAULT_STAMPS = ["start", "g1start", "g1end", "g2start", "g2end", "convend", "zok", "end"]
def make(stamps=False, listform=False, **kw):
    if stamps is True: stamps = DEFAULT_STAMPS
    g = Gen(stamps=stamps, **kw)
    body = g.build()
    name = NAME + "_kernel"
    t, d = kernel_wrap(name, body)
    ref = open(f"cdna_kernels/{NAME}.s.ref").read().split("\n")
    hdr = [l for l in ref if l.startswith(";") and "@launch" not in l and "Override launch" not in l and "grid=ceil" not in l]
    hdr = [l for l in hdr if not l.strip().startswith("; v1")]
    launch = f"; @launch grid=(256,1,1) block=(512,1,1) lds={LDS_BYTES}"
    if listform: launch = f"; @launch kernel={name} grid=(256,1,1) block=(512,1,1) lds={LDS_BYTES}"
    head = "\n".join(hdr[:15]) + "\n" + launch + "\n"
    asm = head + '.amdgcn_target "amdgcn-amd-amdhsa--gfx950"\n.text\n' + t + '.section .rodata,"a"\n' + d
    return asm, g

if __name__ == "__main__":
    asm, g = make(stamps=False)
    open(f"cdna_kernels/{NAME}.s", "w").write(asm)
    print(g.p.stats(), len(g.p.ins), len(asm))
```
